```python
import torch

def _softmax(x, axis=-1):
    return torch.softmax(x, dim=axis)
def _gelu(x):
    return torch.nn.functional.gelu(x, approximate="tanh")
def _silu(x):
    return torch.nn.functional.silu(x)
def _sigmoid(x):
    return torch.sigmoid(x)
def _layernorm(x, axis=-1, eps=1e-5):
    m = x.mean(dim=axis, keepdim=True)
    v = x.var(dim=axis, keepdim=True, unbiased=False)
    return (x - m) / torch.sqrt(v + eps)
def _scatter_add(tgt, idx, src, axis=0):
    return tgt.clone().index_add_(axis, idx, src)
def _segment_sum(src, seg, n):
    out = torch.zeros((n,) + src.shape[1:], dtype=src.dtype)
    return out.index_add_(0, seg, src)
def _pad(x, pw):
    flat = tuple(v for pair in reversed(pw) for v in pair)
    return torch.nn.functional.pad(x, flat)

kernel_name = 'sequential_preLN__ssm_conv_s4__glu_gated_glu__prompt'

def setup_inputs():

    _w = (lambda a: (lambda t: t.to(torch.bfloat16) if t.is_floating_point() else t)(torch.as_tensor(a)))
    def _A_setup():
        B, L, D, N = 1, 2048, 448, 256
        A_re = -(lambda _x: torch.exp(torch.as_tensor(_x)))((lambda *s: torch.randn(*s, dtype=torch.bfloat16) * 3.2)(D, N))
        A_im = torch.pi * (lambda *s: torch.randn(*s, dtype=torch.bfloat16) * 0.05)(D, N)
        B_re = (lambda *s: torch.randn(*s, dtype=torch.bfloat16) * 0.05)(D, N)
        B_im = (lambda *s: torch.randn(*s, dtype=torch.bfloat16) * 0.05)(D, N)
        C_re = (lambda *s: torch.randn(*s, dtype=torch.bfloat16) * 0.05)(D, N)
        C_im = (lambda *s: torch.randn(*s, dtype=torch.bfloat16) * 0.05)(D, N)
        log_dt = (lambda *s: torch.randn(*s, dtype=torch.bfloat16) * 0.05)(D) * 0.5 - 4.0
        Dskip = (lambda *s: torch.randn(*s, dtype=torch.bfloat16) * 0.05)(D)
        return {
            "u": _w((lambda *s: torch.randn(*s, dtype=torch.bfloat16) * 0.05)(B, L, D)),
            "A_re": _w(A_re),
            "A_im": _w(A_im),
            "B_re": _w(B_re),
            "B_im": _w(B_im),
            "C_re": _w(C_re),
            "C_im": _w(C_im),
            "log_dt": _w(log_dt),
            "Dskip": _w(Dskip),
        }
    _A_in = _A_setup()

    def _B_setup():
        B, S, D, F = 1, 2048, 448, 1792
        return {
            "x": _w((lambda *s: torch.randn(*s, dtype=torch.bfloat16) * 0.05)(B, S, D)),
            "w_gate": _w((lambda *s: torch.randn(*s, dtype=torch.bfloat16) * 0.05)(D, F)),
            "w_up": _w((lambda *s: torch.randn(*s, dtype=torch.bfloat16) * 0.05)(D, F)),
            "w_down": _w((lambda *s: torch.randn(*s, dtype=torch.bfloat16) * 0.05)(F, D)),
        }
    _B_in = _B_setup()

    return {
        "A_u": _A_in["u"],
        "A_A_re": _A_in["A_re"],
        "A_A_im": _A_in["A_im"],
        "A_B_re": _A_in["B_re"],
        "A_B_im": _A_in["B_im"],
        "A_C_re": _A_in["C_re"],
        "A_C_im": _A_in["C_im"],
        "A_log_dt": _A_in["log_dt"],
        "A_Dskip": _A_in["Dskip"],
        "B_x": _B_in["x"],
        "B_w_gate": _B_in["w_gate"],
        "B_w_up": _B_in["w_up"],
        "B_w_down": _B_in["w_down"],
    }

def reference(A_u, A_A_re, A_A_im, A_B_re, A_B_im, A_C_re, A_C_im, A_log_dt, A_Dskip, B_x, B_w_gate, B_w_up, B_w_down):
    def _A_ref(u, A_re, A_im, B_re, B_im, C_re, C_im, log_dt, Dskip):
        Bsz, L, D = u.shape
        dt = torch.exp(log_dt)[:, None]
        A = A_re + 1j * A_im
        Bc = B_re + 1j * B_im
        Cc = C_re + 1j * C_im
        logdA = dt * A
        dB = dt * Bc
        l = (lambda x, dt: x.to(dt))(torch.arange(L), A_re.dtype)
        P = torch.exp(logdA[:, :, None] * l[None, None, :])
        K = torch.einsum("dn,dnl,dn->dl", Cc, P, dB).real
        L2 = 2 * L
        Kp = _pad(K, ((0, 0), (0, L)))
        up = (lambda x, *d: x.permute(*d))(u, 0, 2, 1)
        up = _pad(up, ((0, 0), (0, 0), (0, L)))
        Kf = (lambda x, axes=(-2,-1): torch.fft.rfft2(x.float(), dim=axes))(Kp[:, None, :], axes=(-2, -1))
        Uf = (lambda x, axes=(-2,-1): torch.fft.rfft2(x.float(), dim=axes))(up[:, :, None, :], axes=(-2, -1))
        Yf = Uf * Kf[None, :, :, :]
        y = (lambda x, s, axes=(-2,-1): torch.fft.irfft2(x, s=s, dim=axes).to(torch.bfloat16))(Yf, (1, L2), axes=(-2, -1))[:, :, 0, :L]
        y = (lambda x, *d: x.permute(*d))(y, 0, 2, 1) + u * Dskip[None, None, :]
        return y

    def _B_ref(x, w_gate, w_up, w_down):
        g = torch.einsum("bsd,df->bsf", x, w_gate)
        u = torch.einsum("bsd,df->bsf", x, w_up)
        h = _sigmoid(g) * u
        return torch.einsum("bsf,fd->bsd", h, w_down)

    x = A_u
    h = x + _A_ref(_layernorm(x, axis=-1), A_A_re, A_A_im, A_B_re, A_B_im, A_C_re, A_C_im, A_log_dt, A_Dskip)
    h2 = h + _B_ref(_layernorm(h, axis=-1), B_w_gate, B_w_up, B_w_down)
    return h2
```

```python
import re

KNAME = "sequential_preLN__ssm_conv_s4__glu_gated_glu__prompt_kernel"

class Prog:
    def __init__(self):
        self.lines = []
    def __call__(self, s):
        for l in s.split("\n"):
            l = l.strip()
            if l: self.lines.append(l)
    stamps_on = False
    stamp_tid = 0
    stamp_op = 's_memrealtime'
    nstamp = 0
    def stamp(self):
        if not self.stamps_on: return
        i = self.nstamp; self.nstamp += 1
        self(f"{self.stamp_op} s[{64+2*i}:{65+2*i}]")
    def stamp_flush(self, region, ws='s[12:13]'):
        if not self.stamps_on: return
        self("s_waitcnt vmcnt(0) lgkmcnt(0)")
        self.stamp()
        self("s_waitcnt lgkmcnt(0)")
        for i in range(self.nstamp): self(f"v_mov_b32 v{2+i}, s{64+2*i}")
        self(f"s_lshl_b32 s62, s2, 6")
        self(f"s_add_u32 s62, s62, {region}")
        self(f"v_mov_b32 v1, s62")
        self(f"v_cmp_eq_u32 vcc, {self.stamp_tid}, v0" if self.stamp_tid <= 64 else f"v_cmp_eq_u32 vcc, 0x{self.stamp_tid:x}, v0")
        self("s_and_saveexec_b64 s[60:61], vcc")
        self("s_cbranch_execz L_stamp_skip_%d" % id(self))
        self("global_store_dwordx4 v1, v[2:5], " + ws)
        self("global_store_dwordx4 v1, v[6:9], " + ws + " offset:16")
        self("global_store_dwordx4 v1, v[10:13], " + ws + " offset:32")
        self("global_store_dwordx4 v1, v[14:17], " + ws + " offset:48")
        self("s_waitcnt vmcnt(0)")
        self("L_stamp_skip_%d:" % id(self))
    def text(self):
        return "\n".join(self.lines) + "\n"

TRANS = ("v_exp_f32", "v_log_f32", "v_rcp_f32", "v_rsq_f32", "v_sqrt_f32", "v_sin_f32", "v_cos_f32")
REG_RE = re.compile(r"^(-|abs\()?([vsa])(\d+)\)?$")
RNG_RE = re.compile(r"^(-)?([vsa])\[(\d+):(\d+)\]$")

def regs_of(tok):
    tok = tok.strip()
    if tok in ("vcc",): return {("s", 106), ("s", 107)}
    if tok == "vcc_lo": return {("s", 106)}
    if tok == "vcc_hi": return {("s", 107)}
    if tok == "exec": return {("s", 126), ("s", 127)}
    if tok == "m0": return {("s", 124)}
    m = REG_RE.match(tok)
    if m: return {(m.group(2), int(m.group(3)))}
    m = RNG_RE.match(tok)
    if m: return {(m.group(2), i) for i in range(int(m.group(3)), int(m.group(4)) + 1)}
    return set()

class Ins:
    __slots__ = ("text", "op", "ops", "kind", "dst", "src", "label", "target", "passes", "srcC", "srcAB", "nopn", "dpp", "trans", "store_data", "lds_dma", "mods")
    def __init__(self, text):
        self.text = text; self.label = None; self.target = None
        self.kind = "other"; self.dst = set(); self.src = set(); self.passes = 0
        self.srcC = set(); self.srcAB = set(); self.nopn = 1; self.dpp = False; self.trans = False
        self.store_data = set(); self.lds_dma = False
        t = text.split(";")[0].strip()
        if t.endswith(":") and " " not in t:
            self.kind = "label"; self.label = t[:-1]; self.op = ""; self.ops = []; self.nopn = 0; return
        if not t or t.startswith("."):
            self.kind = "dir"; self.op = ""; self.ops = []; self.nopn = 0; return
        parts = t.split(None, 1)
        self.op = parts[0]
        rest = parts[1] if len(parts) > 1 else ""
        ops = []; depth = 0; cur = ""
        for ch in rest:
            if ch in "[(": depth += 1
            if ch in "])": depth -= 1
            if ch == "," and depth == 0:
                ops.append(cur.strip()); cur = ""
            else: cur += ch
        if cur.strip(): ops.append(cur.strip())
        mods = ""
        if ops:
            last = ops[-1].split(None, 1)
            ops[-1] = last[0]
            mods = last[1] if len(last) > 1 else ""
        self.ops = ops; self.mods = mods
        op = self.op
        R = [regs_of(o) for o in ops]
        if op == "s_nop":
            self.kind = "nop"; self.nopn = int(ops[0], 0) + 1
        elif op.startswith("s_cbranch") or op == "s_branch":
            self.kind = "branch"; self.target = ops[0]
        elif op == "s_endpgm":
            self.kind = "end"
        elif op.startswith("v_mfma"):
            self.kind = "mfma"; self.dst = R[0]; self.srcAB = R[1] | R[2]; self.srcC = R[3]; self.src = self.srcAB | self.srcC
            self.passes = 8 if "32x32x16" in op else (4 if "16x16x32" in op else None)
            assert self.passes, op
        elif op.startswith("v_"):
            self.kind = "valu"
            self.trans = any(op.startswith(x) for x in TRANS)
            self.dpp = ("dpp" in op) or ("quad_perm" in mods) or ("row_" in mods) or ("wave_" in mods)
            self.dst = R[0]
            srcs = R[1:]
            if op.startswith("v_add_co") or op.startswith("v_addc_co") or op.startswith("v_sub_co"):
                self.dst = R[0] | R[1]; srcs = R[2:]
            for s in srcs: self.src |= s
            if op.startswith("v_fmac") or op.startswith("v_dot2c") or op.startswith("v_permlane") or op.startswith("v_writelane"):
                self.src |= R[0]
            if op.startswith("v_permlane"): self.dst = R[0] | R[1]
            if op.startswith("v_cndmask") and len(ops) == 3: self.src |= regs_of("vcc")
            if op.endswith("_d16_hi"): self.src |= R[0]
        elif op.startswith("ds_"):
            self.kind = "ds"
            if op.startswith("ds_read") or op.startswith("ds_bpermute") or op.startswith("ds_swizzle") or op.startswith("ds_permute"):
                self.dst = R[0]
                for s in R[1:]: self.src |= s
            else:
                for s in R: self.src |= s
        elif op.startswith("buffer_") or op.startswith("global_") or op.startswith("flat_"):
            self.kind = "vmem"
            self.lds_dma = (" lds" in " " + mods) or ("_lds_" in op)
            if "load" in op and not self.lds_dma:
                self.dst = R[0]
                for s in R[1:]: self.src |= s
                if "d16" in op: self.src |= R[0]
            elif "atomic" in op and "sc0" in mods:
                self.dst = R[0]
                for s in R[1:]: self.src |= s
            else:
                for s in R: self.src |= s
                if "store" in op and ("x4" in op or "x3" in op):
                    self.store_data = R[0] if op.startswith("buffer_") else R[1]
        elif op.startswith("s_"):
            self.kind = "salu"
            if op.startswith("s_cmp") or op.startswith("s_waitcnt") or op in ("s_barrier", "s_setprio", "s_sleep") or op.startswith("s_bitcmp"):
                for s in R: self.src |= s
            else:
                if R: self.dst = R[0]
                for s in R[1:]: self.src |= s
                if "saveexec" in op: self.dst |= regs_of("exec")

def is_v(r): return r[0] in ("v", "a")
def vset(s): return {r for r in s if is_v(r)}
def sset(s): return {r for r in s if r[0] == "s"}

def need(p, c):
    n = 0
    if p.kind == "valu":
        pv = vset(p.dst); ps = sset(p.dst)
        if pv and p.op.startswith("v_dot"):
            if c.kind in ("valu", "mfma", "ds", "vmem") and pv & (c.src | c.dst):
                if c.op == p.op and len(c.ops) == 4 and not (pv & (regs_of(c.ops[1]) | regs_of(c.ops[2]))) and regs_of(c.ops[3]) == pv: pass
                else: n = max(n, 3)
        if pv:
            if c.kind == "mfma" and pv & c.src: n = max(n, 2)
            if c.kind == "valu":
                if p.trans and not c.trans and pv & c.src: n = max(n, 1)
                if c.dpp and pv & c.src: n = max(n, 2)
                if c.op.startswith("v_permlane") and pv & c.src: n = max(n, 2)
                if (c.op.startswith("v_readlane") or c.op.startswith("v_readfirstlane")) and pv & c.src: n = max(n, 1)
        if ps:
            if c.kind == "valu" and ps & c.src:
                n = max(n, 4 if (c.op.startswith("v_readlane") or c.op.startswith("v_writelane")) else 2)
            if c.kind == "mfma" and ps & c.src: n = max(n, 2)
            if c.kind == "vmem" and ps & c.src: n = max(n, 5)
            if c.kind in ("salu", "branch") and (ps & c.src): n = max(n, 1)
    elif p.kind == "mfma":
        big = {4: 8, 8: 12}[p.passes]; ov = {4: 6, 8: 10}[p.passes]; war = {4: 3, 8: 7}[p.passes]
        if c.kind == "valu":
            if p.dst & (c.src | c.dst): n = max(n, big)
            if p.srcC & c.dst: n = max(n, war)
        elif c.kind in ("ds", "vmem"):
            if p.dst & (c.src | c.dst): n = max(n, big)
        elif c.kind == "mfma":
            if p.dst & c.srcAB: n = max(n, big)
            if p.dst & c.srcC:
                if not (p.dst == c.srcC and p.passes == c.passes): n = max(n, ov)
            if p.dst & c.dst and not (p.dst == c.dst and p.dst == c.srcC):
                if not (p.dst == c.dst): n = max(n, ov)
    elif p.kind == "vmem":
        if p.store_data and c.kind in ("valu", "mfma") and p.store_data & c.dst: n = max(n, 2)
        if p.store_data and c.kind in ("ds", "vmem") and p.store_data & c.dst: n = max(n, 1)
    elif p.kind == "salu":
        if ("s", 124) in p.dst and c.kind == "vmem" and c.lds_dma: n = max(n, 1)
        if ("s", 126) in p.dst or ("s", 127) in p.dst:
            if c.kind == "valu" and c.dpp: n = max(n, 0)
    return n

MAXW = 12
def fix_hazards(lines, verbose=False):
    total = 0
    for _ in range(50):
        ins = [Ins(l) for l in lines]
        labels = {i.label: k for k, i in enumerate(ins) if i.kind == "label"}
        n = len(ins)
        def succ(k):
            i = ins[k]
            if i.kind == "end": return []
            if i.kind == "branch":
                t = labels[i.target]
                return [t] if i.op == "s_branch" else [t, k + 1]
            return [k + 1] if k + 1 < n else []
        inserts = {}
        for k, p in enumerate(ins):
            if p.kind not in ("valu", "mfma", "vmem", "salu"): continue
            if p.kind == "salu" and ("s", 124) not in p.dst: continue
            if p.kind == "vmem" and not p.store_data: continue
            stack = [(s, 0) for s in succ(k)]
            seen = {}
            while stack:
                j, d = stack.pop()
                if j >= n or d >= MAXW: continue
                if j in seen and seen[j] <= d: continue
                seen[j] = d
                c = ins[j]
                if c.kind not in ("label", "dir", "nop"):
                    r = need(p, c)
                    if r > d:
                        inserts[j] = max(inserts.get(j, 0), r - d)
                        continue
                for s in succ(j): stack.append((s, d + c.nopn))
        if not inserts: break
        out = []
        first = min(inserts)
        for k, l in enumerate(lines):
            if k in inserts:
                m = inserts[k]
                total += m
                if verbose: print("  nop", m, "before:", l)
                while m > 0:
                    q = min(m, 16); out.append(f"s_nop {q-1}"); m -= q
            out.append(l)
        lines = out
    return lines, total

def kernel_desc(name, vgpr, accum=None, sgpr=96):
    if accum is None: accum = min(256, (vgpr + 3) // 4 * 4)
    return f""".section .rodata,"a"
.p2align 6
.amdhsa_kernel {name}
  .amdhsa_next_free_vgpr {vgpr}
  .amdhsa_next_free_sgpr {sgpr}
  .amdhsa_accum_offset {accum}
  .amdhsa_group_segment_fixed_size 0
  .amdhsa_kernarg_size 128
  .amdhsa_user_sgpr_count 2
  .amdhsa_user_sgpr_kernarg_segment_ptr 1
  .amdhsa_system_sgpr_workgroup_id_x 1
  .amdhsa_float_denorm_mode_32 3
.end_amdhsa_kernel
.text
"""

def kernel_text(name, prog, vgpr, accum=None, sgpr=96, verbose=False):
    lines, nn = fix_hazards(prog.lines, verbose)
    body = []
    for l in lines:
        body.append(l if l.endswith(":") else "  " + l)
    s = f".globl {name}\n.p2align 8\n.type {name},@function\n{name}:\n" + "\n".join(body) + "\n"
    s += kernel_desc(name, vgpr, accum, sgpr)
    return s
```

```python
from asmtool import *
from layout import *

def r4(b): return f"v[{b}:{b+3}]"
def r2(b): return f"v[{b}:{b+1}]"
def r16(b): return f"v[{b}:{b+15}]"

WREG = 53 * 528
KCS = 4160
KC = [0, 8 * KCS]
UL = [66560, 66560 + 4608]
XL = [75776, 75776 + 4096]
EX = 83968
TB = 4 * WREG
LDS_K1 = TB + 12288

def cmul(p, dst, x, y):
    p(f"v_pk_mul_f32 {r2(dst)}, {r2(x)}, {r2(y)} op_sel_hi:[1,0]")
    p(f"v_pk_fma_f32 {r2(dst)}, {r2(x)}, {r2(y)}, {r2(dst)} op_sel:[1,1,0] op_sel_hi:[0,1,1] neg_lo:[1,0,0]")

def cmul2(p, d, x, y):
    for k in range(2): p(f"v_pk_mul_f32 {r2(d(k))}, {r2(x(k))}, {r2(y(k))} op_sel_hi:[1,0]")
    for k in range(2): p(f"v_pk_fma_f32 {r2(d(k))}, {r2(x(k))}, {r2(y(k))}, {r2(d(k))} op_sel:[1,1,0] op_sel_hi:[0,1,1] neg_lo:[1,0,0]")

def gen_spare(p, name):
    p(f"""
    v_lshrrev_b32 v2, 3, v1
    s_lshl_b32 s34, s2, 6
    s_lshl_b32 s35, s33, 4
    s_add_u32 s34, s34, s35                   ; 64b + 16w
    v_add_u32 v2, s34, v2
    s_movk_i32 s35, 896
    v_mul_lo_u32 v3, v2, s35
    v_and_b32 v4, 7, v1
    v_lshl_add_u32 v3, v4, 4, v3
    v_add_u32 v5, {8*896}, v3                 ; pass 1
    ; column sum addressing: u = tid % 14, rg = tid / 14
    s_movk_i32 s35, 4682
    v_mul_u32_u24 v6, s35, v0
    v_lshrrev_b32 v6, 16, v6                  ; rg (0..18)
    v_mul_u32_u24 v7, 14, v6
    v_sub_u32 v7, v0, v7                      ; u
    s_and_b32 s36, s2, 15
    s_mul_i32 s36, s36, 224
    s_movk_i32 s35, {28*3584 // 16}
    v_mul_u32_u24 v8, s35, v6
    v_lshlrev_b32 v8, 4, v8                   ; rg*28*3584
    v_lshl_add_u32 v8, v7, 4, v8
    v_add_u32 v8, s36, v8
    s_waitcnt lgkmcnt(0)
    """)
    for ps in range(2):
        for i in range(7):
            p(f"global_load_dwordx4 {r4(32 + 28*ps + 4*i)}, v{3 + 2*ps}, s[4:5] offset:{128*i}")
    p("s_mov_b32 s44, 0x3f803f80")
    for ps in range(2):
        a, b = 10 + 2*ps, 11 + 2*ps
        p(f"s_waitcnt vmcnt({7*(1-ps)})")
        p(f"v_mov_b32 v{a}, 0\nv_mov_b32 v{b}, 0\nv_mov_b32 v14, 0\nv_mov_b32 v15, 0")
        for i in range(7):
            for j in range(4):
                v = 32 + 28*ps + 4*i + j
                if j & 1:
                    p(f"v_dot2_f32_bf16 v14, v{v}, s44, v14")
                    p(f"v_dot2_f32_bf16 v15, v{v}, v{v}, v15")
                else:
                    p(f"v_dot2_f32_bf16 v{a}, v{v}, s44, v{a}")
                    p(f"v_dot2_f32_bf16 v{b}, v{v}, v{v}, v{b}")
        p(f"v_add_f32 v{a}, v{a}, v14\nv_add_f32 v{b}, v{b}, v15")
    for dpp in ("quad_perm:[1,0,3,2]", "quad_perm:[2,3,0,1]", "row_half_mirror"):
        for r in (10, 11, 12, 13):
            p(f"v_add_f32_dpp v{r}, v{r}, v{r} {dpp} row_mask:0xf bank_mask:0xf")
    p(f"""
    s_mov_b32 s40, 0x3b124925                 ; 1/448
    s_mov_b32 s41, 0x3727c5ac                 ; 1e-5
    """)
    for ps in range(2):
        a, b = 10 + 2*ps, 11 + 2*ps
        t = 16 + ps
        p(f"""
        v_mul_f32 v{a}, s40, v{a}
        v_mul_f32 v{b}, s40, v{b}
        v_fma_f32 v{b}, -v{a}, v{a}, v{b}
        v_max_f32 v{b}, 0, v{b}
        v_cvt_pk_bf16_f32 v{t}, v{b}, v{b}
        v_lshlrev_b32 v{t}, 16, v{t}
        v_add_f32 v{t}, s41, v{t}
        v_cvt_pk_bf16_f32 v{t}, v{t}, v{t}
        v_lshlrev_b32 v{t}, 16, v{t}
        v_sqrt_f32 v{t}, v{t}
        v_cvt_pk_bf16_f32 v{t}, v{a}, v{t}
        """)
    p(f"""
    v_lshlrev_b32 v2, 2, v2
    v_add_u32 v2, {STATS_OFF}, v2
    s_mov_b32 s42, 0x01010101
    s_mov_b32 s43, 0x01010101
    s_mov_b64 s[46:47], exec
    s_mov_b64 exec, s[42:43]
    global_store_dword v2, v16, s[26:27] sc1
    global_store_dword v2, v17, s[26:27] offset:32 sc1
    s_mov_b64 exec, s[46:47]
    s_lshl_b32 s40, s2, 9
    s_add_u32 s40, s40, {ST2_OFF}
    v_lshl_add_u32 v4, v1, 3, s40
    v_mov_b32 v18, -1
    v_mov_b32 v19, -1
    s_cmp_lg_u32 s33, 0
    s_cbranch_scc1 L_{name}_nosent
    global_store_dwordx2 v4, v[18:19], s[26:27]
    L_{name}_nosent:
    s_waitcnt vmcnt(0)
    s_barrier
    s_cmp_lg_u32 s33, 0
    s_cbranch_scc1 L_{name}_nosig
    v_mov_b32 v4, 0
    v_mov_b32 v5, 1
    s_mov_b64 exec, 1
    global_atomic_add v4, v5, s[24:25] sc1
    s_mov_b64 exec, s[46:47]
    L_{name}_nosig:
    """)
    p(f"""
    s_cmp_lt_u32 s2, 16
    s_cselect_b32 s36, s28, s30
    s_cselect_b32 s37, s29, s31
    s_mov_b32 s38, {W_BYTES}
    s_mov_b32 s39, 0x20000
    s_mov_b32 s40, 0
    v_cmp_gt_u32 vcc, 224, v0
    s_and_saveexec_b64 s[42:43], vcc
    """)
    for i in range(28):
        p(f"buffer_load_dwordx4 {r4(96 + 4*i)}, v8, s[36:39], s40 offen")
        p(f"s_add_u32 s40, s40, 3584")
    p("s_mov_b64 exec, s[42:43]")
    for r in range(8): p(f"v_mov_b32 v{32+r}, 0")
    p("s_mov_b32 s44, 0xffff0000")
    for i in range(28):
        p(f"s_waitcnt vmcnt({27 - i})")
        for j in range(4):
            v = 96 + 4*i + j
            t = 40 + 2*(j & 1)
            p(f"v_lshlrev_b32 v{t}, 16, v{v}\nv_and_b32 v{t+1}, s44, v{v}\nv_pk_add_f32 {r2(32+2*j)}, {r2(32+2*j)}, {r2(t)}")
    p(f"""
    s_movk_i32 s35, 448
    v_mul_u32_u24 v9, s35, v6
    v_lshl_add_u32 v9, v7, 5, v9
    v_cmp_gt_u32 vcc, 224, v0
    s_and_saveexec_b64 s[42:43], vcc
    ds_write_b128 v9, v[32:35]
    ds_write_b128 v9, v[36:39] offset:16
    s_mov_b64 exec, s[42:43]
    s_waitcnt lgkmcnt(0)
    s_barrier
    v_cmp_gt_u32 vcc, 112, v0
    s_and_saveexec_b64 s[42:43], vcc
    s_cbranch_execz L_{name}_end
    v_lshlrev_b32 v9, 2, v0
    """)
    for g in range(16): p(f"ds_read_b32 v{32+g}, v9 offset:{448*g}")
    p("s_waitcnt lgkmcnt(0)")
    for g in range(1, 16): p(f"v_add_f32 v32, v32, v{32+g}")
    p(f"""
    s_mul_i32 s40, s2, 448
    s_add_u32 s40, s40, {CS_OFF}
    v_add_u32 v9, s40, v9
    global_store_dword v9, v32, s[26:27]
    s_waitcnt vmcnt(0)
    s_branch L_{name}_end
    """)

def gen_k1(name="k1_kernel", stamps=False, exp=""):
    p = Prog(); p.stamps_on = stamps
    if 'cyc' in exp: p.stamp_op = 's_memtime'
    E = f"L_{name}_end"
    p(f"""
    s_cmp_ge_u32 s2, 256
    s_cbranch_scc1 {E}
    """)
    p.stamp()
    p(f"""
    s_load_dwordx16 s[4:19], s[0:1], 0
    s_load_dwordx2 s[20:21], s[0:1], 64
    s_load_dwordx4 s[24:27], s[0:1], 112
    s_load_dwordx4 s[28:31], s[0:1], 80
    v_lshrrev_b32 v2, 6, v0
    v_and_b32 v1, 63, v0
    v_readfirstlane_b32 s33, v2
    s_cmp_lt_u32 s2, 32
    s_cbranch_scc1 L_{name}_spare
    s_sub_u32 s3, s2, 32
    s_and_b32 s34, s3, 7
    s_mul_i32 s34, s34, 56
    s_lshr_b32 s35, s3, 3
    s_lshl_b32 s35, s35, 1
    s_add_u32 s34, s34, s35                   ; d0
    s_lshr_b32 s35, s33, 1                    ; c
    s_and_b32 s36, s33, 1                     ; hf
    s_add_u32 s37, s34, s35                   ; d
    s_lshl_b32 s38, s37, 9
    s_lshl_b32 s39, s36, 8
    s_add_u32 s38, s38, s39
    v_lshl_add_u32 v24, v1, 2, s38
    s_movk_i32 s39, 7168
    v_mul_u32_u24 v25, s39, v0
    s_lshl_b32 s38, s34, 1
    s_add_u32 s39, s38, 3584
    v_add_u32 v25, s39, v25
    s_waitcnt lgkmcnt(0)
    """)
    p.stamp()
    for i in range(6):
        p(f"global_load_dword v{10+i}, v24, s[{6+2*i}:{7+2*i}]")
    p(f"""
    s_load_dword s40, s[18:19], s38
    s_load_dword s41, s[20:21], s38
    """)
    for i in range(8):
        p(f"global_load_dword v{2+i}, v25, s[4:5] offset:{(i-4)*896}")
    p(f"""
    s_mul_i32 s42, s33, {WREG}
    v_lshl_add_u32 v26, v1, 3, s42
    v_and_b32 v27, 31, v1
    v_min_u32 v28, 20, v27
    s_movk_i32 s43, 528
    v_mul_u32_u24 v28, s43, v28
    v_mul_u32_u24 v27, s43, v27
    v_lshrrev_b32 v29, 5, v1
    v_lshlrev_b32 v29, 4, v29                 ; kk*16
    v_add3_u32 v28, v28, v29, s42
    s_add_u32 s43, s42, {21*528}
    v_add3_u32 v27, v27, v29, s43
    s_waitcnt lgkmcnt(0)
    s_cmp_eq_u32 s35, 0
    s_cselect_b32 s43, 16, 0
    s_lshl_b32 s40, s40, s43
    s_and_b32 s40, s40, 0xffff0000
    s_lshl_b32 s41, s41, s43
    s_and_b32 s41, s41, 0xffff0000
    s_mov_b32 s44, 0x3fb8aa3b                 ; log2(e)
    s_mov_b32 s45, 0x3e22f983                 ; 1/(2 pi)
    s_mov_b32 s46, 0xffff0000
    v_mov_b32 v30, s40
    v_mul_f32 v30, s44, v30
    v_exp_f32 v30, v30
    v_cvt_pk_bf16_f32 v30, v30, v30
    v_and_b32 v30, s46, v30
    """)
    def C(nm, k): return 32 + 18*k + {"E1": 0, "E8": 2, "E256": 4, "E2": 6, "E4": 8, "CB": 10, "X": 12, "Y": 14, "Z": 16}[nm]
    p("s_waitcnt vmcnt(8)")
    p.stamp()
    T = 76
    for k in range(2):
        un = (lambda d, s: f"v_lshlrev_b32 v{d}, 16, v{s}") if k == 0 else (lambda d, s: f"v_and_b32 v{d}, s46, v{s}")
        X, Y, Z, CB = C("X", k), C("Y", k), C("Z", k), C("CB", k)
        p(un(X, 10)); p(un(X+1, 11))
        p(un(Y, 12)); p(un(Y+1, 13))
        p(un(Z, 14)); p(un(Z+1, 15))
        p(f"v_pk_mul_f32 {r2(X)}, {r2(X)}, v[30:31] op_sel_hi:[1,0]")
        p(f"v_pk_mul_f32 {r2(Y)}, {r2(Y)}, v[30:31] op_sel_hi:[1,0]")
        cmul(p, CB, Z, Y)
        p(f"v_mul_f32 v{X}, s44, v{X}")
        p(f"v_mul_f32 v{X+1}, s45, v{X+1}")
    for (nm, L) in (("E1", 1.0), ("E8", 8.0), ("E256", 256.0)):
        for k in range(2):
            X = C("X", k); e = C(nm, k); t = T + 4*k
            if L == 1.0:
                p(f"v_exp_f32 v{t}, v{X}")
                p(f"v_fract_f32 v{t+1}, v{X+1}")
            else:
                p(f"v_mul_f32 v{t}, 0x{__import__('struct').unpack('<I', __import__('struct').pack('<f', L))[0]:08x}, v{X}")
                p(f"v_mul_f32 v{t+1}, 0x{__import__('struct').unpack('<I', __import__('struct').pack('<f', L))[0]:08x}, v{X+1}")
                p(f"v_exp_f32 v{t}, v{t}")
                p(f"v_fract_f32 v{t+1}, v{t+1}")
            p(f"v_cos_f32 v{e}, v{t+1}")
            p(f"v_sin_f32 v{e+1}, v{t+1}")
        for k in range(2):
            e = C(nm, k); t = T + 4*k
            p(f"v_pk_mul_f32 {r2(e)}, {r2(e)}, {r2(t)} op_sel_hi:[1,0]")
    wr = [0]
    def put(row, src, neg):
        wp = 68 + 2*(wr[0] % 4); wr[0] += 1
        for k in range(2):
            s = src(k)
            p(f"v_cvt_pk_bf16_f32 v{wp+k}, v{s}, {'-' if neg else ''}v{s+1}")
        p(f"ds_write_b64 v26, {r2(wp)} offset:{row*528}")
    f = lambda nm: (lambda k: C(nm, k))
    put(0, f("CB"), True)
    cur, nxt = "X", "Y"
    cmul2(p, f("X"), f("CB"), f("E1")); put(1, f("X"), True)
    for i in range(2, 8):
        cmul2(p, f(nxt), f(cur), f("E1")); put(i, f(nxt), True)
        cur, nxt = nxt, cur
    cmul2(p, f("E2"), f("E1"), f("E1"))
    cmul2(p, f("E4"), f("E2"), f("E2"))
    cmul2(p, f("X"), f("CB"), f("E256")); put(8, f("X"), True)
    cmul2(p, f("Z"), f("X"), f("E2")); put(16, f("Z"), True)
    cmul2(p, f("Z"), f("X"), f("E4")); put(17, f("Z"), True)
    cmul2(p, f("Y"), f("Z"), f("E2")); put(18, f("Y"), True)
    cmul2(p, f("Y"), f("X"), f("E256")); put(9, f("Y"), True)
    cmul2(p, f("Z"), f("Y"), f("E4")); put(19, f("Z"), True)
    cmul2(p, f("X"), f("Y"), f("E256")); put(10, f("X"), True)
    cmul2(p, f("Z"), f("X"), f("E4")); put(20, f("Z"), True)
    cur, nxt = "X", "Y"
    for i in range(11, 16):
        cmul2(p, f(nxt), f(cur), f("E256")); put(i, f(nxt), True)
        cur, nxt = nxt, cur
    for k in range(2):
        p(f"v_mov_b32 v{C('X', k)}, 1.0\nv_mov_b32 v{C('X', k)+1}, 0")
    put(21, f("X"), False)
    put(22, f("E8"), False)
    cmul2(p, f("X"), f("E8"), f("E8")); put(23, f("X"), False)
    cur, nxt = "X", "Y"
    for j in range(3, 32):
        cmul2(p, f(nxt), f(cur), f("E8")); put(21 + j, f(nxt), False)
        cur, nxt = nxt, cur
    p.stamp()
    p(f"""
    v_mov_b32 v31, 0
    global_load_dword v24, v31, s[24:25] sc1
    s_waitcnt lgkmcnt(0)
    """)
    DEPTH = 6
    def kr(ks):
        b = 96 + 8*(ks % 8)
        p(f"ds_read_b128 {r4(b)}, v28 offset:{32*ks}")
        p(f"ds_read_b128 {r4(b+4)}, v27 offset:{32*ks}")
    for ks in range(DEPTH): kr(ks)
    for ks in range(16):
        outstanding_after = 2 * (min(ks + DEPTH, 16) - (ks + 1))
        p(f"s_waitcnt lgkmcnt({outstanding_after})")
        b = 96 + 8*(ks % 8)
        p(f"v_mfma_f32_32x32x16_bf16 v[160:175], {r4(b)}, {r4(b+4)}, " + ("0" if ks == 0 else "v[160:175]"))
        if ks + DEPTH < 16: kr(ks + DEPTH)
    p(f"""
    v_lshrrev_b32 v29, 5, v1
    v_lshlrev_b32 v29, 9, v29                 ; half*4*128
    v_and_b32 v27, 31, v1
    v_lshl_add_u32 v29, v27, 2, v29
    s_mul_i32 s42, s33, 3072
    s_add_u32 s42, s42, {TB}
    v_add_u32 v29, s42, v29
    """)
    for r in range(12):
        p(f"ds_write_b32 v29, v{160+r} offset:{((r & 3) + 8*(r >> 2))*128}")
    p.stamp()
    p(f"""
    s_mov_b32 s47, 0
    s_waitcnt vmcnt(0)
    L_{name}_poll:
    v_readfirstlane_b32 s48, v24
    s_cmp_ge_u32 s48, 32
    s_cbranch_scc1 L_{name}_go
    s_add_u32 s47, s47, 1
    s_cmp_ge_u32 s47, 0x40000
    s_cbranch_scc1 L_{name}_go
    s_sleep 4
    global_load_dword v24, v31, s[24:25] sc1
    s_waitcnt vmcnt(0)
    s_branch L_{name}_poll
    L_{name}_go:
    v_lshlrev_b32 v25, 5, v0
    v_add_u32 v25, {STATS_OFF}, v25
    global_load_dwordx4 v[16:19], v25, s[26:27] sc1
    global_load_dwordx4 v[20:23], v25, s[26:27] offset:16 sc1
    s_waitcnt lgkmcnt(0)
    s_barrier
    """)
    p.stamp()
    p(f"""
    s_mul_i32 s42, s35, 6144
    s_add_u32 s42, s42, {TB}
    v_lshl_add_u32 v26, v1, 2, s42
    s_cmp_lg_u32 s36, 0
    s_cbranch_scc1 L_{name}_g1
    """)
    seg1 = [256, 256, 512, 544, 544, 544, 576, 257]
    p("v_cmp_gt_u32 vcc, 32, v1")
    for e in range(8):
        p(f"v_mov_b32 v{40+e}, {(seg1[e]-32)*4}")
        p(f"v_mov_b32 v48, {32*e*4}")
        p(f"v_cndmask_b32 v{40+e}, v{40+e}, v48, vcc")
        p(f"v_add_u32 v{40+e}, v{40+e}, v26")
    for e in range(8):
        p(f"ds_read2st64_b32 {r2(48+2*e)}, v{40+e} offset0:0 offset1:12")
    p(f"v_add_u32 v40, {288*4}, v26\nv_add_u32 v41, {608*4}, v26\nv_add_u32 v42, {289*4}, v26")
    for i in range(3):
        p(f"ds_read2st64_b32 {r2(64+2*i)}, v{40+i} offset0:0 offset1:12")
    p("s_waitcnt lgkmcnt(0)")
    for e in range(8): p(f"v_add_f32 v{48+2*e}, v{48+2*e}, v{49+2*e}")
    for i in range(3): p(f"v_add_f32 v{64+2*i}, v{64+2*i}, v{65+2*i}")
    for j in range(4):
        p(f"v_cvt_pk_bf16_f32 v{96+j}, v{48+2*(7-2*j)}, v{48+2*(6-2*j)}")
    p(f"""
    v_cvt_pk_bf16_f32 v100, v68, v68
    v_cvt_pk_bf16_f32 v101, v66, v66          ; (K5,K4) = (Q,Q)
    v_cvt_pk_bf16_f32 v102, v66, v64          ; (K3,K2) = (Q,G)
    v_cvt_pk_bf16_f32 v103, v64, v64          ; (K1,K0) = (G,G)
    s_branch L_{name}_g2
    L_{name}_g1:
    """)
    for it in range(2):
        p(f"v_add_u32 v{40+it}, {(352+64*it)*4}, v26")
    for it in range(2):
        p(f"ds_read2st64_b32 {r2(48+4*it)}, v{40+it} offset0:0 offset1:12")
        p(f"v_add_u32 v{42+it}, 4, v{40+it}")
        p(f"ds_read2st64_b32 {r2(50+4*it)}, v{42+it} offset0:0 offset1:12")
    p(f"""
    v_and_b32 v44, 1, v1
    v_cmp_eq_u32 vcc, 1, v44
    s_movk_i32 s43, {KCS}
    v_mul_u32_u24 v45, s43, v1
    s_mul_i32 s42, s35, {KC[1]}
    s_add_u32 s42, s42, {256*16}
    v_add_u32 v45, s42, v45
    v_mov_b32 v60, 0
    v_mov_b32 v61, 0
    v_mov_b32 v62, 0
    v_mov_b32 v63, 0
    s_mov_b64 s[50:51], exec
    s_mov_b64 exec, 0xff
    ds_write_b128 v45, v[60:63]
    s_mov_b64 exec, s[50:51]
    s_waitcnt lgkmcnt(0)
    """)
    for it in range(2):
        G, Gn = 48 + 4*it, 50 + 4*it
        p(f"""
        v_add_f32 v{G}, v{G}, v{G+1}
        v_add_f32 v{Gn}, v{Gn}, v{Gn+1}
        v_cndmask_b32 v46, v{G}, v{Gn}, vcc
        v_cvt_pk_bf16_f32 v{96+4*it}, v{Gn}, v{Gn}       ; (K7,K6)
        v_cvt_pk_bf16_f32 v{97+4*it}, v{Gn}, v46         ; (K5,K4)
        v_cvt_pk_bf16_f32 v{98+4*it}, v{G}, v{G}         ; (K3,K2)
        v_cvt_pk_bf16_f32 v{99+4*it}, v{G}, v{G}         ; (K1,K0)
        """)
    p(f"""
    L_{name}_g2:
    s_mul_i32 s42, s35, {KC[1]}
    s_lshl_b32 s43, s36, 11                   ; 128*hf*16
    s_sub_u32 s42, s42, s43
    s_add_u32 s42, s42, {255*16}
    v_lshlrev_b32 v27, 4, v1
    v_sub_u32 v27, s42, v27                   ; it = 0
    v_subrev_u32 v28, 1024, v27               ; it = 1
    ds_write_b128 v27, v[96:99]
    ds_write_b128 v28, v[100:103]
    s_waitcnt lgkmcnt(0)
    s_barrier
    ds_read_b128 v[104:107], v27 offset:16
    ds_read_b128 v[108:111], v28 offset:16
    """)
    for it in range(2):
        own = 96 + 4*it; nb = 104 + 4*it
        adr = 27 + it
        a = [own, own+1, own+2, own+3, nb, nb+1, nb+2, nb+3]
        A = 112 + 32*it; Bb = 120 + 32*it; Ao = 129 + 32*it; Bo = 137 + 32*it
        if it == 0: p("s_waitcnt lgkmcnt(1)")
        else: p("s_waitcnt lgkmcnt(0)")
        for i in range(8): p(f"v_mov_b32 v{A+i}, v{a[i]}")
        for i in range(6): p(f"v_alignbit_b32 v{Bb+i}, v{a[i+1]}, v{a[i]}, 16")
        for i in range(1, 7): p(f"v_mov_b32 v{Ao+i}, v{a[i]}")
        for i in range(1, 7): p(f"v_alignbit_b32 v{Bo+i}, v{a[i+1]}, v{a[i]}, 16")
        src = {1: Bb, 2: Ao+1, 3: Bo+1, 4: A+2, 5: Bb+2, 6: Ao+3, 7: Bo+3}
        for cs in range(1, 8):
            p(f"ds_write_b128 v{adr}, {r4(src[cs])} offset:{cs*KCS}")
    p.stamp()
    p("s_waitcnt vmcnt(0)")
    for i in range(8):
        S = 16 + i; X = 2 + i
        u0 = 48 + i; u1 = 56 + i
        p(f"""
        v_lshlrev_b32 v32, 16, v{S}               ; mean
        v_and_b32 v33, s46, v{S}                  ; std
        v_rcp_f32 v33, v33
        v_lshlrev_b32 v34, 16, v{X}
        v_and_b32 v35, s46, v{X}
        v_sub_f32 v34, v34, v32
        v_sub_f32 v35, v35, v32
        v_cvt_pk_bf16_f32 v34, v34, v35
        v_lshlrev_b32 v35, 16, v34
        v_and_b32 v34, s46, v34
        v_mul_f32 v{u0}, v35, v33
        v_mul_f32 v{u1}, v34, v33
        """)
    p("s_mov_b32 s48, 0x05040100\ns_mov_b32 s49, 0x07060302")
    for j in range(4):
        p(f"v_cvt_pk_bf16_f32 v{64+j}, v{48+2*j}, v{49+2*j}")
        p(f"v_cvt_pk_bf16_f32 v{68+j}, v{56+2*j}, v{57+2*j}")
        p(f"v_perm_b32 v{72+j}, v{3+2*j}, v{2+2*j}, s48")
        p(f"v_perm_b32 v{76+j}, v{3+2*j}, v{2+2*j}, s49")
    p(f"""
    v_lshlrev_b32 v32, 4, v0                  ; tid*16
    v_add_u32 v33, {UL[0] + 512}, v32
    ds_write_b128 v33, v[64:67]
    ds_write_b128 v33, v[68:71] offset:4608
    ds_write_b128 v33, v[72:75] offset:{XL[0] - UL[0] - 512}
    ds_write_b128 v33, v[76:79] offset:{XL[1] - UL[0] - 512}
    s_cmp_lg_u32 s33, 0
    s_cbranch_scc1 L_{name}_nopad
    v_mov_b32 v60, 0
    v_mov_b32 v61, 0
    v_mov_b32 v62, 0
    v_mov_b32 v63, 0
    v_lshrrev_b32 v34, 5, v1
    s_movk_i32 s43, 4608
    v_mul_u32_u24 v34, s43, v34
    v_and_b32 v35, 31, v1
    v_lshl_add_u32 v34, v35, 4, v34
    v_add_u32 v34, {UL[0]}, v34
    ds_write_b128 v34, v[60:63]
    L_{name}_nopad:
    v_and_b32 v36, 7, v1                      ; rr
    v_bfe_u32 v37, v1, 3, 1                   ; qq
    v_lshrrev_b32 v38, 4, v1                  ; kg
    v_sub_u32 v36, 7, v36
    s_movk_i32 s43, {KCS}
    v_mul_u32_u24 v36, s43, v36
    v_sub_u32 v39, v38, v37
    v_lshl_add_u32 v36, v39, 4, v36
    s_mul_i32 s42, s35, {KC[1]}
    s_add_u32 s42, s42, {16*253 - 3584}
    s_lshl_b32 s43, s36, 8                    ; 64 * 4 hf
    s_sub_u32 s42, s42, s43
    v_add_u32 v26, s42, v36
    v_and_b32 v36, 15, v1                     ; cc
    v_lshlrev_b32 v36, 5, v36
    v_lshl_add_u32 v36, v38, 4, v36
    s_mul_i32 s42, s35, 4608
    s_add_u32 s42, s42, {UL[0] + 480}
    s_sub_u32 s42, s42, s43
    v_add_u32 v27, s42, v36
    s_waitcnt lgkmcnt(0)
    s_barrier
    """)
    p.stamp()
    def FA(s, i): return 64 + 64*s + 4*i
    def FB(s, i): return 96 + 64*s + 4*i
    def ACC(q): return 192 + 4*q
    def frag_reads(s, areg, breg):
        o = []
        for i in range(8):
            o.append(f"ds_read_b128 {r4(FA(s, i))}, v{areg} offset:{(7-i)*512}")
            o.append(f"ds_read_b128 {r4(FB(s, i))}, v{breg} offset:{i*512}")
        return o
    pairs = []
    for s in range(8):
        for j in range(s + 1):
            if s + j <= 7:
                pairs.append((s, j))
                if j < s: pairs.append((j, s))
    assert len(pairs) == 36
    for x in frag_reads(0, 26, 27): p(x)
    first = [True]*8
    for rho in range(4):
        s = rho & 1
        nxt = []
        if rho < 3:
            p(f"v_subrev_u32 v{28+2*(rho&1)}, {64*(rho+1)}, v26")
            p(f"v_subrev_u32 v{29+2*(rho&1)}, {64*(rho+1)}, v27")
            nxt = frag_reads(1 - s, 28 + 2*(rho & 1), 29 + 2*(rho & 1))
        ni = 0
        shell_done = -1
        pf_start = 16 if rho == 0 else 1
        for n, (i, j) in enumerate(pairs):
            sh = max(i, j)
            if rho == 0:
                if sh > shell_done and sh <= 4:
                    p(f"s_waitcnt lgkmcnt({14 - 2*sh if sh < 4 else 0})"); shell_done = sh
            elif n == 0:
                p("s_waitcnt lgkmcnt(0)")
            q = i + j
            c_in = "0" if first[q] else r4(ACC(q))
            first[q] = False
            p(f"v_mfma_f32_16x16x32_bf16 {r4(ACC(q))}, {r4(FA(s, i))}, {r4(FB(s, j))}, {c_in}")
            if n >= pf_start and ni < len(nxt): p(nxt[ni]); ni += 1
        assert ni == len(nxt)
    p.stamp()
    p(f"""
    s_lshl_b32 s42, s33, 12
    s_add_u32 s42, s42, {EX}
    v_lshl_add_u32 v28, v1, 4, s42
    s_xor_b32 s43, s33, 1
    s_lshl_b32 s43, s43, 12
    s_add_u32 s43, s43, {EX}
    v_lshl_add_u32 v29, v1, 4, s43
    v_and_b32 v30, 15, v1
    v_lshlrev_b32 v30, 5, v30
    v_lshrrev_b32 v31, 4, v1
    v_lshl_add_u32 v30, v31, 3, v30
    s_lshl_b32 s44, s36, 11                   ; 1024 hf * 2 B
    v_add_u32 v30, s44, v30
    s_mul_i32 s42, s35, 4608
    s_add_u32 s42, s42, {UL[0] + 512}
    v_add_u32 v32, s42, v30                   ; u address
    s_lshl_b32 s42, s35, 12
    v_add_u32 v34, s42, v30
    s_add_u32 s42, s42, {XL[0]}
    v_add_u32 v33, s42, v30                   ; x address
    s_lshl_b32 s42, s37, 12
    s_add_u32 s42, s42, {HT_OFF}
    v_add_u32 v35, s42, v30
    s_cmp_lg_u32 s36, 0
    s_cbranch_scc1 L_{name}_x1
    """)
    for j in range(4): p(f"ds_write_b128 v28, {r4(ACC(4+j))} offset:{1024*j}")
    for r in range(16): p(f"v_mov_b32 v{64+r}, v{ACC(0)+r}")
    p(f"s_branch L_{name}_x2\nL_{name}_x1:")
    for j in range(4): p(f"ds_write_b128 v28, {r4(ACC(j))} offset:{1024*j}")
    for r in range(16): p(f"v_mov_b32 v{64+r}, v{ACC(4)+r}")
    p(f"""
    L_{name}_x2:
    s_waitcnt lgkmcnt(0)
    s_barrier
    """)
    for j in range(4): p(f"ds_read_b128 {r4(80+4*j)}, v29 offset:{1024*j}")
    for j in range(4):
        p(f"ds_read_b64 {r2(96+2*j)}, v32 offset:{512*j}")
        p(f"ds_read_b64 {r2(104+2*j)}, v33 offset:{512*j}")
    p("v_mov_b32 v36, s41")
    p("s_waitcnt lgkmcnt(8)")
    for q in range(8): p(f"v_pk_add_f32 {r2(64+2*q)}, {r2(64+2*q)}, {r2(80+2*q)}")
    p("s_waitcnt lgkmcnt(0)")
    for j in range(4):
        u = 96 + 2*j; x = 104 + 2*j; y = 64 + 4*j
        p(f"""
        v_lshlrev_b32 v40, 16, v{u}
        v_and_b32 v41, s46, v{u}
        v_lshlrev_b32 v42, 16, v{u+1}
        v_and_b32 v43, s46, v{u+1}
        v_lshlrev_b32 v44, 16, v{x}
        v_and_b32 v45, s46, v{x}
        v_lshlrev_b32 v46, 16, v{x+1}
        v_and_b32 v47, s46, v{x+1}
        v_pk_fma_f32 {r2(y)}, v[40:41], v[36:37], {r2(y)} op_sel_hi:[1,0,1]
        v_pk_fma_f32 {r2(y+2)}, v[42:43], v[36:37], {r2(y+2)} op_sel_hi:[1,0,1]
        v_pk_add_f32 {r2(y)}, {r2(y)}, v[44:45]
        v_pk_add_f32 {r2(y+2)}, {r2(y+2)}, v[46:47]
        v_cvt_pk_bf16_f32 v{48+2*j}, v{y}, v{y+1}
        v_cvt_pk_bf16_f32 v{49+2*j}, v{y+2}, v{y+3}
        global_store_dwordx2 v35, {r2(48+2*j)}, s[26:27] offset:{512*j}
        """)
    p.stamp()
    p.stamp_flush(STAMP_OFF, ws="s[26:27]")
    p(f"s_branch {E}")
    p(f"L_{name}_spare:")
    gen_spare(p, name)
    p(f"""
    {E}:
    s_endpgm
    """)
    return kernel_text(name, p, vgpr=224, sgpr=96)

K1_LAUNCH = f"grid=(256,1,1) block=(256,1,1) lds={LDS_K1}"
if __name__ == "__main__":
    import sys
    s = f"; @launch kernel=k1_kernel {K1_LAUNCH}\n" + '.amdgcn_target "amdgcn-amd-amdhsa--gfx950"\n.text\n' + gen_k1(stamps=(len(sys.argv) > 2), exp=(sys.argv[2] if len(sys.argv) > 2 else ''))
    open(sys.argv[1], "w").write(s)
```

```python
from asmtool import *
from layout import *

def r4(b): return f"v[{b}:{b+3}]"
def r2(b): return f"v[{b}:{b+1}]"

def std_chain(p, mean, ex2, t, out_rstd):
    p(f"""
    v_fma_f32 v{ex2}, -v{mean}, v{mean}, v{ex2}
    v_max_f32 v{ex2}, 0, v{ex2}
    v_cvt_pk_bf16_f32 v{t}, v{ex2}, v{mean}
    v_and_b32 v{mean}, 0xffff0000, v{t}
    v_lshlrev_b32 v{t}, 16, v{t}
    v_add_f32 v{t}, s41, v{t}
    v_cvt_pk_bf16_f32 v{t}, v{t}, v{t}
    v_lshlrev_b32 v{t}, 16, v{t}
    v_sqrt_f32 v{t}, v{t}
    v_cvt_pk_bf16_f32 v{t}, v{t}, v{t}
    v_lshlrev_b32 v{t}, 16, v{t}
    """)
    if out_rstd is not None:
        p(f"v_rcp_f32 v{out_rstd}, v{t}")

def gen_k2_stats(p, name):
    p(f"""
    s_waitcnt lgkmcnt(0)
    s_add_u32 s16, s12, {HT_OFF}
    s_addc_u32 s17, s13, 0
    s_mov_b32 s18, {HT_BYTES}
    s_mov_b32 s19, 0x20000
    v_and_b32 v2, 7, v0
    v_lshrrev_b32 v3, 3, v0
    v_lshlrev_b32 v4, 12, v3
    v_lshl_add_u32 v4, v2, 4, v4
    s_lshl_b32 s40, s2, 7
    v_add_u32 v4, s40, v4
    s_mov_b32 s42, 0
    """)
    for i in range(7):
        p(f"buffer_load_dwordx4 {r4(32+4*i)}, v4, s[16:19], s42 offen")
        p(f"s_add_u32 s42, s42, {64*4096}")
    for r in range(64, 80): p(f"v_mov_b32 v{r}, 0")
    p("s_mov_b32 s52, 0xffff0000")
    for i in range(7):
        p(f"s_waitcnt vmcnt({6-i})")
        for j in range(4):
            v = 32 + 4*i + j
            p(f"""
            v_lshlrev_b32 v16, 16, v{v}
            v_and_b32 v17, s52, v{v}
            v_pk_add_f32 {r2(64+2*j)}, {r2(64+2*j)}, v[16:17]
            v_pk_fma_f32 {r2(72+2*j)}, v[16:17], v[16:17], {r2(72+2*j)}
            """)
    for r in range(64, 80):
        p(f"v_add_f32_dpp v{r}, v{r}, v{r} row_ror:8 row_mask:0xf bank_mask:0xf")
    for r in range(64, 80):
        p(f"v_mov_b32 v{r-32}, v{r}")
    for r in range(64, 80):
        p(f"v_permlane16_swap_b32 v{r}, v{r-32}")
    for r in range(64, 80):
        p(f"v_add_f32 v{r}, v{r}, v{r-32}")
    for r in range(64, 80):
        p(f"v_mov_b32 v{r-32}, v{r}")
    for r in range(64, 80):
        p(f"v_permlane32_swap_b32 v{r}, v{r-32}")
    for r in range(64, 80):
        p(f"v_add_f32 v{r}, v{r}, v{r-32}")
    p(f"""
    v_lshrrev_b32 v5, 6, v0                   ; wave
    v_and_b32 v6, 63, v0
    v_lshlrev_b32 v7, 9, v5                   ; w*512
    v_lshl_add_u32 v7, v6, 5, v7              ; + lane*32
    s_mov_b64 s[56:57], exec
    s_mov_b64 exec, 0xff
    ds_write_b128 v7, v[64:67]
    ds_write_b128 v7, v[68:71] offset:16
    ds_write_b128 v7, v[72:75] offset:256
    ds_write_b128 v7, v[76:79] offset:272
    s_mov_b64 exec, s[56:57]
    s_waitcnt lgkmcnt(0)
    s_barrier
    s_cmp_lg_u32 s33, 0
    s_cbranch_scc1 L_{name}_end
    v_lshlrev_b32 v7, 2, v6                   ; t*4
    """)
    for w in range(8):
        p(f"ds_read2st64_b32 {r2(32+2*w)}, v7 offset0:{2*w} offset1:{2*w+1}")
    p("s_waitcnt lgkmcnt(0)")
    for w in range(1, 8):
        p(f"v_pk_add_f32 v[32:33], v[32:33], {r2(32+2*w)}")
    p(f"""
    s_mov_b32 s40, 0x3b124925                 ; 1/448
    s_mov_b32 s41, 0x3727c5ac                 ; 1e-5
    v_mul_f32 v32, s40, v32
    v_mul_f32 v33, s40, v33
    """)
    std_chain(p, 32, 33, 34, 33)
    p(f"""
    s_lshl_b32 s40, s2, 9
    s_add_u32 s40, s40, {ST2_OFF}
    v_lshl_add_u32 v7, v6, 3, s40
    global_store_dwordx2 v7, v[32:33], s[12:13] sc1
    s_waitcnt vmcnt(0)
    s_branch L_{name}_end
    """)

def gen_k2(name="k2_kernel", stamps=False, exp=""):
    p = Prog(); p.stamps_on = stamps
    if 'cyc' in exp: p.stamp_op = 's_memtime'
    NSLOT = 6; SLOT = 24576
    def ACC(k, mt, nt): return 96 + (0 if k == "g" else 32) + 16*mt + 4*nt
    def SET(s, nm): return 32 + 32*s + {"G0": 0, "G1": 4, "U0": 8, "U1": 12, "X0": 16, "X1": 20, "X2": 24, "X3": 28}[nm]
    E = f"L_{name}_end"
    p(f"""
    s_cmp_ge_u32 s2, 256
    s_cbranch_scc1 {E}
    """)
    p.stamp()
    p(f"""
    s_load_dwordx4 s[8:11], s[0:1], 80
    s_load_dwordx2 s[12:13], s[0:1], 120      ; ws
    v_lshrrev_b32 v2, 6, v0
    v_and_b32 v1, 63, v0                      ; lane
    v_readfirstlane_b32 s33, v2
    s_cmp_lt_u32 s2, 32
    s_cbranch_scc1 L_{name}_stats
    s_sub_u32 s3, s2, 32
    s_and_b32 s34, s3, 7                      ; xcd
    s_lshr_b32 s35, s3, 3                     ; j
    s_and_b32 s36, s34, 3
    s_lshl_b32 s36, s36, 2
    s_and_b32 s37, s35, 3
    s_add_u32 s36, s36, s37                   ; rt
    s_lshr_b32 s37, s34, 2
    s_mul_i32 s37, s37, 7
    s_lshr_b32 s38, s35, 2
    s_add_u32 s37, s37, s38                   ; ct
    s_and_b32 s38, s33, 3                     ; fw
    s_lshr_b32 s39, s33, 2                    ; th
    v_lshrrev_b32 v4, 4, v1                   ; l>>4
    s_lshr_b32 s40, s33, 1
    s_and_b32 s40, s40, 1
    s_lshl_b32 s40, s40, 2
    v_or_b32 v5, s40, v4
    v_lshlrev_b32 v5, 1, v5
    v_and_b32 v6, 15, v1
    v_xor_b32 v5, v5, v6                      ; usrc
    v_lshlrev_b32 v5, 4, v5                   ; usrc*16
    s_lshl_b32 s40, s33, 2
    v_add_u32 v4, s40, v4                     ; row_local
    v_lshlrev_b32 v2, 12, v4                  ; *4096
    s_lshl_b32 s40, s36, 8
    v_add3_u32 v2, v2, v5, s40                ; vX
    s_movk_i32 s41, 3584
    v_mul_lo_u32 v3, v4, s41
    s_lshl_b32 s40, s37, 8
    v_add3_u32 v3, v3, v5, s40                ; vW
    s_lshl_b32 s42, s33, 10
    s_mov_b32 s50, {32*4096}
    s_mov_b32 s51, {32*3584}
    s_mov_b32 s18, {HT_BYTES}
    s_mov_b32 s19, 0x20000
    s_mov_b32 s22, {W_BYTES}
    s_mov_b32 s23, 0x20000
    s_mov_b32 s26, {W_BYTES}
    s_mov_b32 s27, 0x20000
    v_lshrrev_b32 v10, 4, v1
    v_lshlrev_b32 v10, 4, v10
    s_lshl_b32 s40, s37, 9
    s_lshl_b32 s41, s38, 7
    s_add_u32 s40, s40, s41
    s_add_u32 s40, s40, {CS_OFF}
    v_add_u32 v10, s40, v10
    v_add_u32 v11, {1792*4}, v10
    s_waitcnt lgkmcnt(0)
    """)
    p.stamp()
    p(f"""
    s_add_u32 s16, s12, {HT_OFF}
    s_addc_u32 s17, s13, 0
    s_mov_b32 s20, s8
    s_mov_b32 s21, s9
    s_mov_b32 s24, s10
    s_mov_b32 s25, s11
    global_load_dwordx4 v[160:163], v10, s[12:13]
    global_load_dwordx4 v[164:167], v10, s[12:13] offset:64
    global_load_dwordx4 v[168:171], v11, s[12:13]
    global_load_dwordx4 v[172:175], v11, s[12:13] offset:64
    """)
    def dma_parts(base):
        return [
            f"s_mov_b32 m0, {base}\ns_add_u32 s45, {base}, 8192\nbuffer_load_dwordx4 v2, s[16:19], 0 offen lds",
            f"s_mov_b32 m0, s45\ns_add_u32 s45, {base}, 16384\nbuffer_load_dwordx4 v3, s[20:23], 0 offen lds\nv_add_u32 v2, s50, v2",
            f"s_mov_b32 m0, s45\ns_nop 0\nbuffer_load_dwordx4 v3, s[24:27], 0 offen lds\nv_add_u32 v3, s51, v3",
        ]
    for c in range(NSLOT - 1):
        p(f"s_add_u32 s44, s42, {c*SLOT}")
        for d in dma_parts("s44"): p(d)
    p(f"""
    s_add_u32 s28, s12, {HF_OFF}
    s_addc_u32 s29, s13, 0
    s_mov_b32 s30, {HF_BYTES}
    s_mov_b32 s31, 0x20000
    v_lshrrev_b32 v10, 4, v1                  ; kg
    v_bfe_u32 v11, v1, 2, 2                   ; rr
    v_lshl_add_u32 v12, v10, 3, v11
    v_lshlrev_b32 v12, 8, v12                 ; (8kg+rr)*256
    v_and_b32 v13, 3, v1
    v_lshl_add_u32 v12, v13, 3, v12           ; + 8cc
    v_and_b32 v10, 1, v10
    v_lshl_or_b32 v11, v10, 2, v11            ; f
    """)
    for i in range(2):
        p(f"""
        s_lshl_b32 s40, s38, 1
        s_add_u32 s40, s40, {i}
        v_xor_b32 v13, s40, v11
        v_lshl_add_u32 v{4+i}, v13, 5, v12
        """)
    for i in range(4):
        p(f"""
        s_lshl_b32 s40, s39, 2
        s_add_u32 s40, s40, {i}
        v_xor_b32 v13, s40, v11
        v_lshl_add_u32 v{6+i}, v13, 5, v12
        """)
    for i in range(6): p(f"v_add_u32 v{20+i}, {SLOT}, v{4+i}")
    for r in range(96, 160): p(f"v_mov_b32 v{r}, 0")
    def rd(s, nm, h, abase=None):
        if "noread" in exp: return ""
        if abase is None: abase = 20 + 6*(1 - s)
        if nm[0] == "G": areg, sub = abase + int(nm[1]), 8192
        elif nm[0] == "U": areg, sub = abase + int(nm[1]), 16384
        else: areg, sub = abase + 2 + int(nm[1]), 0
        b = SET(s, nm) + 2*h
        return f"ds_read_b64_tr_b16 {r2(b)}, v{areg} offset:{sub + 1024*h}"
    def mf(s, k, mt, nt):
        if "nomfma" in exp: return ""
        acc = ACC(k, mt, nt)
        a = SET(s, ("G" if k == "g" else "U") + str(mt)); b = SET(s, f"X{nt}")
        return f"v_mfma_f32_16x16x32_bf16 {r4(acc)}, {r4(a)}, {r4(b)}, {r4(acc)}"
    RD_ORDER = ["G0", "X0", "U0", "X1", "G1", "U1", "X2", "X3"]
    MF_ORDER = [("g",0,0), ("u",0,0), ("g",0,1), ("u",0,1), ("g",1,0), ("g",1,1), ("u",1,0), ("u",1,1),
                ("g",0,2), ("u",0,2), ("g",1,2), ("u",1,2), ("g",0,3), ("u",0,3), ("g",1,3), ("u",1,3)]
    PRE = NSLOT - 1
    p(f"""
    s_waitcnt vmcnt({3*(PRE-1)})
    s_barrier
    """)
    p.stamp()
    for nm in RD_ORDER:
        for h in range(2): p(rd(0, nm, h, abase=4))
    bar = "" if "nobar" in exp else "s_barrier"
    vmw = "" if "nodma" in exp else f"s_waitcnt vmcnt({3*(PRE-2)})"
    p(f"""
    s_mov_b32 s48, 0                          ; iteration
    s_mov_b32 s53, {2*SLOT}
    s_add_u32 s54, s42, {PRE*SLOT}
    L_{name}_loop:
    """)
    need_rd = {"G0": 1, "X0": 3, "U0": 5, "X1": 7, "G1": 9, "U1": 11, "X2": 13, "X3": 15}
    def chunk(s):
        dp = ["", "", ""] if "nodma" in exp else dma_parts("s54")
        reads = [rd(1 - s, nm, h) for nm in RD_ORDER for h in range(2)]
        done = -1
        other = 20 + 6*(1 - s)
        for i in range(16):
            k, mt, nt = MF_ORDER[i]
            need = max(need_rd[("G" if k == "g" else "U") + str(mt)], need_rd[f"X{nt}"])
            if need > done:
                allowed = (15 - need) + i
                if "noread" not in exp: p(f"s_waitcnt lgkmcnt({min(allowed, 15)})")
                done = need
            p(mf(s, k, mt, nt))
            if i == 0:
                p(vmw); p(bar)
            p(reads[i])
            if i in (2, 5, 8): p(dp[(i - 2)//3])
            if 10 <= i <= 15: p(f"v_add_u32 v{other + i - 10}, s53, v{4 + i - 10}")
            if i == 9:
                p(f"""
                s_add_u32 s54, s54, {SLOT}
                s_sub_u32 s55, s54, s42
                s_cmp_eq_u32 s55, {NSLOT*SLOT}
                s_cselect_b32 s54, s42, s54
                """)
        p(f"""
        s_add_u32 s53, s53, {SLOT}
        s_cmp_eq_u32 s53, {NSLOT*SLOT}
        s_cselect_b32 s53, 0, s53
        """)
    chunk(0)
    chunk(1)
    p(f"""
    s_add_u32 s48, s48, 1
    s_cmp_lt_u32 s48, 7
    s_cbranch_scc1 L_{name}_loop
    """)
    p.stamp()
    p(f"""
    v_and_b32 v10, 15, v1
    s_lshl_b32 s40, s36, 7
    s_lshl_b32 s41, s39, 6
    s_add_u32 s40, s40, s41
    v_add_u32 v10, s40, v10
    v_lshlrev_b32 v10, 3, v10
    v_add_u32 v10, {ST2_OFF}, v10
    s_mov_b32 s58, 0
    L_{name}_poll:
    global_load_dwordx2 v[32:33], v10, s[12:13] sc1
    global_load_dwordx2 v[34:35], v10, s[12:13] offset:128 sc1
    global_load_dwordx2 v[36:37], v10, s[12:13] offset:256 sc1
    global_load_dwordx2 v[38:39], v10, s[12:13] offset:384 sc1
    s_waitcnt vmcnt(0)
    v_max_u32 v40, v32, v33
    v_max3_u32 v40, v40, v34, v35
    v_max3_u32 v40, v40, v36, v37
    v_max3_u32 v40, v40, v38, v39
    v_cmp_eq_u32 vcc, -1, v40
    s_add_u32 s58, s58, 1
    s_cmp_ge_u32 s58, 0x40000
    s_cbranch_scc1 L_{name}_got
    s_cbranch_vccz L_{name}_got
    s_sleep 2
    s_branch L_{name}_poll
    L_{name}_got:
    s_mov_b32 s40, 0xbfb8aa3b                 ; -log2(e)
    """)
    for nt in range(4):
        m, r = 32 + 2*nt, 33 + 2*nt
        p(f"""
        v_mul_f32 v{40+nt}, s40, v{r}
        v_mul_f32 v{48+nt}, -v{r}, v{m}
        v_mul_f32 v{44+nt}, -v{40+nt}, v{m}
        """)
    p.stamp()
    p(f"""
    s_lshl_b32 s40, s36, 3
    s_lshl_b32 s41, s39, 2
    s_add_u32 s40, s40, s41
    s_mul_i32 s40, s40, 56
    s_lshl_b32 s41, s37, 2
    s_add_u32 s40, s40, s41
    s_add_u32 s40, s40, s38
    s_lshl_b32 s40, s40, 10
    v_lshl_add_u32 v24, v1, 4, s40
    s_mov_b32 s41, 0
    """)
    CSG = 160; CSU = 168
    for nt in range(4):
        a, b, rb, rs = 40 + nt, 44 + nt, 48 + nt, 33 + 2*nt
        out = 52 + 4*(nt & 1)
        for mt in range(2):
            g = ACC("g", mt, nt); u = ACC("u", mt, nt)
            for r in range(4):
                p(f"v_mul_f32 v{g+r}, v{a}, v{g+r}")
                p(f"v_mul_f32 v{u+r}, v{rs}, v{u+r}")
            for r in range(4):
                p(f"v_fma_f32 v{g+r}, v{b}, v{CSG+4*mt+r}, v{g+r}")
                p(f"v_fma_f32 v{u+r}, v{rb}, v{CSU+4*mt+r}, v{u+r}")
            for r in range(4): p(f"v_exp_f32 v{g+r}, v{g+r}")
        for mt in range(2):
            g = ACC("g", mt, nt)
            for r in range(4): p(f"v_add_f32 v{g+r}, 1.0, v{g+r}")
        for mt in range(2):
            g = ACC("g", mt, nt)
            for r in range(4): p(f"v_rcp_f32 v{g+r}, v{g+r}")
        for mt in range(2):
            g = ACC("g", mt, nt); u = ACC("u", mt, nt)
            for r in range(4): p(f"v_mul_f32 v{u+r}, v{u+r}, v{g+r}")
        for mt in range(2):
            u = ACC("u", mt, nt)
            p(f"v_cvt_pk_bf16_f32 v{out+2*mt}, v{u}, v{u+1}")
            p(f"v_cvt_pk_bf16_f32 v{out+2*mt+1}, v{u+2}, v{u+3}")
        p(f"buffer_store_dwordx4 {r4(out)}, v24, s[28:31], s41 offen")
        p(f"s_add_u32 s41, s41, {56*1024}")
    p.stamp()
    p.stamp_flush(STAMP_OFF + 0x4000)
    p(f"s_branch {E}")
    p(f"L_{name}_stats:")
    gen_k2_stats(p, name)
    p(f"""
    {E}:
    s_endpgm
    """)
    return kernel_text(name, p, vgpr=176, sgpr=96)

K2_LAUNCH = "grid=(256,1,1) block=(512,1,1) lds=147456"
if __name__ == "__main__":
    import sys
    s = f"; @launch kernel=k2_kernel {K2_LAUNCH}\n" + '.amdgcn_target "amdgcn-amd-amdhsa--gfx950"\n.text\n' + gen_k2(stamps=(len(sys.argv) > 2), exp=(sys.argv[2] if len(sys.argv) > 2 else ''))
    open(sys.argv[1], "w").write(s)
```

```python
from asmtool import *
from layout import *

def r4(b): return f"v[{b}:{b+3}]"
def r2(b): return f"v[{b}:{b+1}]"

def gen_k3(name="k3_kernel", stamps=False, exp=""):
    p = Prog(); p.stamps_on = stamps
    if 'cyc' in exp: p.stamp_op = 's_memtime'
    D = 4; NK = 14
    RING = D * 4096; EXB = 4 * RING
    def ACC(mt, b): return 64 + 16*b + 4*mt
    HB = 128
    def AR(par, mt): return 32 + 16*par + 4*mt
    HR = 192
    E = f"L_{name}_end"
    p(f"""
    s_cmp_ge_u32 s2, 224
    s_cbranch_scc1 {E}
    """)
    p.stamp()
    p(f"""
    s_load_dwordx4 s[8:11], s[0:1], 96
    s_load_dwordx2 s[12:13], s[0:1], 120      ; ws
    v_lshrrev_b32 v2, 6, v0
    v_and_b32 v1, 63, v0
    v_readfirstlane_b32 s33, v2               ; w
    s_and_b32 s34, s2, 7
    s_lshr_b32 s35, s2, 3
    s_lshl_b32 s36, s34, 2
    s_and_b32 s37, s35, 3
    s_add_u32 s36, s36, s37                   ; rt2
    s_lshr_b32 s37, s35, 2                    ; dc
    s_lshl_b32 s40, s36, 2
    s_mul_i32 s43, s33, 14
    """)
    for b in range(4):
        p(f"""
        s_xor_b32 s41, s33, {b}
        s_add_u32 s41, s41, s40
        s_mul_i32 s41, s41, 56
        s_add_u32 s41, s41, s43
        s_lshl_b32 s41, s41, 10
        v_lshl_add_u32 v{2+b}, v1, 4, s41
        """)
    p(f"""
    v_lshrrev_b32 v6, 3, v1
    s_mul_i32 s43, s33, {14*32}
    v_add_u32 v6, s43, v6
    s_movk_i32 s44, 896
    v_mul_lo_u32 v6, v6, s44
    v_lshrrev_b32 v7, 4, v1
    v_lshlrev_b32 v7, 1, v7
    v_and_b32 v8, 7, v1
    v_xor_b32 v7, v7, v8
    v_lshlrev_b32 v7, 4, v7
    s_lshl_b32 s44, s37, 7
    v_add3_u32 v6, v6, v7, s44                ; vWd
    s_mul_i32 s45, s33, {RING}
    s_mov_b32 s18, {W_BYTES}
    s_mov_b32 s19, 0x20000
    s_mov_b32 s22, {HF_BYTES}
    s_mov_b32 s23, 0x20000
    s_mov_b32 s46, 0
    s_mov_b32 s47, 0                          ; H soffset
    s_waitcnt lgkmcnt(0)
    """)
    p.stamp()
    p(f"""
    s_mov_b32 s16, s8
    s_mov_b32 s17, s9
    s_add_u32 s20, s12, {HF_OFF}
    s_addc_u32 s21, s13, 0
    """)
    def issue(n):
        sl = n % D
        o = []
        for q in range(4):
            o.append(f"s_add_u32 m0, s45, {sl*4096 + q*1024}\nbuffer_load_dwordx4 {r4(HB + 16*sl + 4*q)}, v{2+q}, s[20:23], s47 offen\nbuffer_load_dwordx4 v6, s[16:19], s46 offen lds\ns_add_u32 s46, s46, 7168")
        o.append("s_add_u32 s47, s47, 1024")
        return o
    for n in range(D):
        for x in issue(n): p(x)
    p(f"""
    s_add_u32 s24, s12, {HT_OFF}
    s_addc_u32 s25, s13, 0
    s_mov_b32 s26, {HT_BYTES}
    s_mov_b32 s27, 0x20000
    s_mov_b32 s28, s10
    s_mov_b32 s29, s11
    s_mov_b32 s30, {X_BYTES}
    s_mov_b32 s31, 0x20000
    v_lshrrev_b32 v10, 4, v1                  ; kg
    v_bfe_u32 v11, v1, 2, 2                   ; rr
    v_lshl_add_u32 v12, v10, 2, v11
    v_lshlrev_b32 v12, 7, v12
    v_and_b32 v13, 3, v1
    v_lshl_add_u32 v12, v13, 3, v12
    v_add_u32 v12, s45, v12
    v_and_b32 v10, 1, v10
    v_lshrrev_b32 v11, 1, v11
    v_lshl_or_b32 v11, v10, 1, v11            ; g3
    """)
    for mt in range(4):
        p(f"""
        v_xor_b32 v13, {mt}, v11
        v_lshl_add_u32 v{14+mt}, v13, 5, v12
        """)
    p(f"""
    v_and_b32 v7, 15, v1
    s_lshl_b32 s48, s36, 6
    s_lshl_b32 s49, s33, 4
    s_add_u32 s48, s48, s49
    v_add_u32 v7, s48, v7                     ; t
    s_lshl_b32 s49, s37, 6                    ; d0 = 64dc
    v_lshrrev_b32 v8, 4, v1                   ; rg
    v_lshlrev_b32 v9, 2, v8
    v_add_u32 v9, s49, v9                     ; d0 + 4rg
    v_lshlrev_b32 v9, 12, v9
    v_lshl_add_u32 v9, v7, 1, v9              ; vHres
    s_movk_i32 s50, 896
    v_mul_lo_u32 v7, v7, s50
    v_and_b32 v10, 1, v8
    v_lshlrev_b32 v10, 5, v10
    v_lshrrev_b32 v8, 1, v8
    v_lshlrev_b32 v8, 4, v8
    s_lshl_b32 s49, s49, 1
    v_add3_u32 v7, v7, v8, v10
    v_add_u32 v7, s49, v7                     ; vOut
    """)
    for r in range(64, 128): p(f"v_mov_b32 v{r}, 0")
    def reads(n):
        sl = n % D; par = n & 1
        o = []
        for mt in range(4):
            b = AR(par, mt)
            o.append(f"ds_read_b64_tr_b16 {r2(b)}, v{14+mt} offset:{sl*4096}")
            o.append(f"ds_read_b64_tr_b16 {r2(b+2)}, v{14+mt} offset:{sl*4096 + 2048}")
        return o
    extra = 0
    p(f"s_waitcnt vmcnt({8*(D-1)})")
    p.stamp()
    for x in reads(0): p(x)
    for n in range(NK):
        last_issued = min(n + D - 1, NK - 1)
        nxt = []
        if n + 1 < NK:
            allowed = 8 * (last_issued - (n + 1)) + extra
            p(f"s_waitcnt vmcnt({allowed}) lgkmcnt(0)")
            nxt = reads(n + 1)
        else:
            p("s_waitcnt lgkmcnt(0)")
        sl = n % D; par = n & 1
        iss = issue(n + D) if n + D < NK else []
        k = 0
        for b in range(4):
            for mt in range(4):
                p(f"v_mfma_f32_16x16x32_bf16 {r4(ACC(mt, b))}, {r4(AR(par, mt))}, {r4(HB + 16*sl + 4*b)}, {r4(ACC(mt, b))}")
                if k < len(nxt): p(nxt[k])
                k += 1
        for x in iss: p(x)
        if n + D == NK - 1:
            for r in range(16):
                off = (16*(r >> 2) + (r & 3)) * 4096
                p(f"s_mov_b32 s51, {off}")
                p(f"buffer_load_ushort v{HR + r}, v9, s[24:27], s51 offen")
            extra = 16
    p.stamp()
    p("v_lshlrev_b32 v10, 4, v1")
    for b in range(1, 4):
        p(f"""
        s_xor_b32 s40, s33, {b}
        s_mul_i32 s40, s40, {3*4096}
        s_add_u32 s40, s40, {EXB + (b-1)*4096}
        v_add_u32 v11, s40, v10
        """)
        for mt in range(4):
            p(f"ds_write_b128 v11, {r4(ACC(mt, b))} offset:{mt*1024}")
    p(f"""
    s_mul_i32 s40, s33, {3*4096}
    s_add_u32 s40, s40, {EXB}
    v_add_u32 v11, s40, v10
    s_waitcnt lgkmcnt(0)
    s_barrier
    """)
    for k in range(3):
        for mt in range(4):
            p(f"ds_read_b128 {r4(ACC(mt, k+1))}, v11 offset:{k*4096 + mt*1024}")
    p("s_waitcnt vmcnt(0)")
    for r in range(16): p(f"v_lshlrev_b32 v{HR + r}, 16, v{HR + r}")
    A0 = ACC(0, 0)
    for k in range(3):
        p(f"s_waitcnt lgkmcnt({8 - 4*k})")
        for q in range(8):
            p(f"v_pk_add_f32 {r2(A0 + 2*q)}, {r2(A0 + 2*q)}, {r2(ACC(0, k+1) + 2*q)}")
    for q in range(8):
        p(f"v_cvt_pk_bf16_f32 v{32+q}, v{A0 + 2*q}, v{A0 + 2*q + 1}")
    for q in range(8):
        p(f"v_lshlrev_b32 v{A0 + 2*q}, 16, v{32+q}")
        p(f"v_and_b32 v{A0 + 2*q + 1}, 0xffff0000, v{32+q}")
    for q in range(8):
        p(f"v_pk_add_f32 {r2(A0 + 2*q)}, {r2(A0 + 2*q)}, {r2(HR + 2*q)}")
    for q in range(8):
        p(f"v_cvt_pk_bf16_f32 v{32+q}, v{A0 + 2*q}, v{A0 + 2*q + 1}")
    p("""
    v_permlane16_swap_b32 v32, v34
    v_permlane16_swap_b32 v33, v35
    v_permlane16_swap_b32 v36, v38
    v_permlane16_swap_b32 v37, v39
    v_mov_b32 v40, v32
    v_mov_b32 v41, v33
    v_mov_b32 v42, v34
    v_mov_b32 v43, v35
    buffer_store_dwordx4 v[40:43], v7, s[28:31], 0 offen
    buffer_store_dwordx4 v[36:39], v7, s[28:31], 0 offen offset:64
    """)
    p.stamp()
    p.stamp_flush(STAMP_OFF + 0x8000)
    p(f"""
    {E}:
    s_endpgm
    """)
    return kernel_text(name, p, vgpr=208, sgpr=96)

K3_LAUNCH = "grid=(224,1,1) block=(256,1,1) lds=114688"
if __name__ == "__main__":
    import sys
    s = f"; @launch kernel=k3_kernel {K3_LAUNCH}\n" + '.amdgcn_target "amdgcn-amd-amdhsa--gfx950"\n.text\n' + gen_k3(stamps=(len(sys.argv) > 2), exp=(sys.argv[2] if len(sys.argv) > 2 else ''))
    open(sys.argv[1], "w").write(s)
```

```python
STATS_OFF = 0x0
HT_OFF    = 0x10000
HT_BYTES  = 448 * 2048 * 2
HF_OFF    = 0x200000
HF_BYTES  = 64 * 112 * 1024
X_BYTES   = 2048 * 448 * 2
W_BYTES   = 448 * 1792 * 2
P_BYTES   = 448 * 256 * 2
CS_OFF    = 0x4000
ST2_OFF   = 0x8000
CNT_OFF   = 0xC000
TOUCH_OFF = 0xE800
S2A_OFF   = CNT_OFF + 16*128
S2T_OFF   = CNT_OFF + 24*128
STAMP_OFF = 0xF000000
```

```python
import sys
from k1 import gen_k1, K1_LAUNCH
from k2 import gen_k2, K2_LAUNCH
from k3 import gen_k3, K3_LAUNCH
def build(stamps=False, exp=""):
    s = "; sequential preLN -> S4 convolution -> GLU MLP, three launches\n"
    s += "; kernarg: 13 input pointers, d_out (104), d_debug (112), d_ws (120)\n"
    s += f"; @launch kernel=k1_kernel {K1_LAUNCH}\n"
    s += f"; @launch kernel=k2_kernel {K2_LAUNCH}\n"
    s += f"; @launch kernel=k3_kernel {K3_LAUNCH}\n"
    s += '.amdgcn_target "amdgcn-amd-amdhsa--gfx950"\n.text\n'
    s += gen_k1(stamps=stamps, exp=exp) + gen_k2(stamps=stamps, exp=exp) + gen_k3(stamps=stamps, exp=exp)
    return s
if __name__ == "__main__":
    out = sys.argv[1] if len(sys.argv) > 1 else "sequential_preLN__ssm_conv_s4__glu_gated_glu__prompt.s"
    open(out, "w").write(build(stamps=len(sys.argv) > 2, exp=(sys.argv[2] if len(sys.argv) > 2 else "")))
```

```python
import sys
from build import build
from asmtool import *
n = int(sys.argv[1]); out = sys.argv[2]; where = sys.argv[3] if len(sys.argv) > 3 else "end"
s = build()
lines = s.split("\n")
idx = [i for i, l in enumerate(lines) if l.startswith("; @launch")]
extra = ["; @launch kernel=nop_kernel grid=(256,1,1) block=(64,1,1) lds=0"] * n
if where == "end": lines[idx[-1]+1:idx[-1]+1] = extra
else: lines[idx[0]:idx[0]] = extra
s = "\n".join(lines)
p = Prog(); p("s_endpgm")
s += kernel_text("nop_kernel", p, vgpr=8, sgpr=16)
open(out, "w").write(s)
```

```python
from asmtool import *
from layout import *

def r4(b): return f"v[{b}:{b+3}]"
def r2(b): return f"v[{b}:{b+1}]"

def gen_k3(name="k3_kernel", stamps=False, exp=""):
    p = Prog(); p.stamps_on = stamps
    if 'cyc' in exp: p.stamp_op = 's_memtime'
    D = 4; NK = 14
    RING = D * 4096; EXB = 4 * RING
    def ACC(mt, b): return 64 + 16*b + 4*mt
    HB = 128
    def AR(par, mt): return 32 + 16*par + 4*mt
    HR = 192
    E = f"L_{name}_end"
    p(f"""
    s_cmp_ge_u32 s2, 224
    s_cbranch_scc1 {E}
    """)
    p.stamp()
    p(f"""
    s_load_dwordx4 s[8:11], s[0:1], 96
    s_load_dwordx2 s[12:13], s[0:1], 120      ; ws
    v_lshrrev_b32 v2, 6, v0
    v_and_b32 v1, 63, v0
    v_readfirstlane_b32 s33, v2               ; w
    s_and_b32 s34, s2, 7
    s_lshr_b32 s35, s2, 3
    s_lshl_b32 s36, s34, 2
    s_and_b32 s37, s35, 3
    s_add_u32 s36, s36, s37                   ; rt2
    s_lshr_b32 s37, s35, 2                    ; dc
    s_lshl_b32 s40, s36, 2
    s_mul_i32 s43, s33, 14
    """)
    for b in range(4):
        p(f"""
        s_xor_b32 s41, s33, {b}
        s_add_u32 s41, s41, s40
        s_mul_i32 s41, s41, 56
        s_add_u32 s41, s41, s43
        s_lshl_b32 s41, s41, 10
        v_lshl_add_u32 v{2+b}, v1, 4, s41
        """)
    p(f"""
    v_lshrrev_b32 v6, 3, v1
    s_mul_i32 s43, s33, {14*32}
    v_add_u32 v6, s43, v6
    s_movk_i32 s44, 896
    v_mul_lo_u32 v6, v6, s44
    v_lshrrev_b32 v7, 4, v1
    v_lshlrev_b32 v7, 1, v7
    v_and_b32 v8, 7, v1
    v_xor_b32 v7, v7, v8
    v_lshlrev_b32 v7, 4, v7
    s_lshl_b32 s44, s37, 7
    v_add3_u32 v6, v6, v7, s44                ; vWd
    s_mul_i32 s45, s33, {RING}
    s_mov_b32 s18, {W_BYTES}
    s_mov_b32 s19, 0x20000
    s_mov_b32 s22, {HF_BYTES}
    s_mov_b32 s23, 0x20000
    s_mov_b32 s46, 0
    s_mov_b32 s47, 0                          ; H soffset
    s_waitcnt lgkmcnt(0)
    """)
    p.stamp()
    p(f"""
    s_mov_b32 s16, s8
    s_mov_b32 s17, s9
    s_add_u32 s20, s12, {HF_OFF}
    s_addc_u32 s21, s13, 0
    """)
    def issue(n):
        sl = n % D
        o = []
        for q in range(4):
            o.append(f"s_add_u32 m0, s45, {sl*4096 + q*1024}\nbuffer_load_dwordx4 {r4(HB + 16*sl + 4*q)}, v{2+q}, s[20:23], s47 offen\nbuffer_load_dwordx4 v6, s[16:19], s46 offen lds\ns_add_u32 s46, s46, 7168")
        o.append("s_add_u32 s47, s47, 1024")
        return o
    for n in range(D):
        for x in issue(n): p(x)
    p(f"""
    s_add_u32 s24, s12, {HT_OFF}
    s_addc_u32 s25, s13, 0
    s_mov_b32 s26, {HT_BYTES}
    s_mov_b32 s27, 0x20000
    s_mov_b32 s28, s10
    s_mov_b32 s29, s11
    s_mov_b32 s30, {X_BYTES}
    s_mov_b32 s31, 0x20000
    v_lshrrev_b32 v10, 4, v1                  ; kg
    v_bfe_u32 v11, v1, 2, 2                   ; rr
    v_lshl_add_u32 v12, v10, 2, v11
    v_lshlrev_b32 v12, 7, v12
    v_and_b32 v13, 3, v1
    v_lshl_add_u32 v12, v13, 3, v12
    v_add_u32 v12, s45, v12
    v_and_b32 v10, 1, v10
    v_lshrrev_b32 v11, 1, v11
    v_lshl_or_b32 v11, v10, 1, v11            ; g3
    """)
    for mt in range(4):
        p(f"""
        v_xor_b32 v13, {mt}, v11
        v_lshl_add_u32 v{14+mt}, v13, 5, v12
        """)
    p(f"""
    v_and_b32 v7, 15, v1
    s_lshl_b32 s48, s36, 6
    s_lshl_b32 s49, s33, 4
    s_add_u32 s48, s48, s49
    v_add_u32 v7, s48, v7                     ; t
    s_lshl_b32 s49, s37, 6                    ; d0 = 64dc
    v_lshrrev_b32 v8, 4, v1                   ; rg
    v_lshlrev_b32 v9, 2, v8
    v_add_u32 v9, s49, v9                     ; d0 + 4rg
    v_lshlrev_b32 v9, 12, v9
    v_lshl_add_u32 v9, v7, 1, v9              ; vHres
    s_movk_i32 s50, 896
    v_mul_lo_u32 v7, v7, s50
    v_and_b32 v10, 1, v8
    v_lshlrev_b32 v10, 5, v10
    v_lshrrev_b32 v8, 1, v8
    v_lshlrev_b32 v8, 4, v8
    s_lshl_b32 s49, s49, 1
    v_add3_u32 v7, v7, v8, v10
    v_add_u32 v7, s49, v7                     ; vOut
    """)
    for r in range(64, 128): p(f"v_mov_b32 v{r}, 0")
    def reads(n):
        sl = n % D; par = n & 1
        o = []
        for mt in range(4):
            b = AR(par, mt)
            o.append(f"ds_read_b64_tr_b16 {r2(b)}, v{14+mt} offset:{sl*4096}")
            o.append(f"ds_read_b64_tr_b16 {r2(b+2)}, v{14+mt} offset:{sl*4096 + 2048}")
        return o
    extra = 0
    p(f"s_waitcnt vmcnt({8*(D-1)})")
    p.stamp()
    for x in reads(0): p(x)
    for n in range(NK):
        last_issued = min(n + D - 1, NK - 1)
        nxt = []
        if n + 1 < NK:
            allowed = 8 * (last_issued - (n + 1)) + extra
            p(f"s_waitcnt vmcnt({allowed}) lgkmcnt(0)")
            nxt = reads(n + 1)
        else:
            p("s_waitcnt lgkmcnt(0)")
        sl = n % D; par = n & 1
        iss = issue(n + D) if n + D < NK else []
        k = 0
        for b in range(4):
            for mt in range(4):
                p(f"v_mfma_f32_16x16x32_bf16 {r4(ACC(mt, b))}, {r4(AR(par, mt))}, {r4(HB + 16*sl + 4*b)}, {r4(ACC(mt, b))}")
                if k < len(nxt): p(nxt[k])
                k += 1
        for x in iss: p(x)
        if n + D == NK - 1:
            for r in range(16):
                off = (16*(r >> 2) + (r & 3)) * 4096
                p(f"s_mov_b32 s51, {off}")
                p(f"buffer_load_ushort v{HR + r}, v9, s[24:27], s51 offen")
            extra = 16
    p.stamp()
    p("v_lshlrev_b32 v10, 4, v1")
    for b in range(1, 4):
        p(f"""
        s_xor_b32 s40, s33, {b}
        s_mul_i32 s40, s40, {3*4096}
        s_add_u32 s40, s40, {EXB + (b-1)*4096}
        v_add_u32 v11, s40, v10
        """)
        for mt in range(4):
            p(f"ds_write_b128 v11, {r4(ACC(mt, b))} offset:{mt*1024}")
    p(f"""
    s_mul_i32 s40, s33, {3*4096}
    s_add_u32 s40, s40, {EXB}
    v_add_u32 v11, s40, v10
    s_waitcnt lgkmcnt(0)
    s_barrier
    """)
    for k in range(3):
        for mt in range(4):
            p(f"ds_read_b128 {r4(ACC(mt, k+1))}, v11 offset:{k*4096 + mt*1024}")
    p("s_waitcnt vmcnt(0)")
    for r in range(16): p(f"v_lshlrev_b32 v{HR + r}, 16, v{HR + r}")
    A0 = ACC(0, 0)
    for k in range(3):
        p(f"s_waitcnt lgkmcnt({8 - 4*k})")
        for q in range(8):
            p(f"v_pk_add_f32 {r2(A0 + 2*q)}, {r2(A0 + 2*q)}, {r2(ACC(0, k+1) + 2*q)}")
    for q in range(8):
        p(f"v_cvt_pk_bf16_f32 v{32+q}, v{A0 + 2*q}, v{A0 + 2*q + 1}")
    for q in range(8):
        p(f"v_lshlrev_b32 v{A0 + 2*q}, 16, v{32+q}")
        p(f"v_and_b32 v{A0 + 2*q + 1}, 0xffff0000, v{32+q}")
    for q in range(8):
        p(f"v_pk_add_f32 {r2(A0 + 2*q)}, {r2(A0 + 2*q)}, {r2(HR + 2*q)}")
    for q in range(8):
        p(f"v_cvt_pk_bf16_f32 v{32+q}, v{A0 + 2*q}, v{A0 + 2*q + 1}")
    p("""
    v_permlane16_swap_b32 v32, v34
    v_permlane16_swap_b32 v33, v35
    v_permlane16_swap_b32 v36, v38
    v_permlane16_swap_b32 v37, v39
    v_mov_b32 v40, v32
    v_mov_b32 v41, v33
    v_mov_b32 v42, v34
    v_mov_b32 v43, v35
    buffer_store_dwordx4 v[40:43], v7, s[28:31], 0 offen
    buffer_store_dwordx4 v[36:39], v7, s[28:31], 0 offen offset:64
    """)
    p.stamp()
    p.stamp_flush(STAMP_OFF + 0x8000)
    if "dbg" in exp:
        sel = exp.split("dbg")[1][:1]
        p(f"""
        s_cmp_lg_u32 s2, 0
        s_cbranch_scc1 {E}
        s_cmp_lg_u32 s33, 0
        s_cbranch_scc1 {E}
        s_mov_b64 exec, -1
        s_load_dwordx2 s[14:15], s[0:1], 112
        v_and_b32 v1, 63, v0
        v_lshlrev_b32 v2, 2, v1
        v_mov_b32 v3, {STAMP_OFF + 40*64}
        v_mov_b32 v4, {STAMP_OFF + 0x4000 + 40*64}
        v_mov_b32 v5, {STAMP_OFF + 0x8000}
        v_add_u32 v3, v3, v2
        v_add_u32 v4, v4, v2
        v_add_u32 v5, v5, v2
        global_load_dword v6, v3, s[12:13] sc1
        global_load_dword v7, v4, s[12:13] sc1
        global_load_dword v8, v5, s[12:13] sc1
        s_waitcnt vmcnt(0) lgkmcnt(0)
        v_readlane_b32 s20, v6, 0
        """)
        if sel == "a":
            p("v_subrev_u32 v9, s20, v6")
        elif sel == "b":
            p("""
            v_subrev_u32 v9, s20, v7
            v_subrev_u32 v10, s20, v8
            v_readlane_b32 s21, v10, 0
            v_readlane_b32 s22, v10, 1
            v_readlane_b32 s23, v10, 2
            v_readlane_b32 s24, v10, 3
            v_readlane_b32 s25, v10, 4
            v_readlane_b32 s26, v10, 5
            s_nop 4
            v_writelane_b32 v9, s21, 8
            v_writelane_b32 v9, s22, 9
            v_writelane_b32 v9, s23, 10
            v_writelane_b32 v9, s24, 11
            v_writelane_b32 v9, s25, 12
            v_writelane_b32 v9, s26, 13
            """)
        p("""
        s_mov_b64 exec, 0xffff
        global_store_dword v2, v9, s[14:15]
        s_waitcnt vmcnt(0)
        """)
    p(f"""
    {E}:
    s_endpgm
    """)
    return kernel_text(name, p, vgpr=208, sgpr=96)

K3_LAUNCH = "grid=(224,1,1) block=(256,1,1) lds=114688"
if __name__ == "__main__":
    import sys
    s = f"; @launch kernel=k3_kernel {K3_LAUNCH}\n" + '.amdgcn_target "amdgcn-amd-amdhsa--gfx950"\n.text\n' + gen_k3(stamps=(len(sys.argv) > 2), exp=(sys.argv[2] if len(sys.argv) > 2 else ''))
    open(sys.argv[1], "w").write(s)
```

```python
import sys
from build import build
s = build()
lines = s.split("\n")
idx = [i for i, l in enumerate(lines) if l.startswith("; @launch")]
L = [lines[i] for i in idx]
pat = sys.argv[1]
new = [L[int(c)] for c in pat]
lines[idx[0]:idx[-1]+1] = new
open(sys.argv[2], "w").write("\n".join(lines))
```

```python
import sys
from build import build
from asmtool import *
from layout import *
mode = sys.argv[1]; out = sys.argv[2]
s = build()
lines = s.split("\n")
idx = [i for i, l in enumerate(lines) if l.startswith("; @launch")]
lines[idx[0]:idx[0]] = ["; @launch kernel=touch_kernel grid=(256,1,1) block=(256,1,1) lds=0"]
s = "\n".join(lines)
p = Prog()
p("""
s_cmp_ge_u32 s2, 256
s_cbranch_scc1 L_touch_end
s_load_dwordx16 s[4:19], s[0:1], 0
s_load_dwordx8 s[20:27], s[0:1], 80
s_load_dwordx2 s[28:29], s[0:1], 120
s_lshr_b32 s30, s2, 3
s_lshl_b32 s30, s30, 8
v_add_u32 v1, s30, v0
s_waitcnt lgkmcnt(0)
""")
if mode == "tlb":
    stride = 4096
    bufs = [("s[4:5]", X_BYTES), ("s[6:7]", P_BYTES), ("s[8:9]", P_BYTES), ("s[10:11]", P_BYTES), ("s[12:13]", P_BYTES), ("s[14:15]", P_BYTES), ("s[16:17]", P_BYTES),
            ("s[20:21]", W_BYTES), ("s[22:23]", W_BYTES), ("s[24:25]", W_BYTES), ("s[26:27]", X_BYTES), ("s[28:29]", HF_OFF + HF_BYTES)]
    p(f"v_lshlrev_b32 v2, 12, v1")
    for i, (b, n) in enumerate(bufs):
        p(f"v_cmp_gt_u32 vcc, {n}, v2" if False else f"v_mov_b32 v3, {n}\nv_cmp_lt_u32 vcc, v2, v3")
        p(f"s_and_saveexec_b64 s[40:41], vcc\ns_cbranch_execz L_t{i}\nglobal_load_dword v{10+i}, v2, {b}\nL_t{i}:\ns_mov_b64 exec, s[40:41]")
    p("s_waitcnt vmcnt(0)")
else:
    bufs = [("s[4:5]", X_BYTES), ("s[20:21]", W_BYTES), ("s[22:23]", W_BYTES), ("s[24:25]", W_BYTES)]
    p(f"v_lshlrev_b32 v2, 4, v1")
    k = 0
    for i, (b, n) in enumerate(bufs):
        for j in range((n + 131071) // 131072):
            p(f"v_add_u32 v4, {j*131072}, v2\nv_mov_b32 v3, {n}\nv_cmp_lt_u32 vcc, v4, v3\ns_and_saveexec_b64 s[40:41], vcc\ns_cbranch_execz L_d{k}\nglobal_load_dwordx4 v[{12+4*(k%8)}:{15+4*(k%8)}], v4, {b}\nL_d{k}:\ns_mov_b64 exec, s[40:41]")
            k += 1
    p("s_waitcnt vmcnt(0)")
p("L_touch_end:\ns_endpgm")
s += kernel_text("touch_kernel", p, vgpr=64, sgpr=64)
open(out, "w").write(s)
```

```python
from asmtool import *
from layout import *

def r4(b): return f"v[{b}:{b+3}]"
def r2(b): return f"v[{b}:{b+1}]"
def r16(b): return f"v[{b}:{b+15}]"

WREG = 53 * 528
KCS = 4160
KC = [0, 8 * KCS]
UL = [66560, 66560 + 4608]
XL = [75776, 75776 + 4096]
EX = 83968
TB = 4 * WREG
LDS_K1 = TB + 12288

def cmul(p, dst, x, y):
    p(f"v_pk_mul_f32 {r2(dst)}, {r2(x)}, {r2(y)} op_sel_hi:[1,0]")
    p(f"v_pk_fma_f32 {r2(dst)}, {r2(x)}, {r2(y)}, {r2(dst)} op_sel:[1,1,0] op_sel_hi:[0,1,1] neg_lo:[1,0,0]")

def cmul2(p, d, x, y):
    for k in range(2): p(f"v_pk_mul_f32 {r2(d(k))}, {r2(x(k))}, {r2(y(k))} op_sel_hi:[1,0]")
    for k in range(2): p(f"v_pk_fma_f32 {r2(d(k))}, {r2(x(k))}, {r2(y(k))}, {r2(d(k))} op_sel:[1,1,0] op_sel_hi:[0,1,1] neg_lo:[1,0,0]")

def gen_spare(p, name):
    p(f"""
    v_lshrrev_b32 v2, 3, v1
    s_lshl_b32 s34, s2, 6
    s_lshl_b32 s35, s33, 4
    s_add_u32 s34, s34, s35                   ; 64b + 16w
    v_add_u32 v2, s34, v2
    s_movk_i32 s35, 896
    v_mul_lo_u32 v3, v2, s35
    v_and_b32 v4, 7, v1
    v_lshl_add_u32 v3, v4, 4, v3
    v_add_u32 v5, {8*896}, v3                 ; pass 1
    ; column sum addressing: u = tid % 14, rg = tid / 14
    s_movk_i32 s35, 4682
    v_mul_u32_u24 v6, s35, v0
    v_lshrrev_b32 v6, 16, v6                  ; rg (0..18)
    v_mul_u32_u24 v7, 14, v6
    v_sub_u32 v7, v0, v7                      ; u
    s_and_b32 s36, s2, 15
    s_mul_i32 s36, s36, 224
    s_movk_i32 s35, {28*3584 // 16}
    v_mul_u32_u24 v8, s35, v6
    v_lshlrev_b32 v8, 4, v8                   ; rg*28*3584
    v_lshl_add_u32 v8, v7, 4, v8
    v_add_u32 v8, s36, v8
    s_waitcnt lgkmcnt(0)
    """)
    for ps in range(2):
        for i in range(7):
            p(f"global_load_dwordx4 {r4(32 + 28*ps + 4*i)}, v{3 + 2*ps}, s[4:5] offset:{128*i}")
    p("s_mov_b32 s44, 0x3f803f80")
    for ps in range(2):
        a, b = 10 + 2*ps, 11 + 2*ps
        p(f"s_waitcnt vmcnt({7*(1-ps)})")
        p(f"v_mov_b32 v{a}, 0\nv_mov_b32 v{b}, 0\nv_mov_b32 v14, 0\nv_mov_b32 v15, 0")
        for i in range(7):
            for j in range(4):
                v = 32 + 28*ps + 4*i + j
                if j & 1:
                    p(f"v_dot2_f32_bf16 v14, v{v}, s44, v14")
                    p(f"v_dot2_f32_bf16 v15, v{v}, v{v}, v15")
                else:
                    p(f"v_dot2_f32_bf16 v{a}, v{v}, s44, v{a}")
                    p(f"v_dot2_f32_bf16 v{b}, v{v}, v{v}, v{b}")
        p(f"v_add_f32 v{a}, v{a}, v14\nv_add_f32 v{b}, v{b}, v15")
    for dpp in ("quad_perm:[1,0,3,2]", "quad_perm:[2,3,0,1]", "row_half_mirror"):
        for r in (10, 11, 12, 13):
            p(f"v_add_f32_dpp v{r}, v{r}, v{r} {dpp} row_mask:0xf bank_mask:0xf")
    p(f"""
    s_mov_b32 s40, 0x3b124925                 ; 1/448
    s_mov_b32 s41, 0x3727c5ac                 ; 1e-5
    """)
    for ps in range(2):
        a, b = 10 + 2*ps, 11 + 2*ps
        t = 16 + ps
        p(f"""
        v_mul_f32 v{a}, s40, v{a}
        v_mul_f32 v{b}, s40, v{b}
        v_fma_f32 v{b}, -v{a}, v{a}, v{b}
        v_max_f32 v{b}, 0, v{b}
        v_cvt_pk_bf16_f32 v{t}, v{b}, v{b}
        v_lshlrev_b32 v{t}, 16, v{t}
        v_add_f32 v{t}, s41, v{t}
        v_cvt_pk_bf16_f32 v{t}, v{t}, v{t}
        v_lshlrev_b32 v{t}, 16, v{t}
        v_sqrt_f32 v{t}, v{t}
        v_cvt_pk_bf16_f32 v{t}, v{a}, v{t}
        """)
    p(f"""
    v_lshlrev_b32 v2, 2, v2
    v_add_u32 v2, {STATS_OFF}, v2
    s_mov_b32 s42, 0x01010101
    s_mov_b32 s43, 0x01010101
    s_mov_b64 s[46:47], exec
    s_mov_b64 exec, s[42:43]
    global_store_dword v2, v16, s[26:27] sc1
    global_store_dword v2, v17, s[26:27] offset:32 sc1
    s_mov_b64 exec, s[46:47]
    s_lshl_b32 s40, s2, 9
    s_add_u32 s40, s40, {ST2_OFF}
    v_lshl_add_u32 v4, v1, 3, s40
    v_mov_b32 v18, -1
    v_mov_b32 v19, -1
    s_cmp_lg_u32 s33, 0
    s_cbranch_scc1 L_{name}_nosent
    global_store_dwordx2 v4, v[18:19], s[26:27]
    v_lshlrev_b32 v21, 7, v1
    v_add_u32 v21, {CNT_OFF}, v21
    v_mov_b32 v20, 0
    s_mov_b64 exec, 0xffff
    s_cmp_lg_u32 s2, 0
    s_cbranch_scc1 L_{name}_nocnt
    global_store_dword v21, v20, s[26:27]
    L_{name}_nocnt:
    s_mov_b64 exec, s[46:47]
    L_{name}_nosent:
    s_waitcnt vmcnt(0)
    s_barrier
    s_cmp_lg_u32 s33, 0
    s_cbranch_scc1 L_{name}_nosig
    v_mov_b32 v4, 0
    v_mov_b32 v5, 1
    s_mov_b64 exec, 1
    global_atomic_add v4, v5, s[24:25] sc1
    s_mov_b64 exec, s[46:47]
    L_{name}_nosig:
    """)
    p(f"""
    s_cmp_lt_u32 s2, 16
    s_cselect_b32 s36, s28, s30
    s_cselect_b32 s37, s29, s31
    s_mov_b32 s38, {W_BYTES}
    s_mov_b32 s39, 0x20000
    s_mov_b32 s40, 0
    v_cmp_gt_u32 vcc, 224, v0
    s_and_saveexec_b64 s[42:43], vcc
    """)
    for i in range(28):
        p(f"buffer_load_dwordx4 {r4(96 + 4*i)}, v8, s[36:39], s40 offen")
        p(f"s_add_u32 s40, s40, 3584")
    p("s_mov_b64 exec, s[42:43]")
    for r in range(8): p(f"v_mov_b32 v{32+r}, 0")
    p("s_mov_b32 s44, 0xffff0000")
    for i in range(28):
        p(f"s_waitcnt vmcnt({27 - i})")
        for j in range(4):
            v = 96 + 4*i + j
            t = 40 + 2*(j & 1)
            p(f"v_lshlrev_b32 v{t}, 16, v{v}\nv_and_b32 v{t+1}, s44, v{v}\nv_pk_add_f32 {r2(32+2*j)}, {r2(32+2*j)}, {r2(t)}")
    p(f"""
    s_movk_i32 s35, 448
    v_mul_u32_u24 v9, s35, v6
    v_lshl_add_u32 v9, v7, 5, v9
    v_cmp_gt_u32 vcc, 224, v0
    s_and_saveexec_b64 s[42:43], vcc
    ds_write_b128 v9, v[32:35]
    ds_write_b128 v9, v[36:39] offset:16
    s_mov_b64 exec, s[42:43]
    s_waitcnt lgkmcnt(0)
    s_barrier
    v_cmp_gt_u32 vcc, 112, v0
    s_and_saveexec_b64 s[42:43], vcc
    s_cbranch_execz L_{name}_end
    v_lshlrev_b32 v9, 2, v0
    """)
    for g in range(16): p(f"ds_read_b32 v{32+g}, v9 offset:{448*g}")
    p("s_waitcnt lgkmcnt(0)")
    for g in range(1, 16): p(f"v_add_f32 v32, v32, v{32+g}")
    p(f"""
    s_mul_i32 s40, s2, 448
    s_add_u32 s40, s40, {CS_OFF}
    v_add_u32 v9, s40, v9
    global_store_dword v9, v32, s[26:27]
    s_waitcnt vmcnt(0)
    s_branch L_{name}_end
    """)

def gen_k1(name="k1_kernel", stamps=False, exp=""):
    p = Prog(); p.stamps_on = stamps
    if 'cyc' in exp: p.stamp_op = 's_memtime'
    if 'wl' in exp: p.stamp_tid = 192
    E = f"L_{name}_end"
    p(f"""
    s_cmp_ge_u32 s2, 256
    s_cbranch_scc1 {E}
    """)
    p.stamp()
    p(f"""
    s_load_dwordx16 s[4:19], s[0:1], 0
    s_load_dwordx2 s[20:21], s[0:1], 64
    s_load_dwordx4 s[24:27], s[0:1], 112
    s_load_dwordx4 s[28:31], s[0:1], 80
    v_lshrrev_b32 v2, 6, v0
    v_and_b32 v1, 63, v0
    v_readfirstlane_b32 s33, v2
    s_cmp_lt_u32 s2, 32
    s_cbranch_scc1 L_{name}_spare
    s_sub_u32 s3, s2, 32
    s_and_b32 s34, s3, 7
    s_mul_i32 s34, s34, 56
    s_lshr_b32 s35, s3, 3
    s_lshl_b32 s35, s35, 1
    s_add_u32 s34, s34, s35                   ; d0
    s_lshr_b32 s35, s33, 1                    ; c
    s_and_b32 s36, s33, 1                     ; hf
    s_add_u32 s37, s34, s35                   ; d
    s_lshl_b32 s38, s37, 9
    s_lshl_b32 s39, s36, 8
    s_add_u32 s38, s38, s39
    v_lshl_add_u32 v24, v1, 2, s38
    s_movk_i32 s39, 7168
    v_mul_u32_u24 v25, s39, v0
    s_lshl_b32 s38, s34, 1
    s_add_u32 s39, s38, 3584
    v_add_u32 v25, s39, v25
    s_waitcnt lgkmcnt(0)
    """)
    p.stamp()
    for i in range(6):
        p(f"global_load_dword v{10+i}, v24, s[{6+2*i}:{7+2*i}]")
    p(f"""
    s_load_dword s40, s[18:19], s38
    s_load_dword s41, s[20:21], s38
    """)
    for i in range(8):
        p(f"global_load_dword v{2+i}, v25, s[4:5] offset:{(i-4)*896}")
    p(f"""
    s_mul_i32 s42, s33, {WREG}
    v_lshl_add_u32 v26, v1, 3, s42
    v_and_b32 v27, 31, v1
    v_min_u32 v28, 20, v27
    s_movk_i32 s43, 528
    v_mul_u32_u24 v28, s43, v28
    v_mul_u32_u24 v27, s43, v27
    v_lshrrev_b32 v29, 5, v1
    v_lshlrev_b32 v29, 4, v29                 ; kk*16
    v_add3_u32 v28, v28, v29, s42
    s_add_u32 s43, s42, {21*528}
    v_add3_u32 v27, v27, v29, s43
    s_waitcnt lgkmcnt(0)
    s_cmp_eq_u32 s35, 0
    s_cselect_b32 s43, 16, 0
    s_lshl_b32 s40, s40, s43
    s_and_b32 s40, s40, 0xffff0000
    s_lshl_b32 s41, s41, s43
    s_and_b32 s41, s41, 0xffff0000
    s_mov_b32 s44, 0x3fb8aa3b                 ; log2(e)
    s_mov_b32 s45, 0x3e22f983                 ; 1/(2 pi)
    s_mov_b32 s46, 0xffff0000
    v_mov_b32 v30, s40
    v_mul_f32 v30, s44, v30
    v_exp_f32 v30, v30
    v_cvt_pk_bf16_f32 v30, v30, v30
    v_and_b32 v30, s46, v30
    """)
    def C(nm, k): return 32 + 18*k + {"E1": 0, "E8": 2, "E256": 4, "E2": 6, "E4": 8, "CB": 10, "X": 12, "Y": 14, "Z": 16}[nm]
    p("s_waitcnt vmcnt(8)")
    p.stamp()
    T = 76
    for k in range(2):
        un = (lambda d, s: f"v_lshlrev_b32 v{d}, 16, v{s}") if k == 0 else (lambda d, s: f"v_and_b32 v{d}, s46, v{s}")
        X, Y, Z, CB = C("X", k), C("Y", k), C("Z", k), C("CB", k)
        p(un(X, 10)); p(un(X+1, 11))
        p(un(Y, 12)); p(un(Y+1, 13))
        p(un(Z, 14)); p(un(Z+1, 15))
        p(f"v_pk_mul_f32 {r2(X)}, {r2(X)}, v[30:31] op_sel_hi:[1,0]")
        p(f"v_pk_mul_f32 {r2(Y)}, {r2(Y)}, v[30:31] op_sel_hi:[1,0]")
        cmul(p, CB, Z, Y)
        p(f"v_mul_f32 v{X}, s44, v{X}")
        p(f"v_mul_f32 v{X+1}, s45, v{X+1}")
    for (nm, L) in (("E1", 1.0), ("E8", 8.0), ("E256", 256.0)):
        for k in range(2):
            X = C("X", k); e = C(nm, k); t = T + 4*k
            if L == 1.0:
                p(f"v_exp_f32 v{t}, v{X}")
                p(f"v_fract_f32 v{t+1}, v{X+1}")
            else:
                p(f"v_mul_f32 v{t}, 0x{__import__('struct').unpack('<I', __import__('struct').pack('<f', L))[0]:08x}, v{X}")
                p(f"v_mul_f32 v{t+1}, 0x{__import__('struct').unpack('<I', __import__('struct').pack('<f', L))[0]:08x}, v{X+1}")
                p(f"v_exp_f32 v{t}, v{t}")
                p(f"v_fract_f32 v{t+1}, v{t+1}")
            p(f"v_cos_f32 v{e}, v{t+1}")
            p(f"v_sin_f32 v{e+1}, v{t+1}")
        for k in range(2):
            e = C(nm, k); t = T + 4*k
            p(f"v_pk_mul_f32 {r2(e)}, {r2(e)}, {r2(t)} op_sel_hi:[1,0]")
    wr = [0]
    def put(row, src, neg):
        wp = 68 + 2*(wr[0] % 4); wr[0] += 1
        for k in range(2):
            s = src(k)
            p(f"v_cvt_pk_bf16_f32 v{wp+k}, v{s}, {'-' if neg else ''}v{s+1}")
        p(f"ds_write_b64 v26, {r2(wp)} offset:{row*528}")
    f = lambda nm: (lambda k: C(nm, k))
    put(0, f("CB"), True)
    cur, nxt = "X", "Y"
    cmul2(p, f("X"), f("CB"), f("E1")); put(1, f("X"), True)
    for i in range(2, 8):
        cmul2(p, f(nxt), f(cur), f("E1")); put(i, f(nxt), True)
        cur, nxt = nxt, cur
    cmul2(p, f("E2"), f("E1"), f("E1"))
    cmul2(p, f("E4"), f("E2"), f("E2"))
    cmul2(p, f("X"), f("CB"), f("E256")); put(8, f("X"), True)
    cmul2(p, f("Z"), f("X"), f("E2")); put(16, f("Z"), True)
    cmul2(p, f("Z"), f("X"), f("E4")); put(17, f("Z"), True)
    cmul2(p, f("Y"), f("Z"), f("E2")); put(18, f("Y"), True)
    cmul2(p, f("Y"), f("X"), f("E256")); put(9, f("Y"), True)
    cmul2(p, f("Z"), f("Y"), f("E4")); put(19, f("Z"), True)
    cmul2(p, f("X"), f("Y"), f("E256")); put(10, f("X"), True)
    cmul2(p, f("Z"), f("X"), f("E4")); put(20, f("Z"), True)
    cur, nxt = "X", "Y"
    for i in range(11, 16):
        cmul2(p, f(nxt), f(cur), f("E256")); put(i, f(nxt), True)
        cur, nxt = nxt, cur
    for k in range(2):
        p(f"v_mov_b32 v{C('X', k)}, 1.0\nv_mov_b32 v{C('X', k)+1}, 0")
    put(21, f("X"), False)
    put(22, f("E8"), False)
    cmul2(p, f("X"), f("E8"), f("E8")); put(23, f("X"), False)
    cur, nxt = "X", "Y"
    for j in range(3, 32):
        cmul2(p, f(nxt), f(cur), f("E8")); put(21 + j, f(nxt), False)
        cur, nxt = nxt, cur
    p.stamp()
    p(f"""
    v_mov_b32 v31, 0
    global_load_dword v24, v31, s[24:25] sc1
    s_waitcnt lgkmcnt(0)
    """)
    DEPTH = 6
    def kr(ks):
        b = 96 + 8*(ks % 8)
        p(f"ds_read_b128 {r4(b)}, v28 offset:{32*ks}")
        p(f"ds_read_b128 {r4(b+4)}, v27 offset:{32*ks}")
    for ks in range(DEPTH): kr(ks)
    for ks in range(16):
        outstanding_after = 2 * (min(ks + DEPTH, 16) - (ks + 1))
        p(f"s_waitcnt lgkmcnt({outstanding_after})")
        b = 96 + 8*(ks % 8)
        p(f"v_mfma_f32_32x32x16_bf16 v[160:175], {r4(b)}, {r4(b+4)}, " + ("0" if ks == 0 else "v[160:175]"))
        if ks + DEPTH < 16: kr(ks + DEPTH)
    p(f"""
    v_lshrrev_b32 v29, 5, v1
    v_lshlrev_b32 v29, 9, v29                 ; half*4*128
    v_and_b32 v27, 31, v1
    v_lshl_add_u32 v29, v27, 2, v29
    s_mul_i32 s42, s33, 3072
    s_add_u32 s42, s42, {TB}
    v_add_u32 v29, s42, v29
    """)
    for r in range(12):
        p(f"ds_write_b32 v29, v{160+r} offset:{((r & 3) + 8*(r >> 2))*128}")
    p.stamp()
    p(f"""
    s_mov_b32 s47, 0
    s_waitcnt vmcnt(0)
    L_{name}_poll:
    v_readfirstlane_b32 s48, v24
    s_cmp_ge_u32 s48, 32
    s_cbranch_scc1 L_{name}_go
    s_add_u32 s47, s47, 1
    s_cmp_ge_u32 s47, 0x40000
    s_cbranch_scc1 L_{name}_go
    s_sleep 4
    global_load_dword v24, v31, s[24:25] sc1
    s_waitcnt vmcnt(0)
    s_branch L_{name}_poll
    L_{name}_go:
    v_lshlrev_b32 v25, 5, v0
    v_add_u32 v25, {STATS_OFF}, v25
    global_load_dwordx4 v[16:19], v25, s[26:27] sc1
    global_load_dwordx4 v[20:23], v25, s[26:27] offset:16 sc1
    s_waitcnt lgkmcnt(0)
    s_barrier
    """)
    p.stamp()
    p(f"""
    s_mul_i32 s42, s35, 6144
    s_add_u32 s42, s42, {TB}
    v_lshl_add_u32 v26, v1, 2, s42
    s_cmp_lg_u32 s36, 0
    s_cbranch_scc1 L_{name}_g1
    """)
    seg1 = [256, 256, 512, 544, 544, 544, 576, 257]
    p("v_cmp_gt_u32 vcc, 32, v1")
    for e in range(8):
        p(f"v_mov_b32 v{40+e}, {(seg1[e]-32)*4}")
        p(f"v_mov_b32 v48, {32*e*4}")
        p(f"v_cndmask_b32 v{40+e}, v{40+e}, v48, vcc")
        p(f"v_add_u32 v{40+e}, v{40+e}, v26")
    for e in range(8):
        p(f"ds_read2st64_b32 {r2(48+2*e)}, v{40+e} offset0:0 offset1:12")
    p(f"v_add_u32 v40, {288*4}, v26\nv_add_u32 v41, {608*4}, v26\nv_add_u32 v42, {289*4}, v26")
    for i in range(3):
        p(f"ds_read2st64_b32 {r2(64+2*i)}, v{40+i} offset0:0 offset1:12")
    p("s_waitcnt lgkmcnt(0)")
    for e in range(8): p(f"v_add_f32 v{48+2*e}, v{48+2*e}, v{49+2*e}")
    for i in range(3): p(f"v_add_f32 v{64+2*i}, v{64+2*i}, v{65+2*i}")
    for j in range(4):
        p(f"v_cvt_pk_bf16_f32 v{96+j}, v{48+2*(7-2*j)}, v{48+2*(6-2*j)}")
    p(f"""
    v_cvt_pk_bf16_f32 v100, v68, v68
    v_cvt_pk_bf16_f32 v101, v66, v66          ; (K5,K4) = (Q,Q)
    v_cvt_pk_bf16_f32 v102, v66, v64          ; (K3,K2) = (Q,G)
    v_cvt_pk_bf16_f32 v103, v64, v64          ; (K1,K0) = (G,G)
    s_branch L_{name}_g2
    L_{name}_g1:
    """)
    for it in range(2):
        p(f"v_add_u32 v{40+it}, {(352+64*it)*4}, v26")
    for it in range(2):
        p(f"ds_read2st64_b32 {r2(48+4*it)}, v{40+it} offset0:0 offset1:12")
        p(f"v_add_u32 v{42+it}, 4, v{40+it}")
        p(f"ds_read2st64_b32 {r2(50+4*it)}, v{42+it} offset0:0 offset1:12")
    p(f"""
    v_and_b32 v44, 1, v1
    v_cmp_eq_u32 vcc, 1, v44
    s_movk_i32 s43, {KCS}
    v_mul_u32_u24 v45, s43, v1
    s_mul_i32 s42, s35, {KC[1]}
    s_add_u32 s42, s42, {256*16}
    v_add_u32 v45, s42, v45
    v_mov_b32 v60, 0
    v_mov_b32 v61, 0
    v_mov_b32 v62, 0
    v_mov_b32 v63, 0
    s_mov_b64 s[50:51], exec
    s_mov_b64 exec, 0xff
    ds_write_b128 v45, v[60:63]
    s_mov_b64 exec, s[50:51]
    s_waitcnt lgkmcnt(0)
    """)
    for it in range(2):
        G, Gn = 48 + 4*it, 50 + 4*it
        p(f"""
        v_add_f32 v{G}, v{G}, v{G+1}
        v_add_f32 v{Gn}, v{Gn}, v{Gn+1}
        v_cndmask_b32 v46, v{G}, v{Gn}, vcc
        v_cvt_pk_bf16_f32 v{96+4*it}, v{Gn}, v{Gn}       ; (K7,K6)
        v_cvt_pk_bf16_f32 v{97+4*it}, v{Gn}, v46         ; (K5,K4)
        v_cvt_pk_bf16_f32 v{98+4*it}, v{G}, v{G}         ; (K3,K2)
        v_cvt_pk_bf16_f32 v{99+4*it}, v{G}, v{G}         ; (K1,K0)
        """)
    p(f"""
    L_{name}_g2:
    s_mul_i32 s42, s35, {KC[1]}
    s_lshl_b32 s43, s36, 11                   ; 128*hf*16
    s_sub_u32 s42, s42, s43
    s_add_u32 s42, s42, {255*16}
    v_lshlrev_b32 v27, 4, v1
    v_sub_u32 v27, s42, v27                   ; it = 0
    v_subrev_u32 v28, 1024, v27               ; it = 1
    ds_write_b128 v27, v[96:99]
    ds_write_b128 v28, v[100:103]
    s_waitcnt lgkmcnt(0)
    s_barrier
    ds_read_b128 v[104:107], v27 offset:16
    ds_read_b128 v[108:111], v28 offset:16
    """)
    for it in range(2):
        own = 96 + 4*it; nb = 104 + 4*it
        adr = 27 + it
        a = [own, own+1, own+2, own+3, nb, nb+1, nb+2, nb+3]
        A = 112 + 32*it; Bb = 120 + 32*it; Ao = 129 + 32*it; Bo = 137 + 32*it
        if it == 0: p("s_waitcnt lgkmcnt(1)")
        else: p("s_waitcnt lgkmcnt(0)")
        for i in range(8): p(f"v_mov_b32 v{A+i}, v{a[i]}")
        for i in range(6): p(f"v_alignbit_b32 v{Bb+i}, v{a[i+1]}, v{a[i]}, 16")
        for i in range(1, 7): p(f"v_mov_b32 v{Ao+i}, v{a[i]}")
        for i in range(1, 7): p(f"v_alignbit_b32 v{Bo+i}, v{a[i+1]}, v{a[i]}, 16")
        src = {1: Bb, 2: Ao+1, 3: Bo+1, 4: A+2, 5: Bb+2, 6: Ao+3, 7: Bo+3}
        for cs in range(1, 8):
            p(f"ds_write_b128 v{adr}, {r4(src[cs])} offset:{cs*KCS}")
    p.stamp()
    p("s_waitcnt vmcnt(0)")
    for i in range(8):
        S = 16 + i; X = 2 + i
        u0 = 48 + i; u1 = 56 + i
        p(f"""
        v_lshlrev_b32 v32, 16, v{S}               ; mean
        v_and_b32 v33, s46, v{S}                  ; std
        v_rcp_f32 v33, v33
        v_lshlrev_b32 v34, 16, v{X}
        v_and_b32 v35, s46, v{X}
        v_sub_f32 v34, v34, v32
        v_sub_f32 v35, v35, v32
        v_cvt_pk_bf16_f32 v34, v34, v35
        v_lshlrev_b32 v35, 16, v34
        v_and_b32 v34, s46, v34
        v_mul_f32 v{u0}, v35, v33
        v_mul_f32 v{u1}, v34, v33
        """)
    p("s_mov_b32 s48, 0x05040100\ns_mov_b32 s49, 0x07060302")
    for j in range(4):
        p(f"v_cvt_pk_bf16_f32 v{64+j}, v{48+2*j}, v{49+2*j}")
        p(f"v_cvt_pk_bf16_f32 v{68+j}, v{56+2*j}, v{57+2*j}")
        p(f"v_perm_b32 v{72+j}, v{3+2*j}, v{2+2*j}, s48")
        p(f"v_perm_b32 v{76+j}, v{3+2*j}, v{2+2*j}, s49")
    p(f"""
    v_lshlrev_b32 v32, 4, v0                  ; tid*16
    v_add_u32 v33, {UL[0] + 512}, v32
    ds_write_b128 v33, v[64:67]
    ds_write_b128 v33, v[68:71] offset:4608
    ds_write_b128 v33, v[72:75] offset:{XL[0] - UL[0] - 512}
    ds_write_b128 v33, v[76:79] offset:{XL[1] - UL[0] - 512}
    s_cmp_lg_u32 s33, 0
    s_cbranch_scc1 L_{name}_nopad
    v_mov_b32 v60, 0
    v_mov_b32 v61, 0
    v_mov_b32 v62, 0
    v_mov_b32 v63, 0
    v_lshrrev_b32 v34, 5, v1
    s_movk_i32 s43, 4608
    v_mul_u32_u24 v34, s43, v34
    v_and_b32 v35, 31, v1
    v_lshl_add_u32 v34, v35, 4, v34
    v_add_u32 v34, {UL[0]}, v34
    ds_write_b128 v34, v[60:63]
    L_{name}_nopad:
    v_and_b32 v36, 7, v1                      ; rr
    v_bfe_u32 v37, v1, 3, 1                   ; qq
    v_lshrrev_b32 v38, 4, v1                  ; kg
    v_sub_u32 v36, 7, v36
    s_movk_i32 s43, {KCS}
    v_mul_u32_u24 v36, s43, v36
    v_sub_u32 v39, v38, v37
    v_lshl_add_u32 v36, v39, 4, v36
    s_mul_i32 s42, s35, {KC[1]}
    s_add_u32 s42, s42, {16*253 - 3584}
    s_lshl_b32 s43, s36, 8                    ; 64 * 4 hf
    s_sub_u32 s42, s42, s43
    v_add_u32 v26, s42, v36
    v_and_b32 v36, 15, v1                     ; cc
    v_lshlrev_b32 v36, 5, v36
    v_lshl_add_u32 v36, v38, 4, v36
    s_mul_i32 s42, s35, 4608
    s_add_u32 s42, s42, {UL[0] + 480}
    s_sub_u32 s42, s42, s43
    v_add_u32 v27, s42, v36
    s_waitcnt lgkmcnt(0)
    s_barrier
    """)
    p.stamp()
    def FA(s, i): return 64 + 64*s + 4*i
    def FB(s, i): return 96 + 64*s + 4*i
    def ACC(q): return 192 + 4*q
    def frag_reads(s, areg, breg):
        o = []
        for i in range(8):
            o.append(f"ds_read_b128 {r4(FA(s, i))}, v{areg} offset:{(7-i)*512}")
            o.append(f"ds_read_b128 {r4(FB(s, i))}, v{breg} offset:{i*512}")
        return o
    pairs = []
    for s in range(8):
        for j in range(s + 1):
            if s + j <= 7:
                pairs.append((s, j))
                if j < s: pairs.append((j, s))
    assert len(pairs) == 36
    for x in frag_reads(0, 26, 27): p(x)
    first = [True]*8
    for rho in range(4):
        s = rho & 1
        nxt = []
        if rho < 3:
            p(f"v_subrev_u32 v{28+2*(rho&1)}, {64*(rho+1)}, v26")
            p(f"v_subrev_u32 v{29+2*(rho&1)}, {64*(rho+1)}, v27")
            nxt = frag_reads(1 - s, 28 + 2*(rho & 1), 29 + 2*(rho & 1))
        ni = 0
        shell_done = -1
        pf_start = 16 if rho == 0 else 1
        for n, (i, j) in enumerate(pairs):
            sh = max(i, j)
            if rho == 0:
                if sh > shell_done and sh <= 4:
                    p(f"s_waitcnt lgkmcnt({14 - 2*sh if sh < 4 else 0})"); shell_done = sh
            elif n == 0:
                p("s_waitcnt lgkmcnt(0)")
            q = i + j
            c_in = "0" if first[q] else r4(ACC(q))
            first[q] = False
            p(f"v_mfma_f32_16x16x32_bf16 {r4(ACC(q))}, {r4(FA(s, i))}, {r4(FB(s, j))}, {c_in}")
            if n >= pf_start and ni < len(nxt): p(nxt[ni]); ni += 1
        assert ni == len(nxt)
    p.stamp()
    p(f"""
    s_lshl_b32 s42, s33, 12
    s_add_u32 s42, s42, {EX}
    v_lshl_add_u32 v28, v1, 4, s42
    s_xor_b32 s43, s33, 1
    s_lshl_b32 s43, s43, 12
    s_add_u32 s43, s43, {EX}
    v_lshl_add_u32 v29, v1, 4, s43
    v_and_b32 v30, 15, v1
    v_lshlrev_b32 v30, 5, v30
    v_lshrrev_b32 v31, 4, v1
    v_lshl_add_u32 v30, v31, 3, v30
    s_lshl_b32 s44, s36, 11                   ; 1024 hf * 2 B
    v_add_u32 v30, s44, v30
    s_mul_i32 s42, s35, 4608
    s_add_u32 s42, s42, {UL[0] + 512}
    v_add_u32 v32, s42, v30                   ; u address
    s_lshl_b32 s42, s35, 12
    v_add_u32 v34, s42, v30
    s_add_u32 s42, s42, {XL[0]}
    v_add_u32 v33, s42, v30                   ; x address
    s_lshl_b32 s42, s37, 12
    s_add_u32 s42, s42, {HT_OFF}
    v_add_u32 v35, s42, v30
    s_cmp_lg_u32 s36, 0
    s_cbranch_scc1 L_{name}_x1
    """)
    for j in range(4): p(f"ds_write_b128 v28, {r4(ACC(4+j))} offset:{1024*j}")
    for r in range(16): p(f"v_mov_b32 v{64+r}, v{ACC(0)+r}")
    p(f"s_branch L_{name}_x2\nL_{name}_x1:")
    for j in range(4): p(f"ds_write_b128 v28, {r4(ACC(j))} offset:{1024*j}")
    for r in range(16): p(f"v_mov_b32 v{64+r}, v{ACC(4)+r}")
    p(f"""
    L_{name}_x2:
    s_waitcnt lgkmcnt(0)
    s_barrier
    """)
    for j in range(4): p(f"ds_read_b128 {r4(80+4*j)}, v29 offset:{1024*j}")
    for j in range(4):
        p(f"ds_read_b64 {r2(96+2*j)}, v32 offset:{512*j}")
        p(f"ds_read_b64 {r2(104+2*j)}, v33 offset:{512*j}")
    p("v_mov_b32 v36, s41")
    p("s_waitcnt lgkmcnt(8)")
    for q in range(8): p(f"v_pk_add_f32 {r2(64+2*q)}, {r2(64+2*q)}, {r2(80+2*q)}")
    p("s_waitcnt lgkmcnt(0)")
    for j in range(4):
        u = 96 + 2*j; x = 104 + 2*j; y = 64 + 4*j
        p(f"""
        v_lshlrev_b32 v40, 16, v{u}
        v_and_b32 v41, s46, v{u}
        v_lshlrev_b32 v42, 16, v{u+1}
        v_and_b32 v43, s46, v{u+1}
        v_lshlrev_b32 v44, 16, v{x}
        v_and_b32 v45, s46, v{x}
        v_lshlrev_b32 v46, 16, v{x+1}
        v_and_b32 v47, s46, v{x+1}
        v_pk_fma_f32 {r2(y)}, v[40:41], v[36:37], {r2(y)} op_sel_hi:[1,0,1]
        v_pk_fma_f32 {r2(y+2)}, v[42:43], v[36:37], {r2(y+2)} op_sel_hi:[1,0,1]
        v_pk_add_f32 {r2(y)}, {r2(y)}, v[44:45]
        v_pk_add_f32 {r2(y+2)}, {r2(y+2)}, v[46:47]
        v_cvt_pk_bf16_f32 v{48+2*j}, v{y}, v{y+1}
        v_cvt_pk_bf16_f32 v{49+2*j}, v{y+2}, v{y+3}
        global_store_dwordx2 v35, {r2(48+2*j)}, s[26:27] offset:{512*j}
        """)
    p.stamp()
    p.stamp_flush(STAMP_OFF, ws="s[26:27]")
    p(f"s_branch {E}")
    p(f"L_{name}_spare:")
    gen_spare(p, name)
    p(f"""
    {E}:
    s_endpgm
    """)
    return kernel_text(name, p, vgpr=224, sgpr=96)

K1_LAUNCH = f"grid=(256,1,1) block=(256,1,1) lds={LDS_K1}"
if __name__ == "__main__":
    import sys
    s = f"; @launch kernel=k1_kernel {K1_LAUNCH}\n" + '.amdgcn_target "amdgcn-amd-amdhsa--gfx950"\n.text\n' + gen_k1(stamps=(len(sys.argv) > 2), exp=(sys.argv[2] if len(sys.argv) > 2 else ''))
    open(sys.argv[1], "w").write(s)
```

```python
from asmtool import *
from layout import *
from k2 import std_chain, gen_k2_stats, r4, r2

class VM:
    def __init__(self, p): self.p = p; self.ops = []
    def issue(self, tag, n=1): self.ops += [tag] * n
    def count_after(self, tags):
        last = max(i for i, t in enumerate(self.ops) if t in tags)
        return len(self.ops) - 1 - last
    def wait(self, *tags, extra=""):
        n = self.count_after(set(tags))
        assert n <= 63
        self.p(f"s_waitcnt vmcnt({n}){extra}")

def gen_k23(name="k23_kernel", stamps=False, exp=""):
    p = Prog(); p.stamps_on = stamps
    if 'cyc' in exp: p.stamp_op = 's_memtime'
    if 'wl' in exp: p.stamp_tid = 448
    NSLOT = 6; SLOT = 24576; EBASE = NSLOT * SLOT
    def ACC(k, mt, nt): return 96 + (0 if k == "g" else 32) + 16*mt + 4*nt
    def SET(s, nm): return 32 + 32*s + {"G0": 0, "G1": 4, "U0": 8, "U1": 12, "X0": 16, "X1": 20, "X2": 24, "X3": 28}[nm]
    E = f"L_{name}_end"
    p(f"""
    s_cmp_ge_u32 s2, 256
    s_cbranch_scc1 {E}
    """)
    p.stamp()
    p(f"""
    s_load_dwordx4 s[8:11], s[0:1], 80
    s_load_dwordx2 s[12:13], s[0:1], 120      ; ws
    s_load_dwordx4 s[4:7], s[0:1], 96
    v_lshrrev_b32 v2, 6, v0
    v_and_b32 v1, 63, v0                      ; lane
    v_readfirstlane_b32 s33, v2
    s_cmp_lt_u32 s2, 32
    s_cbranch_scc1 L_{name}_stats
    s_sub_u32 s3, s2, 32
    s_and_b32 s34, s3, 7                      ; xcd
    s_lshr_b32 s35, s3, 3                     ; j
    s_and_b32 s36, s34, 3
    s_lshl_b32 s36, s36, 2
    s_and_b32 s37, s35, 3
    s_add_u32 s36, s36, s37                   ; rt
    s_lshr_b32 s59, s34, 2                    ; ch
    s_mul_i32 s37, s59, 7
    s_lshr_b32 s60, s35, 2                    ; dc (0..6)
    s_add_u32 s37, s37, s60                   ; ct
    s_and_b32 s38, s33, 3
    s_lshr_b32 s39, s33, 2                    ; th
    v_lshrrev_b32 v4, 4, v1                   ; l>>4
    s_lshr_b32 s40, s33, 1
    s_and_b32 s40, s40, 1
    s_lshl_b32 s40, s40, 2
    v_or_b32 v5, s40, v4
    v_lshlrev_b32 v5, 1, v5
    v_and_b32 v6, 15, v1
    v_xor_b32 v5, v5, v6                      ; usrc
    v_lshlrev_b32 v5, 4, v5                   ; usrc*16
    s_lshl_b32 s40, s33, 2
    v_add_u32 v4, s40, v4                     ; row_local
    v_lshlrev_b32 v2, 12, v4                  ; *4096
    s_lshl_b32 s40, s36, 8
    v_add3_u32 v2, v2, v5, s40                ; vX
    s_movk_i32 s41, 3584
    v_mul_lo_u32 v3, v4, s41
    s_lshl_b32 s40, s37, 8
    v_add3_u32 v3, v3, v5, s40                ; vW
    s_lshl_b32 s42, s33, 10
    s_mov_b32 s50, {32*4096}
    s_mov_b32 s51, {32*3584}
    s_mov_b32 s18, {HT_BYTES}
    s_mov_b32 s19, 0x20000
    s_mov_b32 s22, {W_BYTES}
    s_mov_b32 s23, 0x20000
    s_mov_b32 s26, {W_BYTES}
    s_mov_b32 s27, 0x20000
    v_lshrrev_b32 v10, 4, v1
    v_lshlrev_b32 v10, 4, v10
    s_lshl_b32 s40, s37, 9
    s_lshl_b32 s41, s38, 7
    s_add_u32 s40, s40, s41
    s_add_u32 s40, s40, {CS_OFF}
    v_add_u32 v10, s40, v10
    v_add_u32 v11, {1792*4}, v10
    s_waitcnt lgkmcnt(0)
    """)
    p.stamp()
    p(f"""
    s_add_u32 s16, s12, {HT_OFF}
    s_addc_u32 s17, s13, 0
    s_mov_b32 s20, s8
    s_mov_b32 s21, s9
    s_mov_b32 s24, s10
    s_mov_b32 s25, s11
    global_load_dwordx4 v[160:163], v10, s[12:13]
    global_load_dwordx4 v[164:167], v10, s[12:13] offset:64
    global_load_dwordx4 v[168:171], v11, s[12:13]
    global_load_dwordx4 v[172:175], v11, s[12:13] offset:64
    """)
    def dma_parts(base):
        return [
            f"s_mov_b32 m0, {base}\ns_add_u32 s45, {base}, 8192\nbuffer_load_dwordx4 v2, s[16:19], 0 offen lds",
            f"s_mov_b32 m0, s45\ns_add_u32 s45, {base}, 16384\nbuffer_load_dwordx4 v3, s[20:23], 0 offen lds\nv_add_u32 v2, s50, v2",
            f"s_mov_b32 m0, s45\ns_nop 0\nbuffer_load_dwordx4 v3, s[24:27], 0 offen lds\nv_add_u32 v3, s51, v3",
        ]
    PRE = NSLOT - 1
    for c in range(PRE):
        p(f"s_add_u32 s44, s42, {c*SLOT}")
        for d in dma_parts("s44"): p(d)
    p(f"""
    s_add_u32 s28, s12, {HF_OFF}
    s_addc_u32 s29, s13, 0
    s_mov_b32 s30, {HF_BYTES}
    s_mov_b32 s31, 0x20000
    s_mov_b32 s8, s4
    s_mov_b32 s9, s5
    s_mov_b32 s10, {W_BYTES}
    s_mov_b32 s11, 0x20000
    s_mov_b32 s4, s6
    s_mov_b32 s5, s7
    s_mov_b32 s6, {X_BYTES}
    s_mov_b32 s7, 0x20000
    v_lshrrev_b32 v10, 3, v1
    s_lshl_b32 s40, s38, 3
    v_add_u32 v10, s40, v10
    s_movk_i32 s41, 896
    v_mul_lo_u32 v10, v10, s41
    v_lshrrev_b32 v11, 4, v1
    v_lshlrev_b32 v11, 1, v11
    v_and_b32 v12, 7, v1
    v_xor_b32 v11, v11, v12
    v_lshlrev_b32 v11, 4, v11
    s_lshl_b32 s40, s60, 7
    v_add3_u32 v10, v10, v11, s40             ; vWd
    v_lshrrev_b32 v14, 4, v1                  ; kg
    v_bfe_u32 v11, v1, 2, 2                   ; rr
    v_lshl_add_u32 v12, v14, 3, v11
    v_lshlrev_b32 v12, 8, v12                 ; (8kg+rr)*256
    v_and_b32 v13, 3, v1
    v_lshl_add_u32 v12, v13, 3, v12           ; + 8cc
    v_and_b32 v14, 1, v14
    v_lshl_or_b32 v11, v14, 2, v11            ; f
    """)
    for i in range(2):
        p(f"""
        s_lshl_b32 s40, s38, 1
        s_add_u32 s40, s40, {i}
        v_xor_b32 v13, s40, v11
        v_lshl_add_u32 v{4+i}, v13, 5, v12
        """)
    for i in range(4):
        p(f"""
        s_lshl_b32 s40, s39, 2
        s_add_u32 s40, s40, {i}
        v_xor_b32 v13, s40, v11
        v_lshl_add_u32 v{6+i}, v13, 5, v12
        """)
    for i in range(6): p(f"v_add_u32 v{20+i}, {SLOT}, v{4+i}")
    for r in range(96, 160): p(f"v_mov_b32 v{r}, 0")
    def rd(s, nm, h, abase=None):
        if abase is None: abase = 20 + 6*(1 - s)
        if nm[0] == "G": areg, sub = abase + int(nm[1]), 8192
        elif nm[0] == "U": areg, sub = abase + int(nm[1]), 16384
        else: areg, sub = abase + 2 + int(nm[1]), 0
        b = SET(s, nm) + 2*h
        return f"ds_read_b64_tr_b16 {r2(b)}, v{areg} offset:{sub + 1024*h}"
    def mf(s, k, mt, nt):
        acc = ACC(k, mt, nt)
        a = SET(s, ("G" if k == "g" else "U") + str(mt)); b = SET(s, f"X{nt}")
        return f"v_mfma_f32_16x16x32_bf16 {r4(acc)}, {r4(a)}, {r4(b)}, {r4(acc)}"
    RD_ORDER = ["G0", "X0", "U0", "X1", "G1", "U1", "X2", "X3"]
    MF_ORDER = [("g",0,0), ("u",0,0), ("g",0,1), ("u",0,1), ("g",1,0), ("g",1,1), ("u",1,0), ("u",1,1),
                ("g",0,2), ("u",0,2), ("g",1,2), ("u",1,2), ("g",0,3), ("u",0,3), ("g",1,3), ("u",1,3)]
    need_rd = {"G0": 1, "X0": 3, "U0": 5, "X1": 7, "G1": 9, "U1": 11, "X2": 13, "X3": 15}
    p(f"""
    s_waitcnt vmcnt({3*(PRE-1)})
    s_barrier
    """)
    p.stamp()
    for nm in RD_ORDER:
        for h in range(2): p(rd(0, nm, h, abase=4))
    p(f"""
    s_mov_b32 s48, 0                          ; iteration
    s_mov_b32 s53, {2*SLOT}
    s_add_u32 s54, s42, {PRE*SLOT}
    L_{name}_loop:
    """)
    def chunk(s, vmw, dp, last=False, static_c=None, hooks={}):
        reads = [] if last else [rd(1 - s, nm, h) for nm in RD_ORDER for h in range(2)]
        done = -1
        other = 20 + 6*(1 - s)
        for i in range(16):
            k, mt, nt = MF_ORDER[i]
            need = max(need_rd[("G" if k == "g" else "U") + str(mt)], need_rd[f"X{nt}"])
            if need > done:
                allowed = (15 - need) + (0 if last else i)
                p(f"s_waitcnt lgkmcnt({min(allowed, 15)})")
                done = need
            p(mf(s, k, mt, nt))
            if i == 0:
                vmw(); p("s_barrier")
            if not last: p(reads[i])
            if i in (2, 5, 8): dp((i - 2)//3)
            if i in hooks: hooks[i]()
            if 10 <= i <= 15 and not last:
                if static_c is None: p(f"v_add_u32 v{other + i - 10}, s53, v{4 + i - 10}")
                elif static_c + 2 <= 13: p(f"v_add_u32 v{other + i - 10}, {((static_c + 2) % NSLOT)*SLOT}, v{4 + i - 10}")
            if i == 9 and static_c is None:
                p(f"""
                s_add_u32 s54, s54, {SLOT}
                s_sub_u32 s55, s54, s42
                s_cmp_eq_u32 s55, {NSLOT*SLOT}
                s_cselect_b32 s54, s42, s54
                """)
        if static_c is None:
            p(f"""
            s_add_u32 s53, s53, {SLOT}
            s_cmp_eq_u32 s53, {NSLOT*SLOT}
            s_cselect_b32 s53, 0, s53
            """)
    loop_dp = dma_parts("s54")
    for s in range(2):
        chunk(s, lambda: p(f"s_waitcnt vmcnt({3*(PRE-2)})"), lambda j: p(loop_dp[j]))
    p(f"""
    s_add_u32 s48, s48, 1
    s_cmp_lt_u32 s48, 4
    s_cbranch_scc1 L_{name}_loop
    """)
    vm = VM(p)
    for c in range(13): vm.issue(f"c{c}", 3)
    def kstep_soff(s): return s * 32 * 896
    def wd_piece(lds_base, s_th0, s_th1, tag):
        a, b = kstep_soff(s_th0), kstep_soff(s_th1)
        p(f"""
        s_mul_i32 s46, s39, {b - a}
        s_add_u32 m0, s42, {lds_base}
        s_add_u32 s46, s46, {a}
        buffer_load_dwordx4 v10, s[8:11], s46 offen lds
        """)
        vm.issue(tag)
    stage = [(kq, n) for kq in range(4) for n in range(4)]
    def stage_ks(i): return 14*stage[i][0] + stage[i][1]
    def final_ks(L): return 14*(L // 10) + 4 + (L % 10)
    for j in range(2):
        wd_piece(EBASE + 8192*j, stage_ks(2*j), stage_ks(2*j + 1), "E")
    def tail_dp(c):
        if c == 8:
            parts = dma_parts("s44")
            def f(j):
                if j == 0: p(f"s_add_u32 s44, s42, {(13 % NSLOT)*SLOT}")
                p(parts[j]); vm.issue("c13")
            return f
        slot = (c - 1) % NSLOT
        def f(j):
            b0 = 2*j
            if c == 9:   ks = (stage_ks(4 + b0), stage_ks(4 + b0 + 1))
            elif c == 10: ks = (stage_ks(10 + b0), stage_ks(10 + b0 + 1))
            else:        ks = (final_ks(6*slot + b0), final_ks(6*slot + b0 + 1))
            wd_piece(slot*SLOT + 8192*j, ks[0], ks[1], f"w{c}")
        return f
    def stats_addr():
        p(f"""
        v_and_b32 v11, 15, v1
        s_lshl_b32 s40, s36, 7
        s_lshl_b32 s41, s39, 6
        s_add_u32 s40, s40, s41
        v_add_u32 v11, s40, v11
        v_lshlrev_b32 v11, 3, v11
        v_add_u32 v11, {ST2_OFF}, v11
        """)
    def stats_loads():
        for nt in range(4):
            p(f"global_load_dwordx2 {r2(176+2*nt)}, v11, s[12:13] offset:{128*nt} sc1")
        vm.issue("st", 4)
    for c in range(8, 14):
        last = (c == 13)
        vmw = (lambda c=c: vm.wait(f"c{c+1}")) if c < 13 else (lambda: None)
        hooks = {}
        if c == 11: hooks = {11: stats_addr}
        if c == 12: hooks = {11: stats_loads}
        chunk(c & 1, vmw, tail_dp(c), last=last, static_c=c, hooks=hooks)
    p.stamp()
    vm.wait("st")
    p(f"""
    s_mov_b32 s58, 0
    L_{name}_poll:
    v_max_u32 v184, v176, v177
    v_max3_u32 v184, v184, v178, v179
    v_max3_u32 v184, v184, v180, v181
    v_max3_u32 v184, v184, v182, v183
    v_cmp_eq_u32 vcc, -1, v184
    s_add_u32 s58, s58, 1
    s_cmp_ge_u32 s58, 0x40000
    s_cbranch_scc1 L_{name}_got
    s_cbranch_vccz L_{name}_got
    s_sleep 2
    global_load_dwordx2 v[176:177], v11, s[12:13] sc1
    global_load_dwordx2 v[178:179], v11, s[12:13] offset:128 sc1
    global_load_dwordx2 v[180:181], v11, s[12:13] offset:256 sc1
    global_load_dwordx2 v[182:183], v11, s[12:13] offset:384 sc1
    s_waitcnt vmcnt(0)
    s_branch L_{name}_poll
    L_{name}_got:
    s_mov_b32 s40, 0xbfb8aa3b                 ; -log2(e)
    """)
    for nt in range(4):
        m, r = 176 + 2*nt, 177 + 2*nt
        p(f"""
        v_mul_f32 v{184+nt}, s40, v{r}
        v_mul_f32 v{192+nt}, -v{r}, v{m}
        v_mul_f32 v{188+nt}, -v{184+nt}, v{m}
        """)
    p(f"""
    s_lshl_b32 s40, s36, 3
    s_lshl_b32 s41, s39, 2
    s_add_u32 s40, s40, s41
    s_mul_i32 s40, s40, 56
    s_lshl_b32 s41, s37, 2
    s_add_u32 s40, s40, s41
    s_add_u32 s40, s40, s38
    s_lshl_b32 s40, s40, 10
    v_lshl_add_u32 v11, v1, 4, s40
    s_mov_b32 s41, 0
    """)
    p.stamp()
    CSG = 160; CSU = 168
    for nt in range(4):
        a, b, rb, rs = 184 + nt, 188 + nt, 192 + nt, 177 + 2*nt
        out = 196 + 4*nt
        for mt in range(2):
            g = ACC("g", mt, nt); u = ACC("u", mt, nt)
            for r in range(4):
                p(f"v_mul_f32 v{g+r}, v{a}, v{g+r}")
                p(f"v_mul_f32 v{u+r}, v{rs}, v{u+r}")
            for r in range(4):
                p(f"v_fma_f32 v{g+r}, v{b}, v{CSG+4*mt+r}, v{g+r}")
                p(f"v_fma_f32 v{u+r}, v{rb}, v{CSU+4*mt+r}, v{u+r}")
            for r in range(4): p(f"v_exp_f32 v{g+r}, v{g+r}")
        for mt in range(2):
            g = ACC("g", mt, nt)
            for r in range(4): p(f"v_add_f32 v{g+r}, 1.0, v{g+r}")
        for mt in range(2):
            g = ACC("g", mt, nt)
            for r in range(4): p(f"v_rcp_f32 v{g+r}, v{g+r}")
        for mt in range(2):
            g = ACC("g", mt, nt); u = ACC("u", mt, nt)
            for r in range(4): p(f"v_mul_f32 v{u+r}, v{u+r}, v{g+r}")
        for mt in range(2):
            u = ACC("u", mt, nt)
            p(f"v_cvt_pk_bf16_f32 v{out+2*mt}, v{u}, v{u+1}")
            p(f"v_cvt_pk_bf16_f32 v{out+2*mt+1}, v{u+2}, v{u+3}")
        p(f"buffer_store_dwordx4 {r4(out)}, v11, s[28:31], s41 offen sc1")
        vm.issue("hs")
        p(f"s_add_u32 s41, s41, {56*1024}")
    p.stamp()
    vm.wait("E", "w9", "w10")
    p("s_barrier")
    for j in range(3):
        wd_piece(1*SLOT + 8192*j, final_ks(6 + 2*j), final_ks(6 + 2*j + 1), "wf")
    p(f"""
    v_lshrrev_b32 v14, 4, v1                  ; kg
    v_bfe_u32 v15, v1, 2, 2                   ; rr
    v_lshl_add_u32 v12, v14, 2, v15
    v_lshlrev_b32 v12, 7, v12
    v_and_b32 v13, 3, v1
    v_lshl_add_u32 v12, v13, 3, v12
    v_and_b32 v14, 1, v14
    v_lshrrev_b32 v15, 1, v15
    v_lshl_or_b32 v15, v14, 1, v15            ; g3
    v_xor_b32 v15, s38, v15                   ; g3 ^ kq
    s_lshl_b32 s40, s38, 2
    s_add_u32 s40, s40, 8
    s_lshl_b32 s40, s40, 12                   ; (8 + 4kq)*4096
    s_cmp_eq_u32 s38, 0
    s_cselect_b32 s40, {EBASE}, s40
    s_mul_i32 s41, s38, 40960
    """)
    for j in range(4):
        p(f"""
        v_xor_b32 v13, {j}, v15
        v_lshl_add_u32 v13, v13, 5, v12
        v_add_u32 v{20+j}, s40, v13
        v_add_u32 v{24+j}, s41, v13
        """)
    for n in range(4):
        for j in range(4):
            b = 32 + 16*n + 4*j
            p(f"ds_read_b64_tr_b16 {r2(b)}, v{20+j} offset:{n*4096}")
            p(f"ds_read_b64_tr_b16 {r2(b+2)}, v{20+j} offset:{n*4096 + 2048}")
    p(f"""
    s_lshl_b32 s40, s36, 1
    s_add_u32 s40, s40, s59                   ; rt2
    s_lshl_b32 s41, s40, 2
    s_lshl_b32 s43, s39, 1
    s_add_u32 s41, s41, s43                   ; T16(nt=0)
    s_mul_i32 s43, s41, 56
    s_mul_i32 s44, s38, 14
    s_add_u32 s43, s43, s44
    s_lshl_b32 s43, s43, 10
    v_lshl_add_u32 v2, v1, 4, s43             ; vH0
    v_add_u32 v3, {56*1024}, v2               ; vH1
    v_and_b32 v4, 15, v1
    s_lshl_b32 s41, s41, 4                    ; t0
    v_add_u32 v4, s41, v4                     ; t (nt=0)
    s_lshl_b32 s43, s60, 6
    s_lshl_b32 s44, s38, 4
    s_add_u32 s43, s43, s44
    v_lshrrev_b32 v5, 4, v1                   ; rg
    v_lshlrev_b32 v6, 2, v5
    v_add_u32 v6, s43, v6
    v_lshlrev_b32 v6, 12, v6
    v_lshl_add_u32 v6, v4, 1, v6              ; vRes
    v_and_b32 v7, 1, v5
    v_lshl_add_u32 v4, v7, 4, v4
    s_movk_i32 s44, 896
    v_mul_lo_u32 v4, v4, s44
    v_lshrrev_b32 v5, 1, v5
    v_lshlrev_b32 v5, 4, v5
    s_lshl_b32 s43, s43, 1
    v_add3_u32 v7, v4, v5, s43                ; vOut
    s_lshl_b32 s40, s36, 7
    s_add_u32 s40, s40, {CNT_OFF}
    v_mov_b32 v8, s40
    """)
    vm.wait("hs", extra=" lgkmcnt(0)")
    p("s_barrier")
    p.stamp()
    p(f"""
    s_cmp_lg_u32 s33, 0
    s_cbranch_scc1 L_{name}_noarr
    v_mov_b32 v9, 1
    s_mov_b64 s[56:57], exec
    s_mov_b64 exec, 1
    global_atomic_add v8, v9, s[12:13] sc1
    s_mov_b64 exec, s[56:57]
    L_{name}_noarr:
    """)
    for j in range(8):
        if j < 6: base, L0 = 12*4096 + 8192*j, 12 + 2*j
        else: base, L0 = EBASE + 8192*(j - 6), 36 + 2*(j - 6)
        wd_piece(base, final_ks(L0), final_ks(L0 + 1), "wr")
    for i in range(8):
        nt, r = i >> 2, i & 3
        p(f"s_mov_b32 s40, {r*4096 + nt*32}")
        p(f"buffer_load_ushort v{12 + i}, v6, s[16:19], s40 offen")
    p(f"""
    s_cmp_lg_u32 s33, 0
    s_cbranch_scc1 L_{name}_nopoll
    s_mov_b32 s58, 0
    L_{name}_poll2:
    global_load_dword v9, v8, s[12:13] sc1
    s_waitcnt vmcnt(0)
    v_readfirstlane_b32 s40, v9
    s_add_u32 s58, s58, 1
    s_cmp_ge_u32 s40, 14
    s_cbranch_scc1 L_{name}_nopoll
    s_cmp_ge_u32 s58, 0x40000
    s_cbranch_scc1 L_{name}_nopoll
    s_sleep 1
    s_branch L_{name}_poll2
    L_{name}_nopoll:
    s_waitcnt vmcnt(0)
    s_barrier
    """)
    p.stamp()
    HB = 96; A2 = 208; AB = [240, 32, 48]
    def ACC2(j, nt): return A2 + 8*j + 4*nt
    vm2 = VM(p)
    for n in range(14):
        p(f"s_mov_b32 s40, {n*1024}")
        p(f"buffer_load_dwordx4 {r4(HB + 8*n)}, v2, s[28:31], s40 offen sc1")
        p(f"buffer_load_dwordx4 {r4(HB + 8*n + 4)}, v3, s[28:31], s40 offen sc1")
        vm2.issue(f"h{n}", 2)
    def abuf(n):
        if n < 4: return 32 + 16*n
        if n == 4: return 240
        return 32 + 16*((n - 5) % 2) if n >= 5 else None
    def a_reads(n):
        m = n - 4
        o = []
        for j in range(4):
            b = abuf(n) + 4*j
            o.append(f"ds_read_b64_tr_b16 {r2(b)}, v{24+j} offset:{m*4096}")
            o.append(f"ds_read_b64_tr_b16 {r2(b+2)}, v{24+j} offset:{m*4096 + 2048}")
        return o
    for n in range(14):
        vm2.wait(f"h{n}", extra=(" lgkmcnt(0)" if n >= 4 else ""))
        nxt = a_reads(n + 1) if (n + 1 >= 4 and n + 1 < 14) else []
        k = 0
        for nt in range(2):
            for j in range(4):
                c_in = "0" if n == 0 else r4(ACC2(j, nt))
                p(f"v_mfma_f32_16x16x32_bf16 {r4(ACC2(j, nt))}, {r4(abuf(n) + 4*j)}, {r4(HB + 8*n + 4*nt)}, {c_in}")
                if k < len(nxt) and (n + 1 != 5 or True): p(nxt[k])
                k += 1
    p.stamp()
    p(f"""
    s_barrier
    v_lshlrev_b32 v9, 4, v1
    """)
    for j in range(1, 4):
        p(f"""
        s_xor_b32 s40, s33, {j}
        s_mul_i32 s40, s40, {3*2048}
        s_add_u32 s40, s40, {(j-1)*2048}
        v_add_u32 v10, s40, v9
        ds_write_b128 v10, {r4(ACC2(j, 0))}
        ds_write_b128 v10, {r4(ACC2(j, 1))} offset:1024
        """)
    p(f"""
    s_mul_i32 s40, s33, {3*2048}
    v_add_u32 v10, s40, v9
    s_waitcnt lgkmcnt(0)
    s_barrier
    """)
    for k in range(3):
        p(f"ds_read_b128 {r4(32 + 8*k)}, v10 offset:{k*2048}")
        p(f"ds_read_b128 {r4(36 + 8*k)}, v10 offset:{k*2048 + 1024}")
    for i in range(8): p(f"v_lshlrev_b32 v{12+i}, 16, v{12+i}")
    for k in range(3):
        p(f"s_waitcnt lgkmcnt({4 - 2*k})")
        for q in range(4):
            p(f"v_pk_add_f32 {r2(A2 + 2*q)}, {r2(A2 + 2*q)}, {r2(32 + 8*k + 2*q)}")
    for q in range(4): p(f"v_cvt_pk_bf16_f32 v{56+q}, v{A2 + 2*q}, v{A2 + 2*q + 1}")
    for q in range(4):
        p(f"v_lshlrev_b32 v{A2 + 2*q}, 16, v{56+q}")
        p(f"v_and_b32 v{A2 + 2*q + 1}, 0xffff0000, v{56+q}")
    for q in range(4): p(f"v_pk_add_f32 {r2(A2 + 2*q)}, {r2(A2 + 2*q)}, {r2(12 + 2*q)}")
    for q in range(4): p(f"v_cvt_pk_bf16_f32 v{56+q}, v{A2 + 2*q}, v{A2 + 2*q + 1}")
    p("""
    v_permlane16_swap_b32 v56, v58
    v_permlane16_swap_b32 v57, v59
    buffer_store_dwordx4 v[56:59], v7, s[4:7], 0 offen
    """)
    p.stamp()
    p.stamp_flush(STAMP_OFF + 0x4000)
    p(f"s_branch {E}")
    p(f"L_{name}_stats:")
    gen_k2_stats(p, name)
    p(f"""
    {E}:
    s_endpgm
    """)
    return kernel_text(name, p, vgpr=256, sgpr=96)

K23_LAUNCH = "grid=(256,1,1) block=(512,1,1) lds=163840"
if __name__ == "__main__":
    import sys
    s = f"; @launch kernel=k23_kernel {K23_LAUNCH}\n" + '.amdgcn_target "amdgcn-amd-amdhsa--gfx950"\n.text\n' + gen_k23(stamps=(len(sys.argv) > 2), exp=(sys.argv[2] if len(sys.argv) > 2 else ''))
    open(sys.argv[1], "w").write(s)
```

```python
import sys
from k1 import gen_k1, K1_LAUNCH
from k2 import gen_k2, K2_LAUNCH
from k3 import gen_k3, K3_LAUNCH
from k23 import gen_k23, K23_LAUNCH
def build(stamps=False, exp=""):
    if "sep" not in exp: return build2(stamps, exp)
    return build3(stamps, exp)
def build2(stamps=False, exp=""):
    s = "; sequential preLN -> S4 convolution -> GLU MLP, two launches\n"
    s += "; kernarg: 13 input pointers, d_out (104), d_debug (112), d_ws (120)\n"
    s += f"; @launch kernel=k1_kernel {K1_LAUNCH}\n"
    s += f"; @launch kernel=k23_kernel {K23_LAUNCH}\n"
    s += '.amdgcn_target "amdgcn-amd-amdhsa--gfx950"\n.text\n'
    s += gen_k1(stamps=stamps, exp=exp) + gen_k23(stamps=stamps, exp=exp)
    return s
def build3(stamps=False, exp=""):
    s = "; sequential preLN -> S4 convolution -> GLU MLP, three launches\n"
    s += "; kernarg: 13 input pointers, d_out (104), d_debug (112), d_ws (120)\n"
    s += f"; @launch kernel=k1_kernel {K1_LAUNCH}\n"
    s += f"; @launch kernel=k2_kernel {K2_LAUNCH}\n"
    s += f"; @launch kernel=k3_kernel {K3_LAUNCH}\n"
    s += '.amdgcn_target "amdgcn-amd-amdhsa--gfx950"\n.text\n'
    s += gen_k1(stamps=stamps, exp=exp) + gen_k2(stamps=stamps, exp=exp) + gen_k3(stamps=stamps, exp=exp)
    return s
if __name__ == "__main__":
    out = sys.argv[1] if len(sys.argv) > 1 else "sequential_preLN__ssm_conv_s4__glu_gated_glu__prompt.s"
    open(out, "w").write(build(stamps=len(sys.argv) > 2, exp=(sys.argv[2] if len(sys.argv) > 2 else "")))
```

```python
import re

KNAME = "sequential_preLN__ssm_conv_s4__glu_gated_glu__prompt_kernel"

class Prog:
    def __init__(self):
        self.lines = []
    def __call__(self, s):
        for l in s.split("\n"):
            l = l.strip()
            if l: self.lines.append(l)
    stamps_on = False
    stamp_tid = 0
    stamp_op = 's_memrealtime'
    nstamp = 0
    def stamp(self, idx=None):
        if not self.stamps_on: return
        if idx is None:
            i = self.nstamp; self.nstamp += 1
        else:
            i = idx
        self(f"{self.stamp_op} s[{64+2*i}:{65+2*i}]")
    def stamp_flush(self, region, ws='s[12:13]', tag=''):
        if not self.stamps_on: return
        self("s_waitcnt vmcnt(0) lgkmcnt(0)")
        self.stamp()
        self("s_waitcnt lgkmcnt(0)")
        for i in range(self.nstamp): self(f"v_mov_b32 v{2+i}, s{64+2*i}")
        self(f"s_lshl_b32 s62, s2, 6")
        self(f"s_add_u32 s62, s62, {region}")
        self(f"v_mov_b32 v1, s62")
        self(f"v_cmp_eq_u32 vcc, {self.stamp_tid}, v0" if self.stamp_tid <= 64 else f"v_cmp_eq_u32 vcc, 0x{self.stamp_tid:x}, v0")
        self("s_and_saveexec_b64 s[60:61], vcc")
        self("s_cbranch_execz L_stamp_skip_%d%s" % (id(self), tag))
        self("global_store_dwordx4 v1, v[2:5], " + ws)
        self("global_store_dwordx4 v1, v[6:9], " + ws + " offset:16")
        self("global_store_dwordx4 v1, v[10:13], " + ws + " offset:32")
        self("global_store_dwordx4 v1, v[14:17], " + ws + " offset:48")
        self("s_waitcnt vmcnt(0)")
        self("L_stamp_skip_%d%s:" % (id(self), tag))
    def text(self):
        return "\n".join(self.lines) + "\n"

TRANS = ("v_exp_f32", "v_log_f32", "v_rcp_f32", "v_rsq_f32", "v_sqrt_f32", "v_sin_f32", "v_cos_f32")
REG_RE = re.compile(r"^(-|abs\()?([vsa])(\d+)\)?$")
RNG_RE = re.compile(r"^(-)?([vsa])\[(\d+):(\d+)\]$")

def regs_of(tok):
    tok = tok.strip()
    if tok in ("vcc",): return {("s", 106), ("s", 107)}
    if tok == "vcc_lo": return {("s", 106)}
    if tok == "vcc_hi": return {("s", 107)}
    if tok == "exec": return {("s", 126), ("s", 127)}
    if tok == "m0": return {("s", 124)}
    m = REG_RE.match(tok)
    if m: return {(m.group(2), int(m.group(3)))}
    m = RNG_RE.match(tok)
    if m: return {(m.group(2), i) for i in range(int(m.group(3)), int(m.group(4)) + 1)}
    return set()

class Ins:
    __slots__ = ("text", "op", "ops", "kind", "dst", "src", "label", "target", "passes", "srcC", "srcAB", "nopn", "dpp", "trans", "store_data", "lds_dma", "mods")
    def __init__(self, text):
        self.text = text; self.label = None; self.target = None
        self.kind = "other"; self.dst = set(); self.src = set(); self.passes = 0
        self.srcC = set(); self.srcAB = set(); self.nopn = 1; self.dpp = False; self.trans = False
        self.store_data = set(); self.lds_dma = False
        t = text.split(";")[0].strip()
        if t.endswith(":") and " " not in t:
            self.kind = "label"; self.label = t[:-1]; self.op = ""; self.ops = []; self.nopn = 0; return
        if not t or t.startswith("."):
            self.kind = "dir"; self.op = ""; self.ops = []; self.nopn = 0; return
        parts = t.split(None, 1)
        self.op = parts[0]
        rest = parts[1] if len(parts) > 1 else ""
        ops = []; depth = 0; cur = ""
        for ch in rest:
            if ch in "[(": depth += 1
            if ch in "])": depth -= 1
            if ch == "," and depth == 0:
                ops.append(cur.strip()); cur = ""
            else: cur += ch
        if cur.strip(): ops.append(cur.strip())
        mods = ""
        if ops:
            last = ops[-1].split(None, 1)
            ops[-1] = last[0]
            mods = last[1] if len(last) > 1 else ""
        self.ops = ops; self.mods = mods
        op = self.op
        R = [regs_of(o) for o in ops]
        if op == "s_nop":
            self.kind = "nop"; self.nopn = int(ops[0], 0) + 1
        elif op.startswith("s_cbranch") or op == "s_branch":
            self.kind = "branch"; self.target = ops[0]
        elif op == "s_endpgm":
            self.kind = "end"
        elif op.startswith("v_mfma"):
            self.kind = "mfma"; self.dst = R[0]; self.srcAB = R[1] | R[2]; self.srcC = R[3]; self.src = self.srcAB | self.srcC
            self.passes = 8 if "32x32x16" in op else (4 if "16x16x32" in op else None)
            assert self.passes, op
        elif op.startswith("v_"):
            self.kind = "valu"
            self.trans = any(op.startswith(x) for x in TRANS)
            self.dpp = ("dpp" in op) or ("quad_perm" in mods) or ("row_" in mods) or ("wave_" in mods)
            self.dst = R[0]
            srcs = R[1:]
            if op.startswith("v_add_co") or op.startswith("v_addc_co") or op.startswith("v_sub_co"):
                self.dst = R[0] | R[1]; srcs = R[2:]
            for s in srcs: self.src |= s
            if op.startswith("v_fmac") or op.startswith("v_dot2c") or op.startswith("v_permlane") or op.startswith("v_writelane"):
                self.src |= R[0]
            if op.startswith("v_permlane"): self.dst = R[0] | R[1]
            if op.startswith("v_cndmask") and len(ops) == 3: self.src |= regs_of("vcc")
            if op.endswith("_d16_hi"): self.src |= R[0]
        elif op.startswith("ds_"):
            self.kind = "ds"
            if op.startswith("ds_read") or op.startswith("ds_bpermute") or op.startswith("ds_swizzle") or op.startswith("ds_permute"):
                self.dst = R[0]
                for s in R[1:]: self.src |= s
            else:
                for s in R: self.src |= s
        elif op.startswith("buffer_") or op.startswith("global_") or op.startswith("flat_"):
            self.kind = "vmem"
            self.lds_dma = (" lds" in " " + mods) or ("_lds_" in op)
            if "load" in op and not self.lds_dma:
                self.dst = R[0]
                for s in R[1:]: self.src |= s
                if "d16" in op: self.src |= R[0]
            elif "atomic" in op and "sc0" in mods:
                self.dst = R[0]
                for s in R[1:]: self.src |= s
            else:
                for s in R: self.src |= s
                if "store" in op and ("x4" in op or "x3" in op):
                    self.store_data = R[0] if op.startswith("buffer_") else R[1]
        elif op.startswith("s_"):
            self.kind = "salu"
            if op.startswith("s_cmp") or op.startswith("s_waitcnt") or op in ("s_barrier", "s_setprio", "s_sleep") or op.startswith("s_bitcmp"):
                for s in R: self.src |= s
            else:
                if R: self.dst = R[0]
                for s in R[1:]: self.src |= s
                if "saveexec" in op: self.dst |= regs_of("exec")

def is_v(r): return r[0] in ("v", "a")
def vset(s): return {r for r in s if is_v(r)}
def sset(s): return {r for r in s if r[0] == "s"}

def need(p, c):
    n = 0
    if p.kind == "valu":
        pv = vset(p.dst); ps = sset(p.dst)
        if pv and p.op.startswith("v_dot"):
            if c.kind in ("valu", "mfma", "ds", "vmem") and pv & (c.src | c.dst):
                if c.op == p.op and len(c.ops) == 4 and not (pv & (regs_of(c.ops[1]) | regs_of(c.ops[2]))) and regs_of(c.ops[3]) == pv: pass
                else: n = max(n, 3)
        if pv:
            if c.kind == "mfma" and pv & c.src: n = max(n, 2)
            if c.kind == "valu":
                if p.trans and not c.trans and pv & c.src: n = max(n, 1)
                if c.dpp and pv & c.src: n = max(n, 2)
                if c.op.startswith("v_permlane") and pv & c.src: n = max(n, 2)
                if (c.op.startswith("v_readlane") or c.op.startswith("v_readfirstlane")) and pv & c.src: n = max(n, 1)
        if ps:
            if c.kind == "valu" and ps & c.src:
                n = max(n, 4 if (c.op.startswith("v_readlane") or c.op.startswith("v_writelane")) else 2)
            if c.kind == "mfma" and ps & c.src: n = max(n, 2)
            if c.kind == "vmem" and ps & c.src: n = max(n, 5)
            if c.kind in ("salu", "branch") and (ps & c.src): n = max(n, 1)
    elif p.kind == "mfma":
        big = {4: 8, 8: 12}[p.passes]; ov = {4: 6, 8: 10}[p.passes]; war = {4: 3, 8: 7}[p.passes]
        if c.kind == "valu":
            if p.dst & (c.src | c.dst): n = max(n, big)
            if p.srcC & c.dst: n = max(n, war)
        elif c.kind in ("ds", "vmem"):
            if p.dst & (c.src | c.dst): n = max(n, big)
        elif c.kind == "mfma":
            if p.dst & c.srcAB: n = max(n, big)
            if p.dst & c.srcC:
                if not (p.dst == c.srcC and p.passes == c.passes): n = max(n, ov)
            if p.dst & c.dst and not (p.dst == c.dst and p.dst == c.srcC):
                if not (p.dst == c.dst): n = max(n, ov)
    elif p.kind == "vmem":
        if p.store_data and c.kind in ("valu", "mfma") and p.store_data & c.dst: n = max(n, 2)
        if p.store_data and c.kind in ("ds", "vmem") and p.store_data & c.dst: n = max(n, 1)
    elif p.kind == "salu":
        if ("s", 124) in p.dst and c.kind == "vmem" and c.lds_dma: n = max(n, 1)
        if ("s", 126) in p.dst or ("s", 127) in p.dst:
            if c.kind == "valu" and c.dpp: n = max(n, 0)
    return n

MAXW = 12
def fix_hazards(lines, verbose=False):
    total = 0
    for _ in range(50):
        ins = [Ins(l) for l in lines]
        labels = {i.label: k for k, i in enumerate(ins) if i.kind == "label"}
        n = len(ins)
        def succ(k):
            i = ins[k]
            if i.kind == "end": return []
            if i.kind == "branch":
                t = labels[i.target]
                return [t] if i.op == "s_branch" else [t, k + 1]
            return [k + 1] if k + 1 < n else []
        inserts = {}
        for k, p in enumerate(ins):
            if p.kind not in ("valu", "mfma", "vmem", "salu"): continue
            if p.kind == "salu" and ("s", 124) not in p.dst: continue
            if p.kind == "vmem" and not p.store_data: continue
            stack = [(s, 0) for s in succ(k)]
            seen = {}
            while stack:
                j, d = stack.pop()
                if j >= n or d >= MAXW: continue
                if j in seen and seen[j] <= d: continue
                seen[j] = d
                c = ins[j]
                if c.kind not in ("label", "dir", "nop"):
                    r = need(p, c)
                    if r > d:
                        inserts[j] = max(inserts.get(j, 0), r - d)
                        continue
                for s in succ(j): stack.append((s, d + c.nopn))
        if not inserts: break
        out = []
        first = min(inserts)
        for k, l in enumerate(lines):
            if k in inserts:
                m = inserts[k]
                total += m
                if verbose: print("  nop", m, "before:", l)
                while m > 0:
                    q = min(m, 16); out.append(f"s_nop {q-1}"); m -= q
            out.append(l)
        lines = out
    return lines, total

def kernel_desc(name, vgpr, accum=None, sgpr=96, denorm=3):
    if accum is None: accum = min(256, (vgpr + 3) // 4 * 4)
    return f""".section .rodata,"a"
.p2align 6
.amdhsa_kernel {name}
  .amdhsa_next_free_vgpr {vgpr}
  .amdhsa_next_free_sgpr {sgpr}
  .amdhsa_accum_offset {accum}
  .amdhsa_group_segment_fixed_size 0
  .amdhsa_kernarg_size 128
  .amdhsa_user_sgpr_count 2
  .amdhsa_user_sgpr_kernarg_segment_ptr 1
  .amdhsa_system_sgpr_workgroup_id_x 1
  .amdhsa_float_denorm_mode_32 {denorm}
.end_amdhsa_kernel
.text
"""

def kernel_text(name, prog, vgpr, accum=None, sgpr=96, verbose=False, denorm=3):
    lines, nn = fix_hazards(prog.lines, verbose)
    body = []
    for l in lines:
        body.append(l if l.endswith(":") else "  " + l)
    s = f".globl {name}\n.p2align 8\n.type {name},@function\n{name}:\n" + "\n".join(body) + "\n"
    s += kernel_desc(name, vgpr, accum, sgpr, denorm)
    return s
```

```python
from asmtool import *
from layout import *
import struct

def r4(b): return f"v[{b}:{b+3}]"
def r2(b): return f"v[{b}:{b+1}]"
def fbits(x): return "0x%08x" % struct.unpack("<I", struct.pack("<f", x))[0]

WREG = 53 * 528
KCS = 4160
KCC = 4 * KCS
TB = 4 * WREG
UL0 = TB + 12288
XL0 = UL0 + 2 * 4608
LDS_K1 = XL0 + 2 * 4096
EX = 40960

def cmul_multi(p, items):
    for d, x, y in items: p(f"v_pk_mul_f32 {r2(d)}, {r2(x)}, {r2(y)} op_sel_hi:[1,0]")
    for d, x, y in items: p(f"v_pk_fma_f32 {r2(d)}, {r2(x)}, {r2(y)}, {r2(d)} op_sel:[1,1,0] op_sel_hi:[0,1,1] neg_lo:[1,0,0]")

def gen_spare_stats(p, name):
    p(f"""
    v_lshrrev_b32 v2, 3, v1                   ; lane>>3
    s_lshl_b32 s34, s2, 6
    s_lshl_b32 s35, s33, 3
    s_add_u32 s34, s34, s35                   ; 64b + 8w
    v_add_u32 v2, s34, v2                     ; row
    s_movk_i32 s35, 896
    v_mul_lo_u32 v3, v2, s35
    v_and_b32 v4, 7, v1
    v_lshl_add_u32 v3, v4, 4, v3
    s_waitcnt lgkmcnt(0)
    """)
    for i in range(7):
        p(f"global_load_dwordx4 {r4(32 + 4*i)}, v3, s[4:5] offset:{128*i}")
    if "notouch" not in getattr(p, "exp", ""):
        p(f"""
        v_mov_b32 v24, {TOUCH_OFF}
        v_mov_b32 v25, 128
        global_load_dword v26, v24, s[26:27]
        global_load_dword v27, v25, s[24:25]
        """)
    p(f"""
    s_mov_b32 s44, 0x3f803f80
    v_mov_b32 v10, 0
    v_mov_b32 v11, 0
    v_mov_b32 v14, 0
    v_mov_b32 v15, 0
    s_lshl_b32 s40, s2, 9
    s_add_u32 s40, s40, {ST2_OFF}
    v_lshl_add_u32 v20, v1, 3, s40
    v_mov_b32 v18, -1
    v_mov_b32 v19, -1
    v_lshlrev_b32 v21, 7, v1
    v_add_u32 v21, {CNT_OFF}, v21
    v_mov_b32 v22, 0
    s_mov_b64 s[46:47], exec
    s_cmp_lg_u32 s33, 1
    s_cbranch_scc1 L_{name}_noinit
    global_store_dwordx2 v20, v[18:19], s[26:27] sc1
    s_cmp_lg_u32 s2, 0
    s_cbranch_scc1 L_{name}_noinit
    s_mov_b32 exec_hi, 0
    global_store_dword v21, v22, s[26:27] sc1
    s_mov_b64 exec, s[46:47]
    L_{name}_noinit:
    """)
    for i in range(7):
        p(f"s_waitcnt vmcnt({6 - i})" if False else "")
    p.stamp(1)
    p("s_waitcnt vmcnt(0)")
    p.stamp(2)
    for i in range(7):
        for j in range(4):
            v = 32 + 4*i + j
            if j & 1:
                p(f"v_dot2_f32_bf16 v14, v{v}, s44, v14")
                p(f"v_dot2_f32_bf16 v15, v{v}, v{v}, v15")
            else:
                p(f"v_dot2_f32_bf16 v10, v{v}, s44, v10")
                p(f"v_dot2_f32_bf16 v11, v{v}, v{v}, v11")
    p("v_add_f32 v10, v10, v14\nv_add_f32 v11, v11, v15")
    for dpp in ("quad_perm:[1,0,3,2]", "quad_perm:[2,3,0,1]", "row_half_mirror"):
        for r in (10, 11):
            p(f"v_add_f32_dpp v{r}, v{r}, v{r} {dpp} row_mask:0xf bank_mask:0xf")
    p(f"""
    s_mov_b32 s40, 0x3b124925                 ; 1/448
    s_mov_b32 s41, 0x3727c5ac                 ; 1e-5
    v_mul_f32 v10, s40, v10
    v_mul_f32 v11, s40, v11
    v_fma_f32 v11, -v10, v10, v11
    v_max_f32 v11, 0, v11
    v_cvt_pk_bf16_f32 v16, v11, v11
    v_lshlrev_b32 v16, 16, v16
    v_add_f32 v16, s41, v16
    v_cvt_pk_bf16_f32 v16, v16, v16
    v_lshlrev_b32 v16, 16, v16
    v_sqrt_f32 v16, v16
    v_cvt_pk_bf16_f32 v16, v10, v16
    v_lshlrev_b32 v2, 2, v2
    v_add_u32 v2, {STATS_OFF}, v2
    s_mov_b32 s42, 0x01010101
    s_mov_b32 s43, 0x01010101
    s_mov_b64 exec, s[42:43]
    global_store_dword v2, v16, s[26:27] sc1
    s_mov_b64 exec, s[46:47]
    """)
    p.stamp(3)
    p(f"""
    s_waitcnt vmcnt(0)
    s_barrier
    """)
    p.stamp(4)
    p(f"""
    s_cmp_lg_u32 s33, 0
    s_cbranch_scc1 L_{name}_nosig
    v_mov_b32 v4, 0
    v_mov_b32 v5, 1
    s_mov_b64 exec, 1
    global_atomic_add v4, v5, s[24:25] sc1
    s_mov_b64 exec, s[46:47]
    L_{name}_nosig:
    """)

def gen_spare_cs(p, name, sc1=""):
    p(f"""
    s_movk_i32 s35, 4682
    v_mul_u32_u24 v6, s35, v0
    v_lshrrev_b32 v6, 16, v6                  ; rg (0..36)
    v_mul_u32_u24 v7, 14, v6
    v_sub_u32 v7, v0, v7                      ; u
    s_and_b32 s36, s2, 15
    s_mul_i32 s36, s36, 224
    s_movk_i32 s35, {14*3584 // 16}
    v_mul_u32_u24 v8, s35, v6
    v_lshlrev_b32 v8, 4, v8                   ; rg*14*3584
    v_lshl_add_u32 v8, v7, 4, v8
    v_add_u32 v8, s36, v8
    s_cmp_lt_u32 s2, 16
    s_cselect_b32 s36, s28, s30
    s_cselect_b32 s37, s29, s31
    s_mov_b32 s38, {W_BYTES}
    s_mov_b32 s39, 0x20000
    s_mov_b32 s40, 0
    """)
    for i in range(14):
        p(f"buffer_load_dwordx4 {r4(96 + 4*i)}, v8, s[36:39], 0 offen")
        if i < 13: p(f"v_add_u32 v8, 3584, v8")
    for r in range(8): p(f"v_mov_b32 v{32+r}, 0")
    p("s_mov_b32 s44, 0xffff0000")
    for i in range(14):
        p(f"s_waitcnt vmcnt({13 - i})")
        for j in range(4):
            v = 96 + 4*i + j
            t = 40 + 2*(j & 1)
            p(f"v_lshlrev_b32 v{t}, 16, v{v}\nv_and_b32 v{t+1}, s44, v{v}\nv_pk_add_f32 {r2(32+2*j)}, {r2(32+2*j)}, {r2(t)}")
    p(f"""
    s_movk_i32 s35, 448
    v_mul_u32_u24 v9, s35, v6
    v_lshl_add_u32 v9, v7, 5, v9
    v_mov_b32 v10, 448
    v_cmp_gt_u32 vcc, v10, v0
    s_and_saveexec_b64 s[42:43], vcc
    s_cbranch_execz L_{name}_csnw
    ds_write_b128 v9, v[32:35]
    ds_write_b128 v9, v[36:39] offset:16
    L_{name}_csnw:
    s_mov_b64 exec, s[42:43]
    s_waitcnt lgkmcnt(0)
    s_barrier
    v_mov_b32 v10, 112
    v_cmp_gt_u32 vcc, v10, v0
    s_and_saveexec_b64 s[42:43], vcc
    s_cbranch_execz L_{name}_csdone
    v_lshlrev_b32 v9, 2, v0
    """)
    for g in range(32): p(f"ds_read_b32 v{32+g}, v9 offset:{448*g}")
    p("s_waitcnt lgkmcnt(0)")
    for g in range(0, 32, 2): p(f"v_add_f32 v{32+g}, v{32+g}, v{33+g}")
    for g in range(2, 32, 2): p(f"v_add_f32 v32, v32, v{32+g}")
    p(f"""
    s_mul_i32 s40, s2, 448
    s_add_u32 s40, s40, {CS_OFF}
    v_add_u32 v9, s40, v9
    global_store_dword v9, v32, s[26:27] {sc1}
    L_{name}_csdone:
    s_mov_b64 exec, s[42:43]
    s_waitcnt vmcnt(0)
    """)

def gen_conv(p, name, hsc=""):
    exp = getattr(p, "exp", "")
    SLP = 8
    for tok in exp.split("_"):
        if tok.startswith("slp"): SLP = int(tok[3:])
    p(f"""
    s_and_b32 s34, s3, 7
    s_mul_i32 s34, s34, 56
    s_lshr_b32 s35, s3, 3
    s_lshl_b32 s35, s35, 1
    s_add_u32 s34, s34, s35                   ; d0
    s_bfe_u32 s35, s33, 0x10001               ; c  = (w>>1)&1
    s_and_b32 s36, s33, 1                     ; hf
    s_add_u32 s37, s34, s35                   ; d
    s_lshr_b32 s52, s33, 2                    ; role
    s_and_b32 s53, s33, 3                     ; sub
    s_lshl_b32 s38, s37, 9
    s_lshl_b32 s39, s36, 8
    s_add_u32 s38, s38, s39
    v_lshl_add_u32 v24, v1, 2, s38
    s_movk_i32 s39, 7168
    v_and_b32 v23, 255, v0
    v_mul_u32_u24 v25, s39, v23
    s_lshl_b32 s38, s34, 1
    s_add_u32 s39, s38, 3584
    v_add_u32 v25, s39, v25
    s_mul_i32 s42, s53, {WREG}
    v_lshl_add_u32 v26, v1, 3, s42
    s_waitcnt lgkmcnt(0)
    """)
    p.stamp()
    p(f"""
    s_load_dword s40, s[18:19], s38
    s_load_dword s41, s[20:21], s38
    s_cmp_lg_u32 s52, 0
    s_cbranch_scc1 L_{name}_noparam
    global_load_dword v10, v24, s[6:7]
    global_load_dword v11, v24, s[8:9]
    global_load_dword v12, v24, s[10:11]
    global_load_dword v13, v24, s[12:13]
    global_load_dword v14, v24, s[14:15]
    global_load_dword v15, v24, s[16:17]
    s_waitcnt vmcnt(0)
    L_{name}_noparam:
    s_barrier
    s_mov_b32 s46, 0xffff0000
    s_waitcnt lgkmcnt(0)
    s_cmp_eq_u32 s35, 0
    s_cselect_b32 s43, 16, 0
    s_lshl_b32 s41, s41, s43
    s_and_b32 s41, s41, 0xffff0000
    s_cmp_lg_u32 s52, 0
    s_cbranch_scc1 L_{name}_V
    s_lshl_b32 s40, s40, s43
    s_and_b32 s40, s40, 0xffff0000
    s_mov_b32 s44, 0x3fb8aa3b                 ; log2(e)
    s_mov_b32 s45, 0x3e22f983                 ; 1/(2 pi)
    v_mov_b32 v30, s40
    v_mul_f32 v30, s44, v30
    v_exp_f32 v30, v30
    v_cvt_pk_bf16_f32 v30, v30, v30
    v_and_b32 v30, s46, v30
    """)
    wr = [0]
    def put(row, src, neg):
        wp = 16 + 2*(wr[0] % 4); wr[0] += 1
        for k in range(2):
            s = src(k)
            p(f"v_cvt_pk_bf16_f32 v{wp+k}, v{s}, {'-' if neg else ''}v{s+1}")
        p(f"ds_write_b64 v26, {r2(wp)} offset:{row*528}")
    def unp(k, d, s):
        return f"v_lshlrev_b32 v{d}, 16, v{s}" if k == 0 else f"v_and_b32 v{d}, s46, v{s}"
    def expz(dst, Z, L, T):
        for k in range(2):
            t = T(k)
            if L == 1.0:
                p(f"v_exp_f32 v{t}, v{Z(k)}")
                p(f"v_fract_f32 v{t+1}, v{Z(k)+1}")
            else:
                p(f"v_pk_mul_f32 {r2(t)}, {r2(Z(k))}, {r2(28)} op_sel_hi:[1,0]")
        if L != 1.0:
            for k in range(2):
                t = T(k)
                p(f"v_exp_f32 v{t}, v{t}")
                p(f"v_fract_f32 v{t+1}, v{t+1}")
        for k in range(2):
            p(f"v_cos_f32 v{dst(k)}, v{T(k)+1}")
            p(f"v_sin_f32 v{dst(k)+1}, v{T(k)+1}")
        for k in range(2):
            p(f"v_pk_mul_f32 {r2(dst(k))}, {r2(dst(k))}, {r2(T(k))} op_sel_hi:[1,0]")
    names = ["Z", "CB", "E1", "E256", "E2", "E4", "Pa", "Pb", "T1", "T2", "T3", "Ta", "Tb", "R4", "Rt", "Tm",
             "E8", "E16", "Oa", "Ob", "Ea", "Eb"]
    def U(nm): return lambda k: 32 + 2*names.index(nm) + 44*k
    p("s_waitcnt vmcnt(0)")
    p.stamp()
    for k in range(2):
        Z, Pa, Pb = U("Z")(k), U("Pa")(k), U("Pb")(k)
        p(unp(k, Z, 10)); p(unp(k, Z+1, 11))
        p(unp(k, Pa, 12)); p(unp(k, Pa+1, 13))
        p(unp(k, Pb, 14)); p(unp(k, Pb+1, 15))
    for k in range(2):
        p(f"v_pk_mul_f32 {r2(U('Z')(k))}, {r2(U('Z')(k))}, v[30:31] op_sel_hi:[1,0]")
        p(f"v_pk_mul_f32 {r2(U('Pa')(k))}, {r2(U('Pa')(k))}, v[30:31] op_sel_hi:[1,0]")
    cmul_multi(p, [(U("CB")(k), U("Pb")(k), U("Pa")(k)) for k in range(2)])
    for k in range(2):
        p(f"v_mul_f32 v{U('Z')(k)}, s44, v{U('Z')(k)}")
        p(f"v_mul_f32 v{U('Z')(k)+1}, s45, v{U('Z')(k)+1}")
    p(f"v_mov_b32 v28, {fbits(8.0)}")
    expz(U("E8"), U("Z"), 8.0, U("Tm"))
    expz(U("E1"), U("Z"), 1.0, U("Tm"))
    p(f"v_mov_b32 v28, {fbits(256.0)}")
    expz(U("E256"), U("Z"), 256.0, U("Tm"))
    if 'fine' in exp: p.stamp(10)
    for k in range(2):
        p(f"v_mov_b32 v{U('Tm')(k)}, 1.0\nv_mov_b32 v{U('Tm')(k)+1}, 0")
    put(21, U("Tm"), False)
    put(22, U("E8"), False)
    put(0, U("CB"), True)
    def rnd(items, puts):
        cmul_multi(p, [(U(d)(k), U(x)(k), U(y)(k)) for (d, x, y) in items for k in range(2)])
        for row, nm in puts: put(row, U(nm), row < 21)
    rnd([("E16", "E8", "E8"), ("Pa", "CB", "E1"), ("T1", "CB", "E256"), ("E2", "E1", "E1")], [(23, "E16"), (1, "Pa"), (8, "T1")])
    urounds = [
        ([("Pb", "Pa", "E1"), ("T2", "T1", "E256"), ("E4", "E2", "E2")], [(2, "Pb"), (9, "T2")]),
        ([("Pa", "Pb", "E1"), ("T3", "T2", "E256"), ("Rt", "T1", "E2")], [(3, "Pa"), (10, "T3"), (16, "Rt")]),
        ([("Pb", "Pa", "E1"), ("Ta", "T3", "E256"), ("R4", "T1", "E4")], [(4, "Pb"), (11, "Ta"), (17, "R4")]),
        ([("Pa", "Pb", "E1"), ("Tb", "Ta", "E256"), ("Rt", "R4", "E2")], [(5, "Pa"), (12, "Tb"), (18, "Rt")]),
        ([("Pb", "Pa", "E1"), ("Ta", "Tb", "E256"), ("Rt", "T2", "E4")], [(6, "Pb"), (13, "Ta"), (19, "Rt")]),
        ([("Pa", "Pb", "E1"), ("Tb", "Ta", "E256"), ("Rt", "T3", "E4")], [(7, "Pa"), (14, "Tb"), (20, "Rt")]),
        ([("Ta", "Tb", "E256")], [(15, "Ta")]),
    ]
    o, e = "E8", "E16"
    no, ne = "Oa", "Ea"
    for n, j in enumerate(range(3, 32, 2)):
        items = [(no, o, "E16")]; puts = [(21 + j, no)]
        if j + 1 < 32: items.append((ne, e, "E16")); puts.append((21 + j + 1, ne))
        if n < len(urounds):
            items = items + urounds[n][0]; puts = puts + urounds[n][1]
        rnd(items, puts)
        o, e = no, ne
        no = "Ob" if no == "Oa" else "Oa"
        ne = "Eb" if ne == "Ea" else "Ea"
    if 'fine' in exp: p.stamp(11)
    p(f"""
    v_and_b32 v27, 31, v1
    v_min_u32 v28, 20, v27
    s_movk_i32 s43, 528
    v_mul_u32_u24 v28, s43, v28
    v_mul_u32_u24 v27, s43, v27
    v_lshrrev_b32 v29, 5, v1
    v_lshlrev_b32 v29, 4, v29                 ; kk*16
    v_add3_u32 v28, v28, v29, s42
    s_add_u32 s43, s42, {21*528}
    v_add3_u32 v27, v27, v29, s43
    s_waitcnt lgkmcnt(0)
    """)
    p.stamp()
    DEPTH = 6
    def kr(ks):
        b = 96 + 8*(ks % 8)
        p(f"ds_read_b128 {r4(b)}, v28 offset:{32*ks}")
        p(f"ds_read_b128 {r4(b+4)}, v27 offset:{32*ks}")
    for ks in range(DEPTH): kr(ks)
    p(f"""
    v_lshrrev_b32 v29, 5, v1
    v_lshlrev_b32 v29, 9, v29                 ; half*4*128
    v_and_b32 v24, 31, v1
    v_lshl_add_u32 v29, v24, 2, v29
    s_mul_i32 s42, s53, 3072
    s_add_u32 s42, s42, {TB}
    v_add_u32 v29, s42, v29
    """)
    for ks in range(16):
        outstanding_after = 2 * (min(ks + DEPTH, 16) - (ks + 1))
        p(f"s_waitcnt lgkmcnt({outstanding_after})")
        b = 96 + 8*(ks % 8)
        p(f"v_mfma_f32_32x32x16_bf16 v[160:175], {r4(b)}, {r4(b+4)}, " + ("0" if ks == 0 else "v[160:175]"))
        if ks + DEPTH < 16: kr(ks + DEPTH)
    for r in range(12):
        p(f"ds_write_b32 v29, v{160+r} offset:{((r & 3) + 8*(r >> 2))*128}")
    p(f"""
    s_mul_i32 s42, s35, 6144
    s_add_u32 s42, s42, {TB}
    v_lshl_add_u32 v26, v1, 2, s42
    s_waitcnt lgkmcnt(0)
    s_barrier                                 ; 1
    """)
    p.stamp()
    p(f"""
    s_cmp_lg_u32 s36, 0
    s_cbranch_scc1 L_{name}_g1
    """)
    seg1 = [256, 256, 512, 544, 544, 544, 576, 257]
    p("v_cmp_gt_u32 vcc, 32, v1")
    for e in range(8):
        p(f"v_mov_b32 v{40+e}, {(seg1[e]-32)*4}")
        p(f"v_mov_b32 v48, {32*e*4}")
        p(f"v_cndmask_b32 v{40+e}, v{40+e}, v48, vcc")
        p(f"v_add_u32 v{40+e}, v{40+e}, v26")
    for e in range(8):
        p(f"ds_read2st64_b32 {r2(48+2*e)}, v{40+e} offset0:0 offset1:12")
    p(f"v_add_u32 v32, {288*4}, v26\nv_add_u32 v33, {608*4}, v26\nv_add_u32 v34, {289*4}, v26")
    for i in range(3):
        p(f"ds_read2st64_b32 {r2(64+2*i)}, v{32+i} offset0:0 offset1:12")
    p("s_waitcnt lgkmcnt(0)")
    for e in range(8): p(f"v_add_f32 v{48+2*e}, v{48+2*e}, v{49+2*e}")
    for i in range(3): p(f"v_add_f32 v{64+2*i}, v{64+2*i}, v{65+2*i}")
    for j in range(4):
        p(f"v_cvt_pk_bf16_f32 v{96+j}, v{48+2*(7-2*j)}, v{48+2*(6-2*j)}")
    p(f"""
    v_cvt_pk_bf16_f32 v100, v68, v68
    v_cvt_pk_bf16_f32 v101, v66, v66          ; (K5,K4) = (Q,Q)
    v_cvt_pk_bf16_f32 v102, v66, v64          ; (K3,K2) = (Q,G)
    v_cvt_pk_bf16_f32 v103, v64, v64          ; (K1,K0) = (G,G)
    s_branch L_{name}_g2
    L_{name}_g1:
    """)
    for it in range(2):
        p(f"v_add_u32 v{40+it}, {(352+64*it)*4}, v26")
        p(f"v_add_u32 v{42+it}, {(353+64*it)*4}, v26")
    for it in range(2):
        p(f"ds_read2st64_b32 {r2(48+4*it)}, v{40+it} offset0:0 offset1:12")
        p(f"ds_read2st64_b32 {r2(50+4*it)}, v{42+it} offset0:0 offset1:12")
    p(f"""
    v_and_b32 v44, 1, v1
    v_cmp_eq_u32 vcc, 1, v44
    v_lshrrev_b32 v45, 1, v1
    s_movk_i32 s43, {KCS}
    v_mul_u32_u24 v45, s43, v45
    v_lshl_add_u32 v45, v44, 4, v45
    s_mul_i32 s42, s35, {KCC}
    s_add_u32 s42, s42, {256*16}
    v_add_u32 v45, s42, v45
    v_mov_b32 v60, 0
    v_mov_b32 v61, 0
    v_mov_b32 v62, 0
    v_mov_b32 v63, 0
    s_mov_b64 s[50:51], exec
    s_mov_b64 exec, 0xff
    ds_write_b128 v45, v[60:63]
    s_mov_b64 exec, s[50:51]
    s_waitcnt lgkmcnt(0)
    """)
    for it in range(2):
        G, Gn = 48 + 4*it, 50 + 4*it
        p(f"""
        v_add_f32 v{G}, v{G}, v{G+1}
        v_add_f32 v{Gn}, v{Gn}, v{Gn+1}
        v_cndmask_b32 v46, v{G}, v{Gn}, vcc
        v_cvt_pk_bf16_f32 v{96+4*it}, v{Gn}, v{Gn}       ; (K7,K6)
        v_cvt_pk_bf16_f32 v{97+4*it}, v{Gn}, v46         ; (K5,K4)
        v_cvt_pk_bf16_f32 v{98+4*it}, v{G}, v{G}         ; (K3,K2)
        v_cvt_pk_bf16_f32 v{99+4*it}, v{G}, v{G}         ; (K1,K0)
        """)
    p(f"""
    L_{name}_g2:
    s_mul_i32 s42, s35, {KCC}
    s_lshl_b32 s43, s36, 11                   ; 128*hf*16
    s_sub_u32 s42, s42, s43
    s_add_u32 s42, s42, {255*16}
    v_lshlrev_b32 v27, 4, v1
    v_sub_u32 v27, s42, v27                   ; it = 0
    v_subrev_u32 v28, 1024, v27               ; it = 1
    ds_write_b128 v27, v[96:99]
    ds_write_b128 v28, v[100:103]
    s_waitcnt lgkmcnt(0)
    s_barrier                                 ; 2
    ds_read_b64 v[104:105], v27 offset:16
    ds_read_b64 v[108:109], v28 offset:16
    """)
    p.stamp()
    p(f"""
    v_and_b32 v36, 3, v1                      ; rr & 3
    v_bfe_u32 v35, v1, 2, 1                   ; rr >> 2
    v_bfe_u32 v37, v1, 3, 1                   ; qq
    v_lshrrev_b32 v38, 4, v1                  ; kg
    v_sub_u32 v36, 3, v36
    s_movk_i32 s43, {KCS}
    v_mul_u32_u24 v36, s43, v36
    v_sub_u32 v39, v38, v37
    v_lshl_add_u32 v36, v39, 4, v36
    v_sub_u32 v35, 1, v35
    v_lshl_add_u32 v36, v35, 3, v36
    s_mul_i32 s42, s35, {KCC}
    s_add_u32 s42, s42, {16*253 - 3584}
    s_lshl_b32 s43, s36, 8                    ; 64 * 4 hf
    s_sub_u32 s42, s42, s43
    v_add_u32 v24, s42, v36
    v_and_b32 v36, 15, v1                     ; cc
    v_lshlrev_b32 v36, 5, v36
    v_lshl_add_u32 v36, v38, 4, v36
    s_mul_i32 s42, s35, 4608
    s_add_u32 s42, s42, {UL0 + 480}
    s_sub_u32 s42, s42, s43
    v_add_u32 v25, s42, v36
    """)
    for it in range(2):
        own = 96 + 4*it; nb = 104 + 4*it
        adr = 27 + it
        a = [own, own+1, own+2, own+3, nb, nb+1]
        Bb = 112 + 16*it; Ao = 117 + 16*it; Bo = 121 + 16*it
        p(f"s_waitcnt lgkmcnt({1 - it})")
        for i in range(4): p(f"v_alignbit_b32 v{Bb+i}, v{a[i+1]}, v{a[i]}, 16")
        for i in range(1, 5): p(f"v_mov_b32 v{Ao+i}, v{a[i]}")
        for i in range(1, 5): p(f"v_alignbit_b32 v{Bo+i}, v{a[i+1]}, v{a[i]}, 16")
        p(f"ds_write_b128 v{adr}, {r4(Bb)} offset:{1*KCS}")
        p(f"ds_write_b128 v{adr}, {r4(Ao+1)} offset:{2*KCS}")
        p(f"ds_write_b128 v{adr}, {r4(Bo+1)} offset:{3*KCS}")
    p(f"""
    s_waitcnt lgkmcnt(0)
    s_barrier                                 ; 3
    """)
    p.stamp()
    def FA(s, i): return 64 + 64*s + 4*i
    def FB(s, i): return 96 + 64*s + 4*i
    def ACC(q): return 192 + 4*q
    def frag_reads(s, areg, breg):
        o = []
        for i in range(8):
            o.append(f"ds_read_b64 {r2(FA(s, i))}, v{areg} offset:{(7-i)*512}")
            o.append(f"ds_read_b64 {r2(FA(s, i)+2)}, v{areg} offset:{(7-i)*512 + 8}")
            o.append(f"ds_read_b128 {r4(FB(s, i))}, v{breg} offset:{i*512}")
        return o
    pairs = []
    for s in range(8):
        for j in range(s + 1):
            if s + j <= 7:
                pairs.append((s, j))
                if j < s: pairs.append((j, s))
    for x in frag_reads(0, 24, 25): p(x)
    first = [True]*8
    for rho in range(4):
        s = rho & 1
        nxt = []
        if rho < 3:
            p(f"v_subrev_u32 v{28+2*(rho&1)}, {64*(rho+1)}, v24")
            p(f"v_subrev_u32 v{29+2*(rho&1)}, {64*(rho+1)}, v25")
            nxt = frag_reads(1 - s, 28 + 2*(rho & 1), 29 + 2*(rho & 1))
        ni = 0
        shell_done = -1
        pf_start = 12 if rho == 0 else 1
        for n, (i, j) in enumerate(pairs):
            sh = max(i, j)
            if rho == 0:
                if sh > shell_done and sh <= 3:
                    p(f"s_waitcnt lgkmcnt({min(15, 21 - 3*sh) if sh < 3 else 0})"); shell_done = sh
            elif n == 0:
                p("s_waitcnt lgkmcnt(0)")
            q = i + j
            c_in = "0" if first[q] else r4(ACC(q))
            first[q] = False
            p(f"v_mfma_f32_16x16x32_bf16 {r4(ACC(q))}, {r4(FA(s, i))}, {r4(FB(s, j))}, {c_in}")
            if n >= pf_start and ni < len(nxt): p(nxt[ni]); ni += 1
        assert ni == len(nxt), (rho, ni)
    p.stamp()
    p(f"""
    s_lshl_b32 s42, s53, 13
    s_add_u32 s42, s42, {EX}
    v_lshl_add_u32 v28, v1, 4, s42
    s_cmp_lg_u32 s36, 0
    s_cbranch_scc1 L_{name}_x1
    """)
    for q in range(2, 8): p(f"ds_write_b128 v28, {r4(ACC(q))} offset:{1024*q}")
    for r in range(8): p(f"v_mov_b32 v{64+r}, v{ACC(0)+r}")
    p(f"s_branch L_{name}_x2\nL_{name}_x1:")
    for q in (0, 1, 2, 3, 6, 7): p(f"ds_write_b128 v28, {r4(ACC(q))} offset:{1024*q}")
    for r in range(8): p(f"v_mov_b32 v{64+r}, v{ACC(4)+r}")
    p(f"""
    L_{name}_x2:
    s_xor_b32 s42, s53, 1
    s_lshl_b32 s42, s42, 13
    s_lshl_b32 s43, s36, 12
    s_add_u32 s42, s42, s43
    s_add_u32 s42, s42, {EX}
    v_lshl_add_u32 v29, v1, 4, s42
    s_waitcnt lgkmcnt(0)
    s_barrier                                 ; 4
    ds_read_b128 v[72:75], v29
    ds_read_b128 v[76:79], v29 offset:1024
    s_lshl_b32 s44, s36, 2
    s_waitcnt lgkmcnt(0)
    """)
    for q in range(4): p(f"v_pk_add_f32 {r2(64+2*q)}, {r2(64+2*q)}, {r2(72+2*q)}")
    p(f"s_branch L_{name}_fin")
    p(f"L_{name}_V:")
    if "notouch" not in exp:
        p(f"""
        v_mov_b32 v26, {TOUCH_OFF}
        v_mov_b32 v27, 128
        global_load_dword v28, v26, s[26:27]
        global_load_dword v29, v27, s[24:25]
        """)
    for i in range(8):
        p(f"global_load_dword v{2+i}, v25, s[4:5] offset:{(i-4)*896}" + (" sc1" if "gsc1" in exp else " nt" if "gnt" in exp else ""))
    p.stamp(2)
    p(f"""
    v_mov_b32 v31, 0
    s_mov_b32 s47, 0
    s_cmp_lg_u32 s33, 4
    s_cbranch_scc1 L_{name}_go
    s_waitcnt vmcnt(0)
    L_{name}_poll:
    global_load_dword v24, v31, s[24:25] sc1
    s_waitcnt vmcnt(0)
    v_readfirstlane_b32 s48, v24
    s_add_u32 s47, s47, 1
    s_cmp_ge_u32 s48, 32
    s_cbranch_scc1 L_{name}_go
    s_cmp_ge_u32 s47, 0x40000
    s_cbranch_scc1 L_{name}_go
    s_sleep {SLP}
    s_branch L_{name}_poll
    L_{name}_go:
    v_and_b32 v25, 255, v0
    v_lshlrev_b32 v25, 5, v25
    v_add_u32 v25, {STATS_OFF}, v25
    v_and_b32 v24, 255, v0
    v_lshlrev_b32 v24, 4, v24                 ; tid'*16
    """)
    p.stamp(3)
    p(f"""
    s_barrier                                 ; 1
    global_load_dwordx4 v[16:19], v25, s[26:27] sc1
    global_load_dwordx4 v[20:23], v25, s[26:27] offset:16 sc1
    """)
    p.stamp(4)
    p.stamp(5)
    p(f"""
    s_barrier                                 ; 2
    s_waitcnt vmcnt(0)
    """)
    p.stamp(6)
    for i in range(8):
        S = 16 + i; X = 2 + i
        u0 = 48 + i; u1 = 56 + i
        t = 32 + 4*(i & 1)
        p(f"""
        v_lshlrev_b32 v{t}, 16, v{S}              ; mean
        v_and_b32 v{t+1}, s46, v{S}               ; std
        v_rcp_f32 v{t+1}, v{t+1}
        v_lshlrev_b32 v{t+2}, 16, v{X}
        v_and_b32 v{t+3}, s46, v{X}
        v_sub_f32 v{t+2}, v{t+2}, v{t}
        v_sub_f32 v{t+3}, v{t+3}, v{t}
        v_cvt_pk_bf16_f32 v{t+2}, v{t+2}, v{t+3}
        v_lshlrev_b32 v{t+3}, 16, v{t+2}
        v_and_b32 v{t+2}, s46, v{t+2}
        v_mul_f32 v{u0}, v{t+3}, v{t+1}
        v_mul_f32 v{u1}, v{t+2}, v{t+1}
        """)
    p("s_mov_b32 s48, 0x05040100\ns_mov_b32 s49, 0x07060302")
    for j in range(4):
        p(f"v_cvt_pk_bf16_f32 v{64+j}, v{48+2*j}, v{49+2*j}")
        p(f"v_cvt_pk_bf16_f32 v{68+j}, v{56+2*j}, v{57+2*j}")
        p(f"v_perm_b32 v{72+j}, v{3+2*j}, v{2+2*j}, s48")
        p(f"v_perm_b32 v{76+j}, v{3+2*j}, v{2+2*j}, s49")
    p(f"""
    v_add_u32 v33, {UL0 + 512}, v24
    ds_write_b128 v33, v[64:67]
    ds_write_b128 v33, v[68:71] offset:4608
    ds_write_b128 v33, v[72:75] offset:{XL0 - UL0 - 512}
    ds_write_b128 v33, v[76:79] offset:{XL0 + 4096 - UL0 - 512}
    s_cmp_lg_u32 s33, 4
    s_cbranch_scc1 L_{name}_nopad
    v_mov_b32 v60, 0
    v_mov_b32 v61, 0
    v_mov_b32 v62, 0
    v_mov_b32 v63, 0
    v_lshrrev_b32 v34, 5, v1
    s_movk_i32 s43, 4608
    v_mul_u32_u24 v34, s43, v34
    v_and_b32 v35, 31, v1
    v_lshl_add_u32 v34, v35, 4, v34
    v_add_u32 v34, {UL0}, v34
    ds_write_b128 v34, v[60:63]
    L_{name}_nopad:
    s_waitcnt lgkmcnt(0)
    """)
    p.stamp(7)
    p(f"""
    s_barrier                                 ; 3
    s_lshl_b32 s42, s35, 14                   ; c * 16384
    s_lshl_b32 s43, s36, 12                   ; 4hf * 1024
    s_add_u32 s42, s42, s43
    s_add_u32 s42, s42, {EX + 2048}
    v_lshl_add_u32 v29, v1, 4, s42
    s_barrier                                 ; 4
    ds_read_b128 v[64:67], v29
    ds_read_b128 v[68:71], v29 offset:1024
    ds_read_b128 v[72:75], v29 offset:8192
    ds_read_b128 v[76:79], v29 offset:{8192 + 1024}
    s_lshl_b32 s44, s36, 2
    s_add_u32 s44, s44, 2
    s_waitcnt lgkmcnt(0)
    """)
    for q in range(4): p(f"v_pk_add_f32 {r2(64+2*q)}, {r2(64+2*q)}, {r2(72+2*q)}")
    p(f"""
    L_{name}_fin:
    v_and_b32 v30, 15, v1
    v_lshlrev_b32 v30, 5, v30
    v_lshrrev_b32 v31, 4, v1
    v_lshl_add_u32 v30, v31, 3, v30
    s_lshl_b32 s44, s44, 9                    ; q0 * 512 B
    v_add_u32 v30, s44, v30
    s_mul_i32 s42, s35, 4608
    s_add_u32 s42, s42, {UL0 + 512}
    v_add_u32 v32, s42, v30                   ; u address
    s_lshl_b32 s42, s35, 12
    s_add_u32 s42, s42, {XL0}
    v_add_u32 v33, s42, v30                   ; x address
    ds_read_b64 v[80:81], v32
    ds_read_b64 v[82:83], v32 offset:512
    ds_read_b64 v[84:85], v33
    ds_read_b64 v[86:87], v33 offset:512
    s_lshl_b32 s42, s37, 12
    s_add_u32 s42, s42, {HT_OFF}
    v_add_u32 v35, s42, v30
    v_mov_b32 v36, s41                        ; Dskip
    s_waitcnt lgkmcnt(0)
    """)
    for j in range(2):
        u = 80 + 2*j; x = 84 + 2*j; y = 64 + 4*j
        t = 40 + 8*j
        p(f"""
        v_lshlrev_b32 v{t}, 16, v{u}
        v_and_b32 v{t+1}, s46, v{u}
        v_lshlrev_b32 v{t+2}, 16, v{u+1}
        v_and_b32 v{t+3}, s46, v{u+1}
        v_lshlrev_b32 v{t+4}, 16, v{x}
        v_and_b32 v{t+5}, s46, v{x}
        v_lshlrev_b32 v{t+6}, 16, v{x+1}
        v_and_b32 v{t+7}, s46, v{x+1}
        v_pk_fma_f32 {r2(y)}, {r2(t)}, v[36:37], {r2(y)} op_sel_hi:[1,0,1]
        v_pk_fma_f32 {r2(y+2)}, {r2(t+2)}, v[36:37], {r2(y+2)} op_sel_hi:[1,0,1]
        v_pk_add_f32 {r2(y)}, {r2(y)}, {r2(t+4)}
        v_pk_add_f32 {r2(y+2)}, {r2(y+2)}, {r2(t+6)}
        v_cvt_pk_bf16_f32 v{56+2*j}, v{y}, v{y+1}
        v_cvt_pk_bf16_f32 v{57+2*j}, v{y+2}, v{y+3}
        global_store_dwordx2 v35, {r2(56+2*j)}, s[26:27] offset:{512*j} {hsc}
        """)
    p.stamp()

def gen_k1b(name="k1_kernel", stamps=False, exp=""):
    p = Prog(); p.stamps_on = stamps
    if 'cyc' in exp: p.stamp_op = 's_memtime'
    if 'wl' in exp or 'w4' in exp: p.stamp_tid = (256 if "w4" in exp else 448)
    E = f"L_{name}_end"
    p.exp = exp
    p(f"""
    s_cmp_ge_u32 s2, 256
    s_cbranch_scc1 {E}
    """)
    p.stamp()
    p(f"""
    s_load_dwordx16 s[4:19], s[0:1], 0
    s_load_dwordx2 s[20:21], s[0:1], 64
    s_load_dwordx4 s[24:27], s[0:1], 112
    s_load_dwordx4 s[28:31], s[0:1], 80
    v_lshrrev_b32 v2, 6, v0
    v_and_b32 v1, 63, v0
    v_readfirstlane_b32 s33, v2
    s_cmp_lt_u32 s2, 32
    s_cbranch_scc1 L_{name}_spare
    s_sub_u32 s3, s2, 32
    """)
    gen_conv(p, name)
    if 'fine' in exp: p.nstamp = 12
    p.stamp_flush(STAMP_OFF, ws="s[26:27]")
    p(f"s_branch {E}")
    p(f"L_{name}_spare:")
    gen_spare_stats(p, name)
    gen_spare_cs(p, name)
    if stamps:
        p.stamp(5)
        p.nstamp = 6
        p.stamp_flush(STAMP_OFF, ws="s[26:27]", tag="b")
    p(f"""
    {E}:
    s_endpgm
    """)
    return kernel_text(name, p, vgpr=224, sgpr=96, denorm=(0 if 'ftz' in exp else 3))

K1B_LAUNCH = f"grid=(256,1,1) block=(512,1,1) lds={LDS_K1}"
if __name__ == "__main__":
    import sys
    s = f"; @launch kernel=k1_kernel {K1B_LAUNCH}\n" + '.amdgcn_target "amdgcn-amd-amdhsa--gfx950"\n.text\n' + gen_k1b(stamps=(len(sys.argv) > 2), exp=(sys.argv[2] if len(sys.argv) > 2 else ''))
    open(sys.argv[1], "w").write(s)
```

```python
from asmtool import *
from layout import *

def r4(b): return f"v[{b}:{b+3}]"
def r2(b): return f"v[{b}:{b+1}]"

def std_chain(p, mean, ex2, t, out_rstd):
    p(f"""
    v_fma_f32 v{ex2}, -v{mean}, v{mean}, v{ex2}
    v_max_f32 v{ex2}, 0, v{ex2}
    v_cvt_pk_bf16_f32 v{t}, v{ex2}, v{mean}
    v_and_b32 v{mean}, 0xffff0000, v{t}
    v_lshlrev_b32 v{t}, 16, v{t}
    v_add_f32 v{t}, s41, v{t}
    v_cvt_pk_bf16_f32 v{t}, v{t}, v{t}
    v_lshlrev_b32 v{t}, 16, v{t}
    v_sqrt_f32 v{t}, v{t}
    v_cvt_pk_bf16_f32 v{t}, v{t}, v{t}
    v_lshlrev_b32 v{t}, 16, v{t}
    """)
    if out_rstd is not None:
        p(f"v_rcp_f32 v{out_rstd}, v{t}")

def gen_k2_stats(p, name, tail='', sc=''):
    p(f"""
    s_waitcnt lgkmcnt(0)
    s_add_u32 s16, s12, {HT_OFF}
    s_addc_u32 s17, s13, 0
    s_mov_b32 s18, {HT_BYTES}
    s_mov_b32 s19, 0x20000
    v_and_b32 v2, 7, v0
    v_lshrrev_b32 v3, 3, v0
    v_lshlrev_b32 v4, 12, v3
    v_lshl_add_u32 v4, v2, 4, v4
    s_lshl_b32 s40, s2, 7
    v_add_u32 v4, s40, v4
    s_mov_b32 s42, 0
    """)
    for i in range(7):
        p(f"buffer_load_dwordx4 {r4(32+4*i)}, v4, s[16:19], s42 offen {sc}")
        p(f"s_add_u32 s42, s42, {64*4096}")
    for r in range(64, 80): p(f"v_mov_b32 v{r}, 0")
    p("s_mov_b32 s52, 0xffff0000")
    for i in range(7):
        p(f"s_waitcnt vmcnt({6-i})")
        for j in range(4):
            v = 32 + 4*i + j
            p(f"""
            v_lshlrev_b32 v16, 16, v{v}
            v_and_b32 v17, s52, v{v}
            v_pk_add_f32 {r2(64+2*j)}, {r2(64+2*j)}, v[16:17]
            v_pk_fma_f32 {r2(72+2*j)}, v[16:17], v[16:17], {r2(72+2*j)}
            """)
    for r in range(64, 80):
        p(f"v_add_f32_dpp v{r}, v{r}, v{r} row_ror:8 row_mask:0xf bank_mask:0xf")
    for r in range(64, 80):
        p(f"v_mov_b32 v{r-32}, v{r}")
    for r in range(64, 80):
        p(f"v_permlane16_swap_b32 v{r}, v{r-32}")
    for r in range(64, 80):
        p(f"v_add_f32 v{r}, v{r}, v{r-32}")
    for r in range(64, 80):
        p(f"v_mov_b32 v{r-32}, v{r}")
    for r in range(64, 80):
        p(f"v_permlane32_swap_b32 v{r}, v{r-32}")
    for r in range(64, 80):
        p(f"v_add_f32 v{r}, v{r}, v{r-32}")
    p(f"""
    v_lshrrev_b32 v5, 6, v0                   ; wave
    v_and_b32 v6, 63, v0
    v_lshlrev_b32 v7, 9, v5                   ; w*512
    v_lshl_add_u32 v7, v6, 5, v7              ; + lane*32
    s_mov_b64 s[56:57], exec
    s_mov_b64 exec, 0xff
    ds_write_b128 v7, v[64:67]
    ds_write_b128 v7, v[68:71] offset:16
    ds_write_b128 v7, v[72:75] offset:256
    ds_write_b128 v7, v[76:79] offset:272
    s_mov_b64 exec, s[56:57]
    s_waitcnt lgkmcnt(0)
    s_barrier
    s_cmp_lg_u32 s33, 0
    s_cbranch_scc1 L_{name}_stail
    v_lshlrev_b32 v7, 2, v6                   ; t*4
    """)
    for w in range(8):
        p(f"ds_read2st64_b32 {r2(32+2*w)}, v7 offset0:{2*w} offset1:{2*w+1}")
    p("s_waitcnt lgkmcnt(0)")
    for w in range(1, 8):
        p(f"v_pk_add_f32 v[32:33], v[32:33], {r2(32+2*w)}")
    p(f"""
    s_mov_b32 s40, 0x3b124925                 ; 1/448
    s_mov_b32 s41, 0x3727c5ac                 ; 1e-5
    v_mul_f32 v32, s40, v32
    v_mul_f32 v33, s40, v33
    """)
    std_chain(p, 32, 33, 34, 33)
    p(f"""
    s_lshl_b32 s40, s2, 9
    s_add_u32 s40, s40, {ST2_OFF}
    v_lshl_add_u32 v7, v6, 3, s40
    global_store_dwordx2 v7, v[32:33], s[12:13] sc1
    L_{name}_stail:
    """)
    if tail == "warm":
        p(f"""
        s_lshr_b32 s40, s2, 3
        s_mul_i32 s40, s40, {W_BYTES // 4}
        v_lshlrev_b32 v8, 4, v0
        v_add_u32 v8, s40, v8
        s_mov_b32 s16, s4
        s_mov_b32 s17, s5
        s_mov_b32 s18, {W_BYTES}
        s_mov_b32 s19, 0x20000
        s_mov_b32 s42, 0
        """)
        for i in range(49):
            p(f"buffer_load_dwordx4 {r4(96 + 4*(i % 16))}, v8, s[16:19], s42 offen")
            p(f"s_add_u32 s42, s42, 8192")
    p(f"""
    s_waitcnt vmcnt(0)
    s_branch L_{name}_end
    """)

def gen_k2(name="k2_kernel", stamps=False, exp=""):
    p = Prog(); p.stamps_on = stamps
    if 'cyc' in exp: p.stamp_op = 's_memtime'
    NSLOT = 6; SLOT = 24576
    def ACC(k, mt, nt): return 96 + (0 if k == "g" else 32) + 16*mt + 4*nt
    def SET(s, nm): return 32 + 32*s + {"G0": 0, "G1": 4, "U0": 8, "U1": 12, "X0": 16, "X1": 20, "X2": 24, "X3": 28}[nm]
    E = f"L_{name}_end"
    p(f"""
    s_cmp_ge_u32 s2, 256
    s_cbranch_scc1 {E}
    """)
    p.stamp()
    p(f"""
    s_load_dwordx4 s[8:11], s[0:1], 80
    s_load_dwordx2 s[12:13], s[0:1], 120      ; ws
    v_lshrrev_b32 v2, 6, v0
    v_and_b32 v1, 63, v0                      ; lane
    v_readfirstlane_b32 s33, v2
    s_cmp_lt_u32 s2, 32
    s_cbranch_scc1 L_{name}_stats
    s_sub_u32 s3, s2, 32
    s_and_b32 s34, s3, 7                      ; xcd
    s_lshr_b32 s35, s3, 3                     ; j
    s_and_b32 s36, s34, 3
    s_lshl_b32 s36, s36, 2
    s_and_b32 s37, s35, 3
    s_add_u32 s36, s36, s37                   ; rt
    s_lshr_b32 s37, s34, 2
    s_mul_i32 s37, s37, 7
    s_lshr_b32 s38, s35, 2
    s_add_u32 s37, s37, s38                   ; ct
    s_and_b32 s38, s33, 3                     ; fw
    s_lshr_b32 s39, s33, 2                    ; th
    v_lshrrev_b32 v4, 4, v1                   ; l>>4
    s_lshr_b32 s40, s33, 1
    s_and_b32 s40, s40, 1
    s_lshl_b32 s40, s40, 2
    v_or_b32 v5, s40, v4
    v_lshlrev_b32 v5, 1, v5
    v_and_b32 v6, 15, v1
    v_xor_b32 v5, v5, v6                      ; usrc
    v_lshlrev_b32 v5, 4, v5                   ; usrc*16
    s_lshl_b32 s40, s33, 2
    v_add_u32 v4, s40, v4                     ; row_local
    v_lshlrev_b32 v2, 12, v4                  ; *4096
    s_lshl_b32 s40, s36, 8
    v_add3_u32 v2, v2, v5, s40                ; vX
    s_movk_i32 s41, 3584
    v_mul_lo_u32 v3, v4, s41
    s_lshl_b32 s40, s37, 8
    v_add3_u32 v3, v3, v5, s40                ; vW
    s_lshl_b32 s42, s33, 10
    s_mov_b32 s50, {32*4096}
    s_mov_b32 s51, {32*3584}
    s_mov_b32 s18, {HT_BYTES}
    s_mov_b32 s19, 0x20000
    s_mov_b32 s22, {W_BYTES}
    s_mov_b32 s23, 0x20000
    s_mov_b32 s26, {W_BYTES}
    s_mov_b32 s27, 0x20000
    v_lshrrev_b32 v10, 4, v1
    v_lshlrev_b32 v10, 4, v10
    s_lshl_b32 s40, s37, 9
    s_lshl_b32 s41, s38, 7
    s_add_u32 s40, s40, s41
    s_add_u32 s40, s40, {CS_OFF}
    v_add_u32 v10, s40, v10
    v_add_u32 v11, {1792*4}, v10
    s_waitcnt lgkmcnt(0)
    """)
    p.stamp()
    p(f"""
    s_add_u32 s16, s12, {HT_OFF}
    s_addc_u32 s17, s13, 0
    s_mov_b32 s20, s8
    s_mov_b32 s21, s9
    s_mov_b32 s24, s10
    s_mov_b32 s25, s11
    global_load_dwordx4 v[160:163], v10, s[12:13]
    global_load_dwordx4 v[164:167], v10, s[12:13] offset:64
    global_load_dwordx4 v[168:171], v11, s[12:13]
    global_load_dwordx4 v[172:175], v11, s[12:13] offset:64
    """)
    def dma_parts(base):
        return [
            f"s_mov_b32 m0, {base}\ns_add_u32 s45, {base}, 8192\nbuffer_load_dwordx4 v2, s[16:19], 0 offen lds",
            f"s_mov_b32 m0, s45\ns_add_u32 s45, {base}, 16384\nbuffer_load_dwordx4 v3, s[20:23], 0 offen lds\nv_add_u32 v2, s50, v2",
            f"s_mov_b32 m0, s45\ns_nop 0\nbuffer_load_dwordx4 v3, s[24:27], 0 offen lds\nv_add_u32 v3, s51, v3",
        ]
    for c in range(NSLOT - 1):
        p(f"s_add_u32 s44, s42, {c*SLOT}")
        for d in dma_parts("s44"): p(d)
    p(f"""
    s_add_u32 s28, s12, {HF_OFF}
    s_addc_u32 s29, s13, 0
    s_mov_b32 s30, {HF_BYTES}
    s_mov_b32 s31, 0x20000
    v_lshrrev_b32 v10, 4, v1                  ; kg
    v_bfe_u32 v11, v1, 2, 2                   ; rr
    v_lshl_add_u32 v12, v10, 3, v11
    v_lshlrev_b32 v12, 8, v12                 ; (8kg+rr)*256
    v_and_b32 v13, 3, v1
    v_lshl_add_u32 v12, v13, 3, v12           ; + 8cc
    v_and_b32 v10, 1, v10
    v_lshl_or_b32 v11, v10, 2, v11            ; f
    """)
    for i in range(2):
        p(f"""
        s_lshl_b32 s40, s38, 1
        s_add_u32 s40, s40, {i}
        v_xor_b32 v13, s40, v11
        v_lshl_add_u32 v{4+i}, v13, 5, v12
        """)
    for i in range(4):
        p(f"""
        s_lshl_b32 s40, s39, 2
        s_add_u32 s40, s40, {i}
        v_xor_b32 v13, s40, v11
        v_lshl_add_u32 v{6+i}, v13, 5, v12
        """)
    for i in range(6): p(f"v_add_u32 v{20+i}, {SLOT}, v{4+i}")
    for r in range(96, 160): p(f"v_mov_b32 v{r}, 0")
    def rd(s, nm, h, abase=None):
        if "noread" in exp: return ""
        if abase is None: abase = 20 + 6*(1 - s)
        if nm[0] == "G": areg, sub = abase + int(nm[1]), 8192
        elif nm[0] == "U": areg, sub = abase + int(nm[1]), 16384
        else: areg, sub = abase + 2 + int(nm[1]), 0
        b = SET(s, nm) + 2*h
        return f"ds_read_b64_tr_b16 {r2(b)}, v{areg} offset:{sub + 1024*h}"
    def mf(s, k, mt, nt):
        if "nomfma" in exp: return ""
        acc = ACC(k, mt, nt)
        a = SET(s, ("G" if k == "g" else "U") + str(mt)); b = SET(s, f"X{nt}")
        return f"v_mfma_f32_16x16x32_bf16 {r4(acc)}, {r4(a)}, {r4(b)}, {r4(acc)}"
    RD_ORDER = ["G0", "X0", "U0", "X1", "G1", "U1", "X2", "X3"]
    MF_ORDER = [("g",0,0), ("u",0,0), ("g",0,1), ("u",0,1), ("g",1,0), ("g",1,1), ("u",1,0), ("u",1,1),
                ("g",0,2), ("u",0,2), ("g",1,2), ("u",1,2), ("g",0,3), ("u",0,3), ("g",1,3), ("u",1,3)]
    PRE = NSLOT - 1
    p(f"""
    s_waitcnt vmcnt({3*(PRE-1)})
    s_barrier
    """)
    p.stamp()
    for nm in RD_ORDER:
        for h in range(2): p(rd(0, nm, h, abase=4))
    bar = "" if "nobar" in exp else "s_barrier"
    vmw = "" if "nodma" in exp else f"s_waitcnt vmcnt({3*(PRE-2)})"
    p(f"""
    s_mov_b32 s48, 0                          ; iteration
    s_mov_b32 s53, {2*SLOT}
    s_add_u32 s54, s42, {PRE*SLOT}
    L_{name}_loop:
    """)
    need_rd = {"G0": 1, "X0": 3, "U0": 5, "X1": 7, "G1": 9, "U1": 11, "X2": 13, "X3": 15}
    def chunk(s):
        dp = ["", "", ""] if "nodma" in exp else dma_parts("s54")
        reads = [rd(1 - s, nm, h) for nm in RD_ORDER for h in range(2)]
        done = -1
        other = 20 + 6*(1 - s)
        for i in range(16):
            k, mt, nt = MF_ORDER[i]
            need = max(need_rd[("G" if k == "g" else "U") + str(mt)], need_rd[f"X{nt}"])
            if need > done:
                allowed = (15 - need) + i
                if "noread" not in exp: p(f"s_waitcnt lgkmcnt({min(allowed, 15)})")
                done = need
            p(mf(s, k, mt, nt))
            if i == 0:
                p(vmw); p(bar)
            p(reads[i])
            if i in (2, 5, 8): p(dp[(i - 2)//3])
            if 10 <= i <= 15: p(f"v_add_u32 v{other + i - 10}, s53, v{4 + i - 10}")
            if i == 9:
                p(f"""
                s_add_u32 s54, s54, {SLOT}
                s_sub_u32 s55, s54, s42
                s_cmp_eq_u32 s55, {NSLOT*SLOT}
                s_cselect_b32 s54, s42, s54
                """)
        p(f"""
        s_add_u32 s53, s53, {SLOT}
        s_cmp_eq_u32 s53, {NSLOT*SLOT}
        s_cselect_b32 s53, 0, s53
        """)
    chunk(0)
    chunk(1)
    p(f"""
    s_add_u32 s48, s48, 1
    s_cmp_lt_u32 s48, 7
    s_cbranch_scc1 L_{name}_loop
    """)
    p.stamp()
    p(f"""
    v_and_b32 v10, 15, v1
    s_lshl_b32 s40, s36, 7
    s_lshl_b32 s41, s39, 6
    s_add_u32 s40, s40, s41
    v_add_u32 v10, s40, v10
    v_lshlrev_b32 v10, 3, v10
    v_add_u32 v10, {ST2_OFF}, v10
    s_mov_b32 s58, 0
    L_{name}_poll:
    global_load_dwordx2 v[32:33], v10, s[12:13] sc1
    global_load_dwordx2 v[34:35], v10, s[12:13] offset:128 sc1
    global_load_dwordx2 v[36:37], v10, s[12:13] offset:256 sc1
    global_load_dwordx2 v[38:39], v10, s[12:13] offset:384 sc1
    s_waitcnt vmcnt(0)
    v_max_u32 v40, v32, v33
    v_max3_u32 v40, v40, v34, v35
    v_max3_u32 v40, v40, v36, v37
    v_max3_u32 v40, v40, v38, v39
    v_cmp_eq_u32 vcc, -1, v40
    s_add_u32 s58, s58, 1
    s_cmp_ge_u32 s58, 0x40000
    s_cbranch_scc1 L_{name}_got
    s_cbranch_vccz L_{name}_got
    s_sleep 2
    s_branch L_{name}_poll
    L_{name}_got:
    s_mov_b32 s40, 0xbfb8aa3b                 ; -log2(e)
    """)
    for nt in range(4):
        m, r = 32 + 2*nt, 33 + 2*nt
        p(f"""
        v_mul_f32 v{40+nt}, s40, v{r}
        v_mul_f32 v{48+nt}, -v{r}, v{m}
        v_mul_f32 v{44+nt}, -v{40+nt}, v{m}
        """)
    p.stamp()
    p(f"""
    s_lshl_b32 s40, s36, 3
    s_lshl_b32 s41, s39, 2
    s_add_u32 s40, s40, s41
    s_mul_i32 s40, s40, 56
    s_lshl_b32 s41, s37, 2
    s_add_u32 s40, s40, s41
    s_add_u32 s40, s40, s38
    s_lshl_b32 s40, s40, 10
    v_lshl_add_u32 v24, v1, 4, s40
    s_mov_b32 s41, 0
    """)
    CSG = 160; CSU = 168
    for nt in range(4):
        a, b, rb, rs = 40 + nt, 44 + nt, 48 + nt, 33 + 2*nt
        out = 52 + 4*(nt & 1)
        for mt in range(2):
            g = ACC("g", mt, nt); u = ACC("u", mt, nt)
            for r in range(4):
                p(f"v_mul_f32 v{g+r}, v{a}, v{g+r}")
                p(f"v_mul_f32 v{u+r}, v{rs}, v{u+r}")
            for r in range(4):
                p(f"v_fma_f32 v{g+r}, v{b}, v{CSG+4*mt+r}, v{g+r}")
                p(f"v_fma_f32 v{u+r}, v{rb}, v{CSU+4*mt+r}, v{u+r}")
            for r in range(4): p(f"v_exp_f32 v{g+r}, v{g+r}")
        for mt in range(2):
            g = ACC("g", mt, nt)
            for r in range(4): p(f"v_add_f32 v{g+r}, 1.0, v{g+r}")
        for mt in range(2):
            g = ACC("g", mt, nt)
            for r in range(4): p(f"v_rcp_f32 v{g+r}, v{g+r}")
        for mt in range(2):
            g = ACC("g", mt, nt); u = ACC("u", mt, nt)
            for r in range(4): p(f"v_mul_f32 v{u+r}, v{u+r}, v{g+r}")
        for mt in range(2):
            u = ACC("u", mt, nt)
            p(f"v_cvt_pk_bf16_f32 v{out+2*mt}, v{u}, v{u+1}")
            p(f"v_cvt_pk_bf16_f32 v{out+2*mt+1}, v{u+2}, v{u+3}")
        p(f"buffer_store_dwordx4 {r4(out)}, v24, s[28:31], s41 offen")
        p(f"s_add_u32 s41, s41, {56*1024}")
    p.stamp()
    p.stamp_flush(STAMP_OFF + 0x4000)
    p(f"s_branch {E}")
    p(f"L_{name}_stats:")
    gen_k2_stats(p, name)
    p(f"""
    {E}:
    s_endpgm
    """)
    return kernel_text(name, p, vgpr=176, sgpr=96)

K2_LAUNCH = "grid=(256,1,1) block=(512,1,1) lds=147456"
if __name__ == "__main__":
    import sys
    s = f"; @launch kernel=k2_kernel {K2_LAUNCH}\n" + '.amdgcn_target "amdgcn-amd-amdhsa--gfx950"\n.text\n' + gen_k2(stamps=(len(sys.argv) > 2), exp=(sys.argv[2] if len(sys.argv) > 2 else ''))
    open(sys.argv[1], "w").write(s)
```

```python
from asmtool import *
from layout import *
from k2 import std_chain, gen_k2_stats, r4, r2

class VM:
    def __init__(self, p): self.p = p; self.ops = []
    def issue(self, tag, n=1): self.ops += [tag] * n
    def count_after(self, tags):
        last = max(i for i, t in enumerate(self.ops) if t in tags)
        return len(self.ops) - 1 - last
    def wait(self, *tags, extra=""):
        n = self.count_after(set(tags))
        assert n <= 63
        self.p(f"s_waitcnt vmcnt({n}){extra}")

def gen_k23(name="k23_kernel", stamps=False, exp=""):
    p = Prog(); p.stamps_on = stamps
    if 'cyc' in exp: p.stamp_op = 's_memtime'
    if 'wl' in exp: p.stamp_tid = 448
    NSLOT = 6; SLOT = 24576; EBASE = NSLOT * SLOT
    def ACC(k, mt, nt): return 96 + (0 if k == "g" else 32) + 16*mt + 4*nt
    def SET(s, nm): return 32 + 32*s + {"G0": 0, "G1": 4, "U0": 8, "U1": 12, "X0": 16, "X1": 20, "X2": 24, "X3": 28}[nm]
    E = f"L_{name}_end"
    p(f"""
    s_cmp_ge_u32 s2, 256
    s_cbranch_scc1 {E}
    """)
    p.stamp()
    p(f"""
    s_load_dwordx4 s[8:11], s[0:1], 80
    s_load_dwordx2 s[12:13], s[0:1], 120      ; ws
    s_load_dwordx4 s[4:7], s[0:1], 96
    v_lshrrev_b32 v2, 6, v0
    v_and_b32 v1, 63, v0                      ; lane
    v_readfirstlane_b32 s33, v2
    s_cmp_lt_u32 s2, 32
    s_cbranch_scc1 L_{name}_stats
    s_sub_u32 s3, s2, 32
    s_and_b32 s34, s3, 7                      ; xcd
    s_lshr_b32 s35, s3, 3                     ; j
    s_and_b32 s36, s34, 3
    s_lshl_b32 s36, s36, 2
    s_and_b32 s37, s35, 3
    s_add_u32 s36, s36, s37                   ; rt
    s_lshr_b32 s59, s34, 2                    ; ch
    s_mul_i32 s37, s59, 7
    s_lshr_b32 s60, s35, 2                    ; dc (0..6)
    s_add_u32 s37, s37, s60                   ; ct
    s_and_b32 s38, s33, 3
    s_lshr_b32 s39, s33, 2                    ; th
    v_lshrrev_b32 v4, 4, v1                   ; l>>4
    s_lshr_b32 s40, s33, 1
    s_and_b32 s40, s40, 1
    s_lshl_b32 s40, s40, 2
    v_or_b32 v5, s40, v4
    v_lshlrev_b32 v5, 1, v5
    v_and_b32 v6, 15, v1
    v_xor_b32 v5, v5, v6                      ; usrc
    v_lshlrev_b32 v5, 4, v5                   ; usrc*16
    s_lshl_b32 s40, s33, 2
    v_add_u32 v4, s40, v4                     ; row_local
    v_lshlrev_b32 v2, 12, v4                  ; *4096
    s_lshl_b32 s40, s36, 8
    v_add3_u32 v2, v2, v5, s40                ; vX
    s_movk_i32 s41, 3584
    v_mul_lo_u32 v3, v4, s41
    s_lshl_b32 s40, s37, 8
    v_add3_u32 v3, v3, v5, s40                ; vW
    s_lshl_b32 s42, s33, 10
    s_mov_b32 s50, {32*4096}
    s_mov_b32 s51, {32*3584}
    s_mov_b32 s18, {HT_BYTES}
    s_mov_b32 s19, 0x20000
    s_mov_b32 s22, {W_BYTES}
    s_mov_b32 s23, 0x20000
    s_mov_b32 s26, {W_BYTES}
    s_mov_b32 s27, 0x20000
    v_lshrrev_b32 v10, 4, v1
    v_lshlrev_b32 v10, 4, v10
    s_lshl_b32 s40, s37, 9
    s_lshl_b32 s41, s38, 7
    s_add_u32 s40, s40, s41
    s_add_u32 s40, s40, {CS_OFF}
    v_add_u32 v10, s40, v10
    v_add_u32 v11, {1792*4}, v10
    s_waitcnt lgkmcnt(0)
    """)
    p.stamp()
    p(f"""
    s_add_u32 s16, s12, {HT_OFF}
    s_addc_u32 s17, s13, 0
    s_mov_b32 s20, s8
    s_mov_b32 s21, s9
    s_mov_b32 s24, s10
    s_mov_b32 s25, s11
    global_load_dwordx4 v[160:163], v10, s[12:13]
    global_load_dwordx4 v[164:167], v10, s[12:13] offset:64
    global_load_dwordx4 v[168:171], v11, s[12:13]
    global_load_dwordx4 v[172:175], v11, s[12:13] offset:64
    """)
    def dma_parts(base):
        return [
            f"s_mov_b32 m0, {base}\ns_add_u32 s45, {base}, 8192\nbuffer_load_dwordx4 v2, s[16:19], 0 offen lds",
            f"s_mov_b32 m0, s45\ns_add_u32 s45, {base}, 16384\nbuffer_load_dwordx4 v3, s[20:23], 0 offen lds\nv_add_u32 v2, s50, v2",
            f"s_mov_b32 m0, s45\ns_nop 0\nbuffer_load_dwordx4 v3, s[24:27], 0 offen lds\nv_add_u32 v3, s51, v3",
        ]
    PRE = NSLOT - 1
    for c in range(PRE):
        p(f"s_add_u32 s44, s42, {c*SLOT}")
        for d in dma_parts("s44"): p(d)
    p(f"""
    s_add_u32 s28, s12, {HF_OFF}
    s_addc_u32 s29, s13, 0
    s_mov_b32 s30, {HF_BYTES}
    s_mov_b32 s31, 0x20000
    s_mov_b32 s8, s4
    s_mov_b32 s9, s5
    s_mov_b32 s10, {W_BYTES}
    s_mov_b32 s11, 0x20000
    s_mov_b32 s4, s6
    s_mov_b32 s5, s7
    s_mov_b32 s6, {X_BYTES}
    s_mov_b32 s7, 0x20000
    v_lshrrev_b32 v10, 3, v1
    s_lshl_b32 s40, s38, 3
    v_add_u32 v10, s40, v10
    s_movk_i32 s41, 896
    v_mul_lo_u32 v10, v10, s41
    v_lshrrev_b32 v11, 4, v1
    v_lshlrev_b32 v11, 1, v11
    v_and_b32 v12, 7, v1
    v_xor_b32 v11, v11, v12
    v_lshlrev_b32 v11, 4, v11
    s_lshl_b32 s40, s60, 7
    v_add3_u32 v10, v10, v11, s40             ; vWd
    v_lshrrev_b32 v14, 4, v1                  ; kg
    v_bfe_u32 v11, v1, 2, 2                   ; rr
    v_lshl_add_u32 v12, v14, 3, v11
    v_lshlrev_b32 v12, 8, v12                 ; (8kg+rr)*256
    v_and_b32 v13, 3, v1
    v_lshl_add_u32 v12, v13, 3, v12           ; + 8cc
    v_and_b32 v14, 1, v14
    v_lshl_or_b32 v11, v14, 2, v11            ; f
    """)
    for i in range(2):
        p(f"""
        s_lshl_b32 s40, s38, 1
        s_add_u32 s40, s40, {i}
        v_xor_b32 v13, s40, v11
        v_lshl_add_u32 v{4+i}, v13, 5, v12
        """)
    for i in range(4):
        p(f"""
        s_lshl_b32 s40, s39, 2
        s_add_u32 s40, s40, {i}
        v_xor_b32 v13, s40, v11
        v_lshl_add_u32 v{6+i}, v13, 5, v12
        """)
    for i in range(6): p(f"v_add_u32 v{20+i}, {SLOT}, v{4+i}")
    for r in range(96, 160): p(f"v_mov_b32 v{r}, 0")
    def rd(s, nm, h, abase=None):
        if abase is None: abase = 20 + 6*(1 - s)
        if nm[0] == "G": areg, sub = abase + int(nm[1]), 8192
        elif nm[0] == "U": areg, sub = abase + int(nm[1]), 16384
        else: areg, sub = abase + 2 + int(nm[1]), 0
        b = SET(s, nm) + 2*h
        return f"ds_read_b64_tr_b16 {r2(b)}, v{areg} offset:{sub + 1024*h}"
    def mf(s, k, mt, nt):
        acc = ACC(k, mt, nt)
        a = SET(s, ("G" if k == "g" else "U") + str(mt)); b = SET(s, f"X{nt}")
        return f"v_mfma_f32_16x16x32_bf16 {r4(acc)}, {r4(a)}, {r4(b)}, {r4(acc)}"
    RD_ORDER = ["G0", "X0", "U0", "X1", "G1", "U1", "X2", "X3"]
    MF_ORDER = [("g",0,0), ("u",0,0), ("g",0,1), ("u",0,1), ("g",1,0), ("g",1,1), ("u",1,0), ("u",1,1),
                ("g",0,2), ("u",0,2), ("g",1,2), ("u",1,2), ("g",0,3), ("u",0,3), ("g",1,3), ("u",1,3)]
    need_rd = {"G0": 1, "X0": 3, "U0": 5, "X1": 7, "G1": 9, "U1": 11, "X2": 13, "X3": 15}
    p(f"""
    s_waitcnt vmcnt({3*(PRE-1)})
    s_barrier
    """)
    p.stamp()
    for nm in RD_ORDER:
        for h in range(2): p(rd(0, nm, h, abase=4))
    p(f"""
    s_mov_b32 s48, 0                          ; iteration
    s_mov_b32 s53, {2*SLOT}
    s_add_u32 s54, s42, {PRE*SLOT}
    L_{name}_loop:
    """)
    def chunk(s, vmw, dp, last=False, static_c=None, hooks={}):
        reads = [] if last else [rd(1 - s, nm, h) for nm in RD_ORDER for h in range(2)]
        done = -1
        other = 20 + 6*(1 - s)
        for i in range(16):
            k, mt, nt = MF_ORDER[i]
            need = max(need_rd[("G" if k == "g" else "U") + str(mt)], need_rd[f"X{nt}"])
            if need > done:
                allowed = (15 - need) + (0 if last else i)
                p(f"s_waitcnt lgkmcnt({min(allowed, 15)})")
                done = need
            p(mf(s, k, mt, nt))
            if i == 0:
                vmw(); p("s_barrier")
            if not last: p(reads[i])
            if i in (2, 5, 8): dp((i - 2)//3)
            if i in hooks: hooks[i]()
            if 10 <= i <= 15 and not last:
                if static_c is None: p(f"v_add_u32 v{other + i - 10}, s53, v{4 + i - 10}")
                elif static_c + 2 <= 13: p(f"v_add_u32 v{other + i - 10}, {((static_c + 2) % NSLOT)*SLOT}, v{4 + i - 10}")
            if i == 9 and static_c is None:
                p(f"""
                s_add_u32 s54, s54, {SLOT}
                s_sub_u32 s55, s54, s42
                s_cmp_eq_u32 s55, {NSLOT*SLOT}
                s_cselect_b32 s54, s42, s54
                """)
        if static_c is None:
            p(f"""
            s_add_u32 s53, s53, {SLOT}
            s_cmp_eq_u32 s53, {NSLOT*SLOT}
            s_cselect_b32 s53, 0, s53
            """)
    loop_dp = dma_parts("s54")
    for s in range(2):
        chunk(s, lambda: p(f"s_waitcnt vmcnt({3*(PRE-2)})"), lambda j: p(loop_dp[j]))
    p(f"""
    s_add_u32 s48, s48, 1
    s_cmp_lt_u32 s48, 4
    s_cbranch_scc1 L_{name}_loop
    """)
    vm = VM(p)
    for c in range(13): vm.issue(f"c{c}", 3)
    def kstep_soff(s): return s * 32 * 896
    def wd_piece(lds_base, s_th0, s_th1, tag):
        a, b = kstep_soff(s_th0), kstep_soff(s_th1)
        p(f"""
        s_mul_i32 s46, s39, {b - a}
        s_add_u32 m0, s42, {lds_base}
        s_add_u32 s46, s46, {a}
        buffer_load_dwordx4 v10, s[8:11], s46 offen lds
        """)
        vm.issue(tag)
    stage = [(kq, n) for kq in range(4) for n in range(4)]
    def stage_ks(i): return 14*stage[i][0] + stage[i][1]
    def final_ks(L): return 14*(L // 10) + 4 + (L % 10)
    for j in range(2):
        wd_piece(EBASE + 8192*j, stage_ks(2*j), stage_ks(2*j + 1), "E")
    def tail_dp(c):
        if c == 8:
            parts = dma_parts("s44")
            def f(j):
                if j == 0: p(f"s_add_u32 s44, s42, {(13 % NSLOT)*SLOT}")
                p(parts[j]); vm.issue("c13")
            return f
        slot = (c - 1) % NSLOT
        def f(j):
            b0 = 2*j
            if c == 9:   ks = (stage_ks(4 + b0), stage_ks(4 + b0 + 1))
            elif c == 10: ks = (stage_ks(10 + b0), stage_ks(10 + b0 + 1))
            else:        ks = (final_ks(6*slot + b0), final_ks(6*slot + b0 + 1))
            wd_piece(slot*SLOT + 8192*j, ks[0], ks[1], f"w{c}")
        return f
    def stats_addr():
        p(f"""
        v_and_b32 v11, 15, v1
        s_lshl_b32 s40, s36, 7
        s_lshl_b32 s41, s39, 6
        s_add_u32 s40, s40, s41
        v_add_u32 v11, s40, v11
        v_lshlrev_b32 v11, 3, v11
        v_add_u32 v11, {ST2_OFF}, v11
        """)
    def stats_loads():
        for nt in range(4):
            p(f"global_load_dwordx2 {r2(176+2*nt)}, v11, s[12:13] offset:{128*nt} sc1")
        vm.issue("st", 4)
    for c in range(8, 14):
        last = (c == 13)
        vmw = (lambda c=c: vm.wait(f"c{c+1}")) if c < 13 else (lambda: None)
        hooks = {}
        if c == 11: hooks = {11: stats_addr}
        if c == 12: hooks = {11: stats_loads}
        chunk(c & 1, vmw, tail_dp(c), last=last, static_c=c, hooks=hooks)
    p.stamp()
    vm.wait("st")
    p(f"""
    s_mov_b32 s58, 0
    L_{name}_poll:
    v_max_u32 v184, v176, v177
    v_max3_u32 v184, v184, v178, v179
    v_max3_u32 v184, v184, v180, v181
    v_max3_u32 v184, v184, v182, v183
    v_cmp_eq_u32 vcc, -1, v184
    s_add_u32 s58, s58, 1
    s_cmp_ge_u32 s58, 0x40000
    s_cbranch_scc1 L_{name}_got
    s_cbranch_vccz L_{name}_got
    s_sleep 2
    global_load_dwordx2 v[176:177], v11, s[12:13] sc1
    global_load_dwordx2 v[178:179], v11, s[12:13] offset:128 sc1
    global_load_dwordx2 v[180:181], v11, s[12:13] offset:256 sc1
    global_load_dwordx2 v[182:183], v11, s[12:13] offset:384 sc1
    s_waitcnt vmcnt(0)
    s_branch L_{name}_poll
    L_{name}_got:
    s_mov_b32 s40, 0xbfb8aa3b                 ; -log2(e)
    """)
    for nt in range(4):
        m, r = 176 + 2*nt, 177 + 2*nt
        p(f"""
        v_mul_f32 v{184+nt}, s40, v{r}
        v_mul_f32 v{192+nt}, -v{r}, v{m}
        v_mul_f32 v{188+nt}, -v{184+nt}, v{m}
        """)
    p(f"""
    s_lshl_b32 s40, s36, 3
    s_lshl_b32 s41, s39, 2
    s_add_u32 s40, s40, s41
    s_mul_i32 s40, s40, 56
    s_lshl_b32 s41, s37, 2
    s_add_u32 s40, s40, s41
    s_add_u32 s40, s40, s38
    s_lshl_b32 s40, s40, 10
    v_lshl_add_u32 v11, v1, 4, s40
    s_mov_b32 s41, 0
    """)
    p.stamp()
    CSG = 160; CSU = 168
    for nt in range(4):
        a, b, rb, rs = 184 + nt, 188 + nt, 192 + nt, 177 + 2*nt
        out = 196 + 4*nt
        for mt in range(2):
            g = ACC("g", mt, nt); u = ACC("u", mt, nt)
            for r in range(4):
                p(f"v_mul_f32 v{g+r}, v{a}, v{g+r}")
                p(f"v_mul_f32 v{u+r}, v{rs}, v{u+r}")
            for r in range(4):
                p(f"v_fma_f32 v{g+r}, v{b}, v{CSG+4*mt+r}, v{g+r}")
                p(f"v_fma_f32 v{u+r}, v{rb}, v{CSU+4*mt+r}, v{u+r}")
            for r in range(4): p(f"v_exp_f32 v{g+r}, v{g+r}")
        for mt in range(2):
            g = ACC("g", mt, nt)
            for r in range(4): p(f"v_add_f32 v{g+r}, 1.0, v{g+r}")
        for mt in range(2):
            g = ACC("g", mt, nt)
            for r in range(4): p(f"v_rcp_f32 v{g+r}, v{g+r}")
        for mt in range(2):
            g = ACC("g", mt, nt); u = ACC("u", mt, nt)
            for r in range(4): p(f"v_mul_f32 v{u+r}, v{u+r}, v{g+r}")
        for mt in range(2):
            u = ACC("u", mt, nt)
            p(f"v_cvt_pk_bf16_f32 v{out+2*mt}, v{u}, v{u+1}")
            p(f"v_cvt_pk_bf16_f32 v{out+2*mt+1}, v{u+2}, v{u+3}")
        p(f"buffer_store_dwordx4 {r4(out)}, v11, s[28:31], s41 offen sc1")
        vm.issue("hs")
        p(f"s_add_u32 s41, s41, {56*1024}")
    p.stamp()
    vm.wait("E", "w9", "w10")
    p("s_barrier")
    for j in range(3):
        wd_piece(1*SLOT + 8192*j, final_ks(6 + 2*j), final_ks(6 + 2*j + 1), "wf")
    p(f"""
    v_lshrrev_b32 v14, 4, v1                  ; kg
    v_bfe_u32 v15, v1, 2, 2                   ; rr
    v_lshl_add_u32 v12, v14, 2, v15
    v_lshlrev_b32 v12, 7, v12
    v_and_b32 v13, 3, v1
    v_lshl_add_u32 v12, v13, 3, v12
    v_and_b32 v14, 1, v14
    v_lshrrev_b32 v15, 1, v15
    v_lshl_or_b32 v15, v14, 1, v15            ; g3
    v_xor_b32 v15, s38, v15                   ; g3 ^ kq
    s_lshl_b32 s40, s38, 2
    s_add_u32 s40, s40, 8
    s_lshl_b32 s40, s40, 12                   ; (8 + 4kq)*4096
    s_cmp_eq_u32 s38, 0
    s_cselect_b32 s40, {EBASE}, s40
    s_mul_i32 s41, s38, 40960
    """)
    for j in range(4):
        p(f"""
        v_xor_b32 v13, {j}, v15
        v_lshl_add_u32 v13, v13, 5, v12
        v_add_u32 v{20+j}, s40, v13
        v_add_u32 v{24+j}, s41, v13
        """)
    for n in range(4):
        for j in range(4):
            b = 32 + 16*n + 4*j
            p(f"ds_read_b64_tr_b16 {r2(b)}, v{20+j} offset:{n*4096}")
            p(f"ds_read_b64_tr_b16 {r2(b+2)}, v{20+j} offset:{n*4096 + 2048}")
    p(f"""
    s_lshl_b32 s40, s36, 1
    s_add_u32 s40, s40, s59                   ; rt2
    s_lshl_b32 s41, s40, 2
    s_lshl_b32 s43, s39, 1
    s_add_u32 s41, s41, s43                   ; T16(nt=0)
    s_mul_i32 s43, s41, 56
    s_mul_i32 s44, s38, 14
    s_add_u32 s43, s43, s44
    s_lshl_b32 s43, s43, 10
    v_lshl_add_u32 v2, v1, 4, s43             ; vH0
    v_add_u32 v3, {56*1024}, v2               ; vH1
    v_and_b32 v4, 15, v1
    s_lshl_b32 s41, s41, 4                    ; t0
    v_add_u32 v4, s41, v4                     ; t (nt=0)
    s_lshl_b32 s43, s60, 6
    s_lshl_b32 s44, s38, 4
    s_add_u32 s43, s43, s44
    v_lshrrev_b32 v5, 4, v1                   ; rg
    v_lshlrev_b32 v6, 2, v5
    v_add_u32 v6, s43, v6
    v_lshlrev_b32 v6, 12, v6
    v_lshl_add_u32 v6, v4, 1, v6              ; vRes
    v_and_b32 v7, 1, v5
    v_lshl_add_u32 v4, v7, 4, v4
    s_movk_i32 s44, 896
    v_mul_lo_u32 v4, v4, s44
    v_lshrrev_b32 v5, 1, v5
    v_lshlrev_b32 v5, 4, v5
    s_lshl_b32 s43, s43, 1
    v_add3_u32 v7, v4, v5, s43                ; vOut
    s_lshl_b32 s40, s36, 7
    s_add_u32 s40, s40, {CNT_OFF}
    v_mov_b32 v8, s40
    """)
    vm.wait("hs", extra=" lgkmcnt(0)")
    p("s_barrier")
    p.stamp()
    p(f"""
    s_cmp_lg_u32 s33, 0
    s_cbranch_scc1 L_{name}_noarr
    v_mov_b32 v9, 1
    s_mov_b64 s[56:57], exec
    s_mov_b64 exec, 1
    global_atomic_add v8, v9, s[12:13] sc1
    s_mov_b64 exec, s[56:57]
    L_{name}_noarr:
    """)
    for j in range(8):
        if j < 6: base, L0 = 12*4096 + 8192*j, 12 + 2*j
        else: base, L0 = EBASE + 8192*(j - 6), 36 + 2*(j - 6)
        wd_piece(base, final_ks(L0), final_ks(L0 + 1), "wr")
    for i in range(8):
        nt, r = i >> 2, i & 3
        p(f"s_mov_b32 s40, {r*4096 + nt*32}")
        p(f"buffer_load_ushort v{12 + i}, v6, s[16:19], s40 offen")
    p(f"""
    s_cmp_lg_u32 s33, 0
    s_cbranch_scc1 L_{name}_nopoll
    s_mov_b32 s58, 0
    L_{name}_poll2:
    global_load_dword v9, v8, s[12:13] sc1
    s_waitcnt vmcnt(0)
    v_readfirstlane_b32 s40, v9
    s_add_u32 s58, s58, 1
    s_cmp_ge_u32 s40, 14
    s_cbranch_scc1 L_{name}_nopoll
    s_cmp_ge_u32 s58, 0x40000
    s_cbranch_scc1 L_{name}_nopoll
    s_sleep 1
    s_branch L_{name}_poll2
    L_{name}_nopoll:
    {"" if "b4late" in exp else "s_waitcnt vmcnt(0)"}
    s_barrier                                 ; B4
    """)
    p.stamp()
    HB = 96; A2 = 208; AB = [240, 32, 48]
    def ACC2(j, nt): return A2 + 8*j + 4*nt
    vm2 = VM(p)
    HD = 3
    for tok in exp.split("_"):
        if tok.startswith("hd"): HD = int(tok[2:])
    def h_issue(n):
        p(f"s_mov_b32 s40, {n*1024}")
        p(f"buffer_load_dwordx4 {r4(HB + 8*n)}, v2, s[28:31], s40 offen sc1")
        p(f"buffer_load_dwordx4 {r4(HB + 8*n + 4)}, v3, s[28:31], s40 offen sc1")
        vm2.issue(f"h{n}", 2)
    for n in range(min(HD, 14)): h_issue(n)
    def abuf(n):
        if n < 4: return 32 + 16*n
        if n == 4: return 240
        return 32 + 16*((n - 5) % 2) if n >= 5 else None
    def a_reads(n):
        m = n - 4
        o = []
        for j in range(4):
            b = abuf(n) + 4*j
            o.append(f"ds_read_b64_tr_b16 {r2(b)}, v{24+j} offset:{m*4096}")
            o.append(f"ds_read_b64_tr_b16 {r2(b+2)}, v{24+j} offset:{m*4096 + 2048}")
        return o
    for n in range(14):
        vm2.wait(f"h{n}", extra=(" lgkmcnt(0)" if n >= 4 else ""))
        if n == 3 and "b4late" in exp: p("s_barrier")
        nxt = a_reads(n + 1) if (n + 1 >= 4 and n + 1 < 14) else []
        k = 0
        for nt in range(2):
            for j in range(4):
                c_in = "0" if n == 0 else r4(ACC2(j, nt))
                p(f"v_mfma_f32_16x16x32_bf16 {r4(ACC2(j, nt))}, {r4(abuf(n) + 4*j)}, {r4(HB + 8*n + 4*nt)}, {c_in}")
                if k < len(nxt): p(nxt[k])
                k += 1
                if k == 2 and n + HD < 14: h_issue(n + HD)
    p.stamp()
    p(f"""
    s_barrier
    v_lshlrev_b32 v9, 4, v1
    """)
    for j in range(1, 4):
        p(f"""
        s_xor_b32 s40, s33, {j}
        s_mul_i32 s40, s40, {3*2048}
        s_add_u32 s40, s40, {(j-1)*2048}
        v_add_u32 v10, s40, v9
        ds_write_b128 v10, {r4(ACC2(j, 0))}
        ds_write_b128 v10, {r4(ACC2(j, 1))} offset:1024
        """)
    p(f"""
    s_mul_i32 s40, s33, {3*2048}
    v_add_u32 v10, s40, v9
    s_waitcnt lgkmcnt(0)
    s_barrier
    """)
    for k in range(3):
        p(f"ds_read_b128 {r4(32 + 8*k)}, v10 offset:{k*2048}")
        p(f"ds_read_b128 {r4(36 + 8*k)}, v10 offset:{k*2048 + 1024}")
    for i in range(8): p(f"v_lshlrev_b32 v{12+i}, 16, v{12+i}")
    for k in range(3):
        p(f"s_waitcnt lgkmcnt({4 - 2*k})")
        for q in range(4):
            p(f"v_pk_add_f32 {r2(A2 + 2*q)}, {r2(A2 + 2*q)}, {r2(32 + 8*k + 2*q)}")
    for q in range(4): p(f"v_cvt_pk_bf16_f32 v{56+q}, v{A2 + 2*q}, v{A2 + 2*q + 1}")
    for q in range(4):
        p(f"v_lshlrev_b32 v{A2 + 2*q}, 16, v{56+q}")
        p(f"v_and_b32 v{A2 + 2*q + 1}, 0xffff0000, v{56+q}")
    for q in range(4): p(f"v_pk_add_f32 {r2(A2 + 2*q)}, {r2(A2 + 2*q)}, {r2(12 + 2*q)}")
    for q in range(4): p(f"v_cvt_pk_bf16_f32 v{56+q}, v{A2 + 2*q}, v{A2 + 2*q + 1}")
    p("""
    v_permlane16_swap_b32 v56, v58
    v_permlane16_swap_b32 v57, v59
    buffer_store_dwordx4 v[56:59], v7, s[4:7], 0 offen
    """)
    p.stamp()
    p.stamp_flush(STAMP_OFF + 0x4000)
    p(f"s_branch {E}")
    p(f"L_{name}_stats:")
    gen_k2_stats(p, name, tail=("" if "nowarm" in exp else "warm"))
    p(f"""
    {E}:
    s_endpgm
    """)
    return kernel_text(name, p, vgpr=256, sgpr=96)

K23_LAUNCH = "grid=(256,1,1) block=(512,1,1) lds=163840"
if __name__ == "__main__":
    import sys
    s = f"; @launch kernel=k23_kernel {K23_LAUNCH}\n" + '.amdgcn_target "amdgcn-amd-amdhsa--gfx950"\n.text\n' + gen_k23(stamps=(len(sys.argv) > 2), exp=(sys.argv[2] if len(sys.argv) > 2 else ''))
    open(sys.argv[1], "w").write(s)
```

```python
import sys
from k1 import gen_k1, K1_LAUNCH
from k2 import gen_k2, K2_LAUNCH
from k3 import gen_k3, K3_LAUNCH
from k23 import gen_k23, K23_LAUNCH
from k1b import gen_k1b, K1B_LAUNCH
def build(stamps=False, exp=""):
    if "sep" not in exp: return build2(stamps, exp)
    return build3(stamps, exp)
def build2(stamps=False, exp=""):
    s = "; sequential preLN -> S4 convolution -> GLU MLP, two launches\n"
    s += "; kernarg: 13 input pointers, d_out (104), d_debug (112), d_ws (120)\n"
    old = "oldk1" in exp
    s += f"; @launch kernel=k1_kernel {K1_LAUNCH if old else K1B_LAUNCH}\n"
    s += f"; @launch kernel=k23_kernel {K23_LAUNCH}\n"
    s += '.amdgcn_target "amdgcn-amd-amdhsa--gfx950"\n.text\n'
    s += (gen_k1 if old else gen_k1b)(stamps=stamps, exp=exp) + gen_k23(stamps=stamps, exp=exp)
    return s
def build3(stamps=False, exp=""):
    s = "; sequential preLN -> S4 convolution -> GLU MLP, three launches\n"
    s += "; kernarg: 13 input pointers, d_out (104), d_debug (112), d_ws (120)\n"
    s += f"; @launch kernel=k1_kernel {K1_LAUNCH}\n"
    s += f"; @launch kernel=k2_kernel {K2_LAUNCH}\n"
    s += f"; @launch kernel=k3_kernel {K3_LAUNCH}\n"
    s += '.amdgcn_target "amdgcn-amd-amdhsa--gfx950"\n.text\n'
    s += gen_k1(stamps=stamps, exp=exp) + gen_k2(stamps=stamps, exp=exp) + gen_k3(stamps=stamps, exp=exp)
    return s
if __name__ == "__main__":
    out = sys.argv[1] if len(sys.argv) > 1 else "sequential_preLN__ssm_conv_s4__glu_gated_glu__prompt.s"
    open(out, "w").write(build(stamps=(len(sys.argv) > 2 and not sys.argv[2].startswith("ns")), exp=(sys.argv[2] if len(sys.argv) > 2 else "")))
```

```python
import re

KNAME = "sequential_preLN__ssm_conv_s4__glu_gated_glu__prompt_kernel"

class Prog:
    def __init__(self):
        self.lines = []
    def __call__(self, s):
        for l in s.split("\n"):
            l = l.strip()
            if l: self.lines.append(l)
    stamps_on = False
    _sk = 0
    stamp_tid = 0
    stamp_op = 's_memrealtime'
    nstamp = 0
    def stamp(self, idx=None):
        if not self.stamps_on: return
        if idx is None:
            i = self.nstamp; self.nstamp += 1
        else:
            i = idx
        self(f"{self.stamp_op} s[{64+2*i}:{65+2*i}]")
    def stamp_flush(self, region, ws='s[12:13]', tag=''):
        if not self.stamps_on: return
        self("s_waitcnt vmcnt(0) lgkmcnt(0)")
        self.stamp()
        self("s_waitcnt lgkmcnt(0)")
        for i in range(16): self(f"v_mov_b32 v{2+i}, s{64+2*i}")
        self(f"s_lshl_b32 s62, s2, 6")
        self(f"s_add_u32 s62, s62, {region}")
        self(f"v_mov_b32 v1, s62")
        self(f"v_cmp_eq_u32 vcc, {self.stamp_tid}, v0" if self.stamp_tid <= 64 else f"v_cmp_eq_u32 vcc, 0x{self.stamp_tid:x}, v0")
        self("s_and_saveexec_b64 s[60:61], vcc")
        Prog._sk += 1
        self("s_cbranch_execz L_stamp_skip_%d%s" % (Prog._sk, tag))
        self("global_store_dwordx4 v1, v[2:5], " + ws)
        self("global_store_dwordx4 v1, v[6:9], " + ws + " offset:16")
        self("global_store_dwordx4 v1, v[10:13], " + ws + " offset:32")
        self("global_store_dwordx4 v1, v[14:17], " + ws + " offset:48")
        self("s_waitcnt vmcnt(0)")
        self("L_stamp_skip_%d%s:" % (Prog._sk, tag))
    def text(self):
        return "\n".join(self.lines) + "\n"

TRANS = ("v_exp_f32", "v_log_f32", "v_rcp_f32", "v_rsq_f32", "v_sqrt_f32", "v_sin_f32", "v_cos_f32")
REG_RE = re.compile(r"^(-|abs\()?([vsa])(\d+)\)?$")
RNG_RE = re.compile(r"^(-)?([vsa])\[(\d+):(\d+)\]$")

def regs_of(tok):
    tok = tok.strip()
    if tok in ("vcc",): return {("s", 106), ("s", 107)}
    if tok == "vcc_lo": return {("s", 106)}
    if tok == "vcc_hi": return {("s", 107)}
    if tok == "exec": return {("s", 126), ("s", 127)}
    if tok == "m0": return {("s", 124)}
    m = REG_RE.match(tok)
    if m: return {(m.group(2), int(m.group(3)))}
    m = RNG_RE.match(tok)
    if m: return {(m.group(2), i) for i in range(int(m.group(3)), int(m.group(4)) + 1)}
    return set()

class Ins:
    __slots__ = ("text", "op", "ops", "kind", "dst", "src", "label", "target", "passes", "srcC", "srcAB", "nopn", "dpp", "trans", "store_data", "lds_dma", "mods")
    def __init__(self, text):
        self.text = text; self.label = None; self.target = None
        self.kind = "other"; self.dst = set(); self.src = set(); self.passes = 0
        self.srcC = set(); self.srcAB = set(); self.nopn = 1; self.dpp = False; self.trans = False
        self.store_data = set(); self.lds_dma = False
        t = text.split(";")[0].strip()
        if t.endswith(":") and " " not in t:
            self.kind = "label"; self.label = t[:-1]; self.op = ""; self.ops = []; self.nopn = 0; return
        if not t or t.startswith("."):
            self.kind = "dir"; self.op = ""; self.ops = []; self.nopn = 0; return
        parts = t.split(None, 1)
        self.op = parts[0]
        rest = parts[1] if len(parts) > 1 else ""
        ops = []; depth = 0; cur = ""
        for ch in rest:
            if ch in "[(": depth += 1
            if ch in "])": depth -= 1
            if ch == "," and depth == 0:
                ops.append(cur.strip()); cur = ""
            else: cur += ch
        if cur.strip(): ops.append(cur.strip())
        mods = ""
        if ops:
            last = ops[-1].split(None, 1)
            ops[-1] = last[0]
            mods = last[1] if len(last) > 1 else ""
        self.ops = ops; self.mods = mods
        op = self.op
        R = [regs_of(o) for o in ops]
        if op == "s_nop":
            self.kind = "nop"; self.nopn = int(ops[0], 0) + 1
        elif op.startswith("s_cbranch") or op == "s_branch":
            self.kind = "branch"; self.target = ops[0]
        elif op == "s_endpgm":
            self.kind = "end"
        elif op.startswith("v_mfma"):
            self.kind = "mfma"; self.dst = R[0]; self.srcAB = R[1] | R[2]; self.srcC = R[3]; self.src = self.srcAB | self.srcC
            self.passes = 8 if "32x32x16" in op else (4 if "16x16x32" in op else None)
            assert self.passes, op
        elif op.startswith("v_"):
            self.kind = "valu"
            self.trans = any(op.startswith(x) for x in TRANS)
            self.dpp = ("dpp" in op) or ("quad_perm" in mods) or ("row_" in mods) or ("wave_" in mods)
            self.dst = R[0]
            srcs = R[1:]
            if op.startswith("v_add_co") or op.startswith("v_addc_co") or op.startswith("v_sub_co"):
                self.dst = R[0] | R[1]; srcs = R[2:]
            for s in srcs: self.src |= s
            if op.startswith("v_fmac") or op.startswith("v_dot2c") or op.startswith("v_permlane") or op.startswith("v_writelane"):
                self.src |= R[0]
            if op.startswith("v_permlane"): self.dst = R[0] | R[1]
            if op.startswith("v_cndmask") and len(ops) == 3: self.src |= regs_of("vcc")
            if op.endswith("_d16_hi"): self.src |= R[0]
        elif op.startswith("ds_"):
            self.kind = "ds"
            if op.startswith("ds_read") or op.startswith("ds_bpermute") or op.startswith("ds_swizzle") or op.startswith("ds_permute"):
                self.dst = R[0]
                for s in R[1:]: self.src |= s
            else:
                for s in R: self.src |= s
        elif op.startswith("buffer_") or op.startswith("global_") or op.startswith("flat_"):
            self.kind = "vmem"
            self.lds_dma = (" lds" in " " + mods) or ("_lds_" in op)
            if "load" in op and not self.lds_dma:
                self.dst = R[0]
                for s in R[1:]: self.src |= s
                if "d16" in op: self.src |= R[0]
            elif "atomic" in op and "sc0" in mods:
                self.dst = R[0]
                for s in R[1:]: self.src |= s
            else:
                for s in R: self.src |= s
                if "store" in op and ("x4" in op or "x3" in op):
                    self.store_data = R[0] if op.startswith("buffer_") else R[1]
        elif op.startswith("s_"):
            self.kind = "salu"
            if op.startswith("s_cmp") or op.startswith("s_waitcnt") or op in ("s_barrier", "s_setprio", "s_sleep") or op.startswith("s_bitcmp"):
                for s in R: self.src |= s
            else:
                if R: self.dst = R[0]
                for s in R[1:]: self.src |= s
                if "saveexec" in op: self.dst |= regs_of("exec")

def is_v(r): return r[0] in ("v", "a")
def vset(s): return {r for r in s if is_v(r)}
def sset(s): return {r for r in s if r[0] == "s"}

def need(p, c):
    n = 0
    if p.kind == "valu":
        pv = vset(p.dst); ps = sset(p.dst)
        if pv and p.op.startswith("v_dot"):
            if c.kind in ("valu", "mfma", "ds", "vmem") and pv & (c.src | c.dst):
                if c.op == p.op and len(c.ops) == 4 and not (pv & (regs_of(c.ops[1]) | regs_of(c.ops[2]))) and regs_of(c.ops[3]) == pv: pass
                else: n = max(n, 3)
        if pv:
            if c.kind == "mfma" and pv & c.src: n = max(n, 2)
            if c.kind == "valu":
                if p.trans and not c.trans and pv & c.src: n = max(n, 1)
                if c.dpp and pv & c.src: n = max(n, 2)
                if c.op.startswith("v_permlane") and pv & c.src: n = max(n, 2)
                if (c.op.startswith("v_readlane") or c.op.startswith("v_readfirstlane")) and pv & c.src: n = max(n, 1)
        if ps:
            if c.kind == "valu" and ps & c.src:
                n = max(n, 4 if (c.op.startswith("v_readlane") or c.op.startswith("v_writelane")) else 2)
            if c.kind == "mfma" and ps & c.src: n = max(n, 2)
            if c.kind == "vmem" and ps & c.src: n = max(n, 5)
            if c.kind in ("salu", "branch") and (ps & c.src): n = max(n, 1)
    elif p.kind == "mfma":
        big = {4: 8, 8: 12}[p.passes]; ov = {4: 6, 8: 10}[p.passes]; war = {4: 3, 8: 7}[p.passes]
        if c.kind == "valu":
            if p.dst & (c.src | c.dst): n = max(n, big)
            if p.srcC & c.dst: n = max(n, war)
        elif c.kind in ("ds", "vmem"):
            if p.dst & (c.src | c.dst): n = max(n, big)
        elif c.kind == "mfma":
            if p.dst & c.srcAB: n = max(n, big)
            if p.dst & c.srcC:
                if not (p.dst == c.srcC and p.passes == c.passes): n = max(n, ov)
            if p.dst & c.dst and not (p.dst == c.dst and p.dst == c.srcC):
                if not (p.dst == c.dst): n = max(n, ov)
    elif p.kind == "vmem":
        if p.store_data and c.kind in ("valu", "mfma") and p.store_data & c.dst: n = max(n, 2)
        if p.store_data and c.kind in ("ds", "vmem") and p.store_data & c.dst: n = max(n, 1)
    elif p.kind == "salu":
        if ("s", 124) in p.dst and c.kind == "vmem" and c.lds_dma: n = max(n, 1)
        if ("s", 126) in p.dst or ("s", 127) in p.dst:
            if c.kind == "valu" and c.dpp: n = max(n, 0)
    return n

MAXW = 12
def fix_hazards(lines, verbose=False):
    total = 0
    for _ in range(50):
        ins = [Ins(l) for l in lines]
        labels = {i.label: k for k, i in enumerate(ins) if i.kind == "label"}
        n = len(ins)
        def succ(k):
            i = ins[k]
            if i.kind == "end": return []
            if i.kind == "branch":
                t = labels[i.target]
                return [t] if i.op == "s_branch" else [t, k + 1]
            return [k + 1] if k + 1 < n else []
        inserts = {}
        for k, p in enumerate(ins):
            if p.kind not in ("valu", "mfma", "vmem", "salu"): continue
            if p.kind == "salu" and ("s", 124) not in p.dst: continue
            if p.kind == "vmem" and not p.store_data: continue
            stack = [(s, 0) for s in succ(k)]
            seen = {}
            while stack:
                j, d = stack.pop()
                if j >= n or d >= MAXW: continue
                if j in seen and seen[j] <= d: continue
                seen[j] = d
                c = ins[j]
                if c.kind not in ("label", "dir", "nop"):
                    r = need(p, c)
                    if r > d:
                        inserts[j] = max(inserts.get(j, 0), r - d)
                        continue
                for s in succ(j): stack.append((s, d + c.nopn))
        if not inserts: break
        out = []
        first = min(inserts)
        for k, l in enumerate(lines):
            if k in inserts:
                m = inserts[k]
                total += m
                if verbose: print("  nop", m, "before:", l)
                while m > 0:
                    q = min(m, 16); out.append(f"s_nop {q-1}"); m -= q
            out.append(l)
        lines = out
    return lines, total

def kernel_desc(name, vgpr, accum=None, sgpr=96, denorm=3):
    if accum is None: accum = min(256, (vgpr + 3) // 4 * 4)
    return f""".section .rodata,"a"
.p2align 6
.amdhsa_kernel {name}
  .amdhsa_next_free_vgpr {vgpr}
  .amdhsa_next_free_sgpr {sgpr}
  .amdhsa_accum_offset {accum}
  .amdhsa_group_segment_fixed_size 0
  .amdhsa_kernarg_size 128
  .amdhsa_user_sgpr_count 2
  .amdhsa_user_sgpr_kernarg_segment_ptr 1
  .amdhsa_system_sgpr_workgroup_id_x 1
  .amdhsa_float_denorm_mode_32 {denorm}
.end_amdhsa_kernel
.text
"""

def kernel_text(name, prog, vgpr, accum=None, sgpr=96, verbose=False, denorm=3):
    lines, nn = fix_hazards(prog.lines, verbose)
    body = []
    for l in lines:
        body.append(l if l.endswith(":") else "  " + l)
    s = f".globl {name}\n.p2align 8\n.type {name},@function\n{name}:\n" + "\n".join(body) + "\n"
    s += kernel_desc(name, vgpr, accum, sgpr, denorm)
    return s
```

```python
from asmtool import *
from layout import *
import struct

def r4(b): return f"v[{b}:{b+3}]"
def r2(b): return f"v[{b}:{b+1}]"
def fbits(x): return "0x%08x" % struct.unpack("<I", struct.pack("<f", x))[0]

WREG = 53 * 528
KCS = 4160
KCC = 4 * KCS
TB = 4 * WREG
UL0 = TB + 12288
XL0 = UL0 + 2 * 4608
LDS_K1 = XL0 + 2 * 4096
EX = 40960

def cmul_multi(p, items):
    for d, x, y in items: p(f"v_pk_mul_f32 {r2(d)}, {r2(x)}, {r2(y)} op_sel_hi:[1,0]")
    for d, x, y in items: p(f"v_pk_fma_f32 {r2(d)}, {r2(x)}, {r2(y)}, {r2(d)} op_sel:[1,1,0] op_sel_hi:[0,1,1] neg_lo:[1,0,0]")

def gen_spare_stats(p, name):
    p(f"""
    v_lshrrev_b32 v2, 3, v1                   ; lane>>3
    s_lshl_b32 s34, s2, 6
    s_lshl_b32 s35, s33, 3
    s_add_u32 s34, s34, s35                   ; 64b + 8w
    v_add_u32 v2, s34, v2                     ; row
    s_movk_i32 s35, 896
    v_mul_lo_u32 v3, v2, s35
    v_and_b32 v4, 7, v1
    v_lshl_add_u32 v3, v4, 4, v3
    s_waitcnt lgkmcnt(0)
    """)
    for i in range(7):
        p(f"global_load_dwordx4 {r4(32 + 4*i)}, v3, s[4:5] offset:{128*i}")
    if "notouch" not in getattr(p, "exp", ""):
        p(f"""
        v_mov_b32 v24, {TOUCH_OFF}
        v_mov_b32 v25, 128
        global_load_dword v26, v24, s[26:27]
        global_load_dword v27, v25, s[24:25]
        """)
    p(f"""
    s_mov_b32 s44, 0x3f803f80
    v_mov_b32 v10, 0
    v_mov_b32 v11, 0
    v_mov_b32 v14, 0
    v_mov_b32 v15, 0
    s_lshl_b32 s40, s2, 9
    s_add_u32 s40, s40, {ST2_OFF}
    v_lshl_add_u32 v20, v1, 3, s40
    v_mov_b32 v18, -1
    v_mov_b32 v19, -1
    v_lshlrev_b32 v21, 7, v1
    v_add_u32 v21, {CNT_OFF}, v21
    v_mov_b32 v22, 0
    s_mov_b64 s[46:47], exec
    s_cmp_lg_u32 s33, 1
    s_cbranch_scc1 L_{name}_noinit
    global_store_dwordx2 v20, v[18:19], s[26:27] sc1
    s_cmp_lg_u32 s2, 0
    s_cbranch_scc1 L_{name}_noinit
    s_mov_b32 exec_hi, 0
    global_store_dword v21, v22, s[26:27] sc1
    s_mov_b64 exec, s[46:47]
    L_{name}_noinit:
    """)
    for i in range(7):
        p(f"s_waitcnt vmcnt({6 - i})" if False else "")
    p.stamp(1)
    p("s_waitcnt vmcnt(0)")
    p.stamp(2)
    for i in range(7):
        for j in range(4):
            v = 32 + 4*i + j
            if j & 1:
                p(f"v_dot2_f32_bf16 v14, v{v}, s44, v14")
                p(f"v_dot2_f32_bf16 v15, v{v}, v{v}, v15")
            else:
                p(f"v_dot2_f32_bf16 v10, v{v}, s44, v10")
                p(f"v_dot2_f32_bf16 v11, v{v}, v{v}, v11")
    p("v_add_f32 v10, v10, v14\nv_add_f32 v11, v11, v15")
    for dpp in ("quad_perm:[1,0,3,2]", "quad_perm:[2,3,0,1]", "row_half_mirror"):
        for r in (10, 11):
            p(f"v_add_f32_dpp v{r}, v{r}, v{r} {dpp} row_mask:0xf bank_mask:0xf")
    p(f"""
    s_mov_b32 s40, 0x3b124925                 ; 1/448
    s_mov_b32 s41, 0x3727c5ac                 ; 1e-5
    v_mul_f32 v10, s40, v10
    v_mul_f32 v11, s40, v11
    v_fma_f32 v11, -v10, v10, v11
    v_max_f32 v11, 0, v11
    v_cvt_pk_bf16_f32 v16, v11, v11
    v_lshlrev_b32 v16, 16, v16
    v_add_f32 v16, s41, v16
    v_cvt_pk_bf16_f32 v16, v16, v16
    v_lshlrev_b32 v16, 16, v16
    v_sqrt_f32 v16, v16
    v_cvt_pk_bf16_f32 v16, v10, v16
    v_lshlrev_b32 v2, 2, v2
    v_add_u32 v2, {STATS_OFF}, v2
    s_mov_b32 s42, 0x01010101
    s_mov_b32 s43, 0x01010101
    s_mov_b64 exec, s[42:43]
    global_store_dword v2, v16, s[26:27] sc1
    s_mov_b64 exec, s[46:47]
    """)
    p.stamp(3)
    p(f"""
    s_waitcnt vmcnt(0)
    s_barrier
    """)
    p.stamp(4)
    p(f"""
    s_cmp_lg_u32 s33, 0
    s_cbranch_scc1 L_{name}_nosig
    v_mov_b32 v4, 0
    v_mov_b32 v5, 1
    s_mov_b64 exec, 1
    global_atomic_add v4, v5, s[24:25] sc1
    s_mov_b64 exec, s[46:47]
    L_{name}_nosig:
    """)

def gen_spare_cs(p, name, sc1=""):
    p(f"""
    s_movk_i32 s35, 4682
    v_mul_u32_u24 v6, s35, v0
    v_lshrrev_b32 v6, 16, v6                  ; rg (0..36)
    v_mul_u32_u24 v7, 14, v6
    v_sub_u32 v7, v0, v7                      ; u
    s_and_b32 s36, s2, 15
    s_mul_i32 s36, s36, 224
    s_movk_i32 s35, {14*3584 // 16}
    v_mul_u32_u24 v8, s35, v6
    v_lshlrev_b32 v8, 4, v8                   ; rg*14*3584
    v_lshl_add_u32 v8, v7, 4, v8
    v_add_u32 v8, s36, v8
    s_cmp_lt_u32 s2, 16
    s_cselect_b32 s36, s28, s30
    s_cselect_b32 s37, s29, s31
    s_mov_b32 s38, {W_BYTES}
    s_mov_b32 s39, 0x20000
    s_mov_b32 s40, 0
    """)
    for i in range(14):
        p(f"buffer_load_dwordx4 {r4(96 + 4*i)}, v8, s[36:39], 0 offen")
        if i < 13: p(f"v_add_u32 v8, 3584, v8")
    for r in range(8): p(f"v_mov_b32 v{32+r}, 0")
    p("s_mov_b32 s44, 0xffff0000")
    for i in range(14):
        p(f"s_waitcnt vmcnt({13 - i})")
        for j in range(4):
            v = 96 + 4*i + j
            t = 40 + 2*(j & 1)
            p(f"v_lshlrev_b32 v{t}, 16, v{v}\nv_and_b32 v{t+1}, s44, v{v}\nv_pk_add_f32 {r2(32+2*j)}, {r2(32+2*j)}, {r2(t)}")
    p(f"""
    s_movk_i32 s35, 448
    v_mul_u32_u24 v9, s35, v6
    v_lshl_add_u32 v9, v7, 5, v9
    v_mov_b32 v10, 448
    v_cmp_gt_u32 vcc, v10, v0
    s_and_saveexec_b64 s[42:43], vcc
    s_cbranch_execz L_{name}_csnw
    ds_write_b128 v9, v[32:35]
    ds_write_b128 v9, v[36:39] offset:16
    L_{name}_csnw:
    s_mov_b64 exec, s[42:43]
    s_waitcnt lgkmcnt(0)
    s_barrier
    v_mov_b32 v10, 112
    v_cmp_gt_u32 vcc, v10, v0
    s_and_saveexec_b64 s[42:43], vcc
    s_cbranch_execz L_{name}_csdone
    v_lshlrev_b32 v9, 2, v0
    """)
    for g in range(32): p(f"ds_read_b32 v{32+g}, v9 offset:{448*g}")
    p("s_waitcnt lgkmcnt(0)")
    for g in range(0, 32, 2): p(f"v_add_f32 v{32+g}, v{32+g}, v{33+g}")
    for g in range(2, 32, 2): p(f"v_add_f32 v32, v32, v{32+g}")
    p(f"""
    s_mul_i32 s40, s2, 448
    s_add_u32 s40, s40, {CS_OFF}
    v_add_u32 v9, s40, v9
    global_store_dword v9, v32, s[26:27] {sc1}
    L_{name}_csdone:
    s_mov_b64 exec, s[42:43]
    s_waitcnt vmcnt(0)
    """)

def gen_conv(p, name, hsc=""):
    exp = getattr(p, "exp", "")
    SLP = 8
    for tok in exp.split("_"):
        if tok.startswith("slp"): SLP = int(tok[3:])
    p(f"""
    s_and_b32 s34, s3, 7
    s_mul_i32 s34, s34, 56
    s_lshr_b32 s35, s3, 3
    s_lshl_b32 s35, s35, 1
    s_add_u32 s34, s34, s35                   ; d0
    s_bfe_u32 s35, s33, 0x10001               ; c  = (w>>1)&1
    s_and_b32 s36, s33, 1                     ; hf
    s_add_u32 s37, s34, s35                   ; d
    s_lshr_b32 s52, s33, 2                    ; role
    s_and_b32 s53, s33, 3                     ; sub
    s_lshl_b32 s38, s37, 9
    s_lshl_b32 s39, s36, 8
    s_add_u32 s38, s38, s39
    v_lshl_add_u32 v24, v1, 2, s38
    s_movk_i32 s39, 7168
    v_and_b32 v23, 255, v0
    v_mul_u32_u24 v25, s39, v23
    s_lshl_b32 s38, s34, 1
    s_add_u32 s39, s38, 3584
    v_add_u32 v25, s39, v25
    s_mul_i32 s42, s53, {WREG}
    v_lshl_add_u32 v26, v1, 3, s42
    s_waitcnt lgkmcnt(0)
    """)
    p.stamp()
    p(f"""
    s_load_dword s40, s[18:19], s38
    s_load_dword s41, s[20:21], s38
    s_cmp_lg_u32 s52, 0
    s_cbranch_scc1 L_{name}_noparam
    global_load_dword v10, v24, s[6:7]
    global_load_dword v11, v24, s[8:9]
    global_load_dword v12, v24, s[10:11]
    global_load_dword v13, v24, s[12:13]
    global_load_dword v14, v24, s[14:15]
    global_load_dword v15, v24, s[16:17]
    s_waitcnt vmcnt(0)
    L_{name}_noparam:
    s_barrier
    s_mov_b32 s46, 0xffff0000
    s_waitcnt lgkmcnt(0)
    s_cmp_eq_u32 s35, 0
    s_cselect_b32 s43, 16, 0
    s_lshl_b32 s41, s41, s43
    s_and_b32 s41, s41, 0xffff0000
    s_cmp_lg_u32 s52, 0
    s_cbranch_scc1 L_{name}_V
    s_lshl_b32 s40, s40, s43
    s_and_b32 s40, s40, 0xffff0000
    s_mov_b32 s44, 0x3fb8aa3b                 ; log2(e)
    s_mov_b32 s45, 0x3e22f983                 ; 1/(2 pi)
    v_mov_b32 v30, s40
    v_mul_f32 v30, s44, v30
    v_exp_f32 v30, v30
    v_cvt_pk_bf16_f32 v30, v30, v30
    v_and_b32 v30, s46, v30
    """)
    wr = [0]
    def put(row, src, neg):
        wp = 16 + 2*(wr[0] % 4); wr[0] += 1
        for k in range(2):
            s = src(k)
            p(f"v_cvt_pk_bf16_f32 v{wp+k}, v{s}, {'-' if neg else ''}v{s+1}")
        p(f"ds_write_b64 v26, {r2(wp)} offset:{row*528}")
    def unp(k, d, s):
        return f"v_lshlrev_b32 v{d}, 16, v{s}" if k == 0 else f"v_and_b32 v{d}, s46, v{s}"
    def expz(dst, Z, L, T):
        for k in range(2):
            t = T(k)
            if L == 1.0:
                p(f"v_exp_f32 v{t}, v{Z(k)}")
                p(f"v_fract_f32 v{t+1}, v{Z(k)+1}")
            else:
                p(f"v_pk_mul_f32 {r2(t)}, {r2(Z(k))}, {r2(28)} op_sel_hi:[1,0]")
        if L != 1.0:
            for k in range(2):
                t = T(k)
                p(f"v_exp_f32 v{t}, v{t}")
                p(f"v_fract_f32 v{t+1}, v{t+1}")
        for k in range(2):
            p(f"v_cos_f32 v{dst(k)}, v{T(k)+1}")
            p(f"v_sin_f32 v{dst(k)+1}, v{T(k)+1}")
        for k in range(2):
            p(f"v_pk_mul_f32 {r2(dst(k))}, {r2(dst(k))}, {r2(T(k))} op_sel_hi:[1,0]")
    names = ["Z", "CB", "E1", "E256", "E2", "E4", "Pa", "Pb", "T1", "T2", "T3", "Ta", "Tb", "R4", "Rt", "Tm",
             "E8", "E16", "Oa", "Ob", "Ea", "Eb"]
    def U(nm): return lambda k: 32 + 2*names.index(nm) + 44*k
    p("s_waitcnt vmcnt(0)")
    p.stamp()
    for k in range(2):
        Z, Pa, Pb = U("Z")(k), U("Pa")(k), U("Pb")(k)
        p(unp(k, Z, 10)); p(unp(k, Z+1, 11))
        p(unp(k, Pa, 12)); p(unp(k, Pa+1, 13))
        p(unp(k, Pb, 14)); p(unp(k, Pb+1, 15))
    for k in range(2):
        p(f"v_pk_mul_f32 {r2(U('Z')(k))}, {r2(U('Z')(k))}, v[30:31] op_sel_hi:[1,0]")
        p(f"v_pk_mul_f32 {r2(U('Pa')(k))}, {r2(U('Pa')(k))}, v[30:31] op_sel_hi:[1,0]")
    cmul_multi(p, [(U("CB")(k), U("Pb")(k), U("Pa")(k)) for k in range(2)])
    for k in range(2):
        p(f"v_mul_f32 v{U('Z')(k)}, s44, v{U('Z')(k)}")
        p(f"v_mul_f32 v{U('Z')(k)+1}, s45, v{U('Z')(k)+1}")
    p(f"v_mov_b32 v28, {fbits(8.0)}")
    expz(U("E8"), U("Z"), 8.0, U("Tm"))
    expz(U("E1"), U("Z"), 1.0, U("Tm"))
    p(f"v_mov_b32 v28, {fbits(256.0)}")
    expz(U("E256"), U("Z"), 256.0, U("Tm"))
    if 'fine' in exp: p.stamp(10)
    for k in range(2):
        p(f"v_mov_b32 v{U('Tm')(k)}, 1.0\nv_mov_b32 v{U('Tm')(k)+1}, 0")
    put(21, U("Tm"), False)
    put(22, U("E8"), False)
    put(0, U("CB"), True)
    def rnd(items, puts):
        cmul_multi(p, [(U(d)(k), U(x)(k), U(y)(k)) for (d, x, y) in items for k in range(2)])
        for row, nm in puts: put(row, U(nm), row < 21)
    rnd([("E16", "E8", "E8"), ("Pa", "CB", "E1"), ("T1", "CB", "E256"), ("E2", "E1", "E1")], [(23, "E16"), (1, "Pa"), (8, "T1")])
    urounds = [
        ([("Pb", "Pa", "E1"), ("T2", "T1", "E256"), ("E4", "E2", "E2")], [(2, "Pb"), (9, "T2")]),
        ([("Pa", "Pb", "E1"), ("T3", "T2", "E256"), ("Rt", "T1", "E2")], [(3, "Pa"), (10, "T3"), (16, "Rt")]),
        ([("Pb", "Pa", "E1"), ("Ta", "T3", "E256"), ("R4", "T1", "E4")], [(4, "Pb"), (11, "Ta"), (17, "R4")]),
        ([("Pa", "Pb", "E1"), ("Tb", "Ta", "E256"), ("Rt", "R4", "E2")], [(5, "Pa"), (12, "Tb"), (18, "Rt")]),
        ([("Pb", "Pa", "E1"), ("Ta", "Tb", "E256"), ("Rt", "T2", "E4")], [(6, "Pb"), (13, "Ta"), (19, "Rt")]),
        ([("Pa", "Pb", "E1"), ("Tb", "Ta", "E256"), ("Rt", "T3", "E4")], [(7, "Pa"), (14, "Tb"), (20, "Rt")]),
        ([("Ta", "Tb", "E256")], [(15, "Ta")]),
    ]
    o, e = "E8", "E16"
    no, ne = "Oa", "Ea"
    for n, j in enumerate(range(3, 32, 2)):
        items = [(no, o, "E16")]; puts = [(21 + j, no)]
        if j + 1 < 32: items.append((ne, e, "E16")); puts.append((21 + j + 1, ne))
        if n < len(urounds):
            items = items + urounds[n][0]; puts = puts + urounds[n][1]
        rnd(items, puts)
        o, e = no, ne
        no = "Ob" if no == "Oa" else "Oa"
        ne = "Eb" if ne == "Ea" else "Ea"
    if 'fine' in exp: p.stamp(11)
    p(f"""
    v_and_b32 v27, 31, v1
    v_min_u32 v28, 20, v27
    s_movk_i32 s43, 528
    v_mul_u32_u24 v28, s43, v28
    v_mul_u32_u24 v27, s43, v27
    v_lshrrev_b32 v29, 5, v1
    v_lshlrev_b32 v29, 4, v29                 ; kk*16
    v_add3_u32 v28, v28, v29, s42
    s_add_u32 s43, s42, {21*528}
    v_add3_u32 v27, v27, v29, s43
    s_waitcnt lgkmcnt(0)
    """)
    p.stamp()
    DEPTH = 6
    def kr(ks):
        b = 96 + 8*(ks % 8)
        p(f"ds_read_b128 {r4(b)}, v28 offset:{32*ks}")
        p(f"ds_read_b128 {r4(b+4)}, v27 offset:{32*ks}")
    for ks in range(DEPTH): kr(ks)
    p(f"""
    v_lshrrev_b32 v29, 5, v1
    v_lshlrev_b32 v29, 9, v29                 ; half*4*128
    v_and_b32 v24, 31, v1
    v_lshl_add_u32 v29, v24, 2, v29
    s_mul_i32 s42, s53, 3072
    s_add_u32 s42, s42, {TB}
    v_add_u32 v29, s42, v29
    """)
    for ks in range(16):
        outstanding_after = 2 * (min(ks + DEPTH, 16) - (ks + 1))
        p(f"s_waitcnt lgkmcnt({outstanding_after})")
        b = 96 + 8*(ks % 8)
        p(f"v_mfma_f32_32x32x16_bf16 v[160:175], {r4(b)}, {r4(b+4)}, " + ("0" if ks == 0 else "v[160:175]"))
        if ks + DEPTH < 16: kr(ks + DEPTH)
    for r in range(12):
        p(f"ds_write_b32 v29, v{160+r} offset:{((r & 3) + 8*(r >> 2))*128}")
    p(f"""
    s_mul_i32 s42, s35, 6144
    s_add_u32 s42, s42, {TB}
    v_lshl_add_u32 v26, v1, 2, s42
    s_waitcnt lgkmcnt(0)
    s_barrier                                 ; 1
    """)
    p.stamp()
    p(f"""
    s_cmp_lg_u32 s36, 0
    s_cbranch_scc1 L_{name}_g1
    """)
    seg1 = [256, 256, 512, 544, 544, 544, 576, 257]
    p("v_cmp_gt_u32 vcc, 32, v1")
    for e in range(8):
        p(f"v_mov_b32 v{40+e}, {(seg1[e]-32)*4}")
        p(f"v_mov_b32 v48, {32*e*4}")
        p(f"v_cndmask_b32 v{40+e}, v{40+e}, v48, vcc")
        p(f"v_add_u32 v{40+e}, v{40+e}, v26")
    for e in range(8):
        p(f"ds_read2st64_b32 {r2(48+2*e)}, v{40+e} offset0:0 offset1:12")
    p(f"v_add_u32 v32, {288*4}, v26\nv_add_u32 v33, {608*4}, v26\nv_add_u32 v34, {289*4}, v26")
    for i in range(3):
        p(f"ds_read2st64_b32 {r2(64+2*i)}, v{32+i} offset0:0 offset1:12")
    p("s_waitcnt lgkmcnt(0)")
    for e in range(8): p(f"v_add_f32 v{48+2*e}, v{48+2*e}, v{49+2*e}")
    for i in range(3): p(f"v_add_f32 v{64+2*i}, v{64+2*i}, v{65+2*i}")
    for j in range(4):
        p(f"v_cvt_pk_bf16_f32 v{96+j}, v{48+2*(7-2*j)}, v{48+2*(6-2*j)}")
    p(f"""
    v_cvt_pk_bf16_f32 v100, v68, v68
    v_cvt_pk_bf16_f32 v101, v66, v66          ; (K5,K4) = (Q,Q)
    v_cvt_pk_bf16_f32 v102, v66, v64          ; (K3,K2) = (Q,G)
    v_cvt_pk_bf16_f32 v103, v64, v64          ; (K1,K0) = (G,G)
    s_branch L_{name}_g2
    L_{name}_g1:
    """)
    for it in range(2):
        p(f"v_add_u32 v{40+it}, {(352+64*it)*4}, v26")
        p(f"v_add_u32 v{42+it}, {(353+64*it)*4}, v26")
    for it in range(2):
        p(f"ds_read2st64_b32 {r2(48+4*it)}, v{40+it} offset0:0 offset1:12")
        p(f"ds_read2st64_b32 {r2(50+4*it)}, v{42+it} offset0:0 offset1:12")
    p(f"""
    v_and_b32 v44, 1, v1
    v_cmp_eq_u32 vcc, 1, v44
    v_lshrrev_b32 v45, 1, v1
    s_movk_i32 s43, {KCS}
    v_mul_u32_u24 v45, s43, v45
    v_lshl_add_u32 v45, v44, 4, v45
    s_mul_i32 s42, s35, {KCC}
    s_add_u32 s42, s42, {256*16}
    v_add_u32 v45, s42, v45
    v_mov_b32 v60, 0
    v_mov_b32 v61, 0
    v_mov_b32 v62, 0
    v_mov_b32 v63, 0
    s_mov_b64 s[50:51], exec
    s_mov_b64 exec, 0xff
    ds_write_b128 v45, v[60:63]
    s_mov_b64 exec, s[50:51]
    s_waitcnt lgkmcnt(0)
    """)
    for it in range(2):
        G, Gn = 48 + 4*it, 50 + 4*it
        p(f"""
        v_add_f32 v{G}, v{G}, v{G+1}
        v_add_f32 v{Gn}, v{Gn}, v{Gn+1}
        v_cndmask_b32 v46, v{G}, v{Gn}, vcc
        v_cvt_pk_bf16_f32 v{96+4*it}, v{Gn}, v{Gn}       ; (K7,K6)
        v_cvt_pk_bf16_f32 v{97+4*it}, v{Gn}, v46         ; (K5,K4)
        v_cvt_pk_bf16_f32 v{98+4*it}, v{G}, v{G}         ; (K3,K2)
        v_cvt_pk_bf16_f32 v{99+4*it}, v{G}, v{G}         ; (K1,K0)
        """)
    p(f"""
    L_{name}_g2:
    s_mul_i32 s42, s35, {KCC}
    s_lshl_b32 s43, s36, 11                   ; 128*hf*16
    s_sub_u32 s42, s42, s43
    s_add_u32 s42, s42, {255*16}
    v_lshlrev_b32 v27, 4, v1
    v_sub_u32 v27, s42, v27                   ; it = 0
    v_subrev_u32 v28, 1024, v27               ; it = 1
    ds_write_b128 v27, v[96:99]
    ds_write_b128 v28, v[100:103]
    s_waitcnt lgkmcnt(0)
    s_barrier                                 ; 2
    ds_read_b64 v[104:105], v27 offset:16
    ds_read_b64 v[108:109], v28 offset:16
    """)
    p.stamp()
    p(f"""
    v_and_b32 v36, 3, v1                      ; rr & 3
    v_bfe_u32 v35, v1, 2, 1                   ; rr >> 2
    v_bfe_u32 v37, v1, 3, 1                   ; qq
    v_lshrrev_b32 v38, 4, v1                  ; kg
    v_sub_u32 v36, 3, v36
    s_movk_i32 s43, {KCS}
    v_mul_u32_u24 v36, s43, v36
    v_sub_u32 v39, v38, v37
    v_lshl_add_u32 v36, v39, 4, v36
    v_sub_u32 v35, 1, v35
    v_lshl_add_u32 v36, v35, 3, v36
    s_mul_i32 s42, s35, {KCC}
    s_add_u32 s42, s42, {16*253 - 3584}
    s_lshl_b32 s43, s36, 8                    ; 64 * 4 hf
    s_sub_u32 s42, s42, s43
    v_add_u32 v24, s42, v36
    v_and_b32 v36, 15, v1                     ; cc
    v_lshlrev_b32 v36, 5, v36
    v_lshl_add_u32 v36, v38, 4, v36
    s_mul_i32 s42, s35, 4608
    s_add_u32 s42, s42, {UL0 + 480}
    s_sub_u32 s42, s42, s43
    v_add_u32 v25, s42, v36
    """)
    for it in range(2):
        own = 96 + 4*it; nb = 104 + 4*it
        adr = 27 + it
        a = [own, own+1, own+2, own+3, nb, nb+1]
        Bb = 112 + 16*it; Ao = 117 + 16*it; Bo = 121 + 16*it
        p(f"s_waitcnt lgkmcnt({1 - it})")
        for i in range(4): p(f"v_alignbit_b32 v{Bb+i}, v{a[i+1]}, v{a[i]}, 16")
        for i in range(1, 5): p(f"v_mov_b32 v{Ao+i}, v{a[i]}")
        for i in range(1, 5): p(f"v_alignbit_b32 v{Bo+i}, v{a[i+1]}, v{a[i]}, 16")
        p(f"ds_write_b128 v{adr}, {r4(Bb)} offset:{1*KCS}")
        p(f"ds_write_b128 v{adr}, {r4(Ao+1)} offset:{2*KCS}")
        p(f"ds_write_b128 v{adr}, {r4(Bo+1)} offset:{3*KCS}")
    p(f"""
    s_waitcnt lgkmcnt(0)
    s_barrier                                 ; 3
    """)
    p.stamp()
    def FA(s, i): return 64 + 64*s + 4*i
    def FB(s, i): return 96 + 64*s + 4*i
    def ACC(q): return 192 + 4*q
    def frag_reads(s, areg, breg):
        o = []
        for i in range(8):
            o.append(f"ds_read_b64 {r2(FA(s, i))}, v{areg} offset:{(7-i)*512}")
            o.append(f"ds_read_b64 {r2(FA(s, i)+2)}, v{areg} offset:{(7-i)*512 + 8}")
            o.append(f"ds_read_b128 {r4(FB(s, i))}, v{breg} offset:{i*512}")
        return o
    pairs = []
    for s in range(8):
        for j in range(s + 1):
            if s + j <= 7:
                pairs.append((s, j))
                if j < s: pairs.append((j, s))
    for x in frag_reads(0, 24, 25): p(x)
    first = [True]*8
    for rho in range(4):
        s = rho & 1
        nxt = []
        if rho < 3:
            p(f"v_subrev_u32 v{28+2*(rho&1)}, {64*(rho+1)}, v24")
            p(f"v_subrev_u32 v{29+2*(rho&1)}, {64*(rho+1)}, v25")
            nxt = frag_reads(1 - s, 28 + 2*(rho & 1), 29 + 2*(rho & 1))
        ni = 0
        shell_done = -1
        pf_start = 12 if rho == 0 else 1
        for n, (i, j) in enumerate(pairs):
            sh = max(i, j)
            if rho == 0:
                if sh > shell_done and sh <= 3:
                    p(f"s_waitcnt lgkmcnt({min(15, 21 - 3*sh) if sh < 3 else 0})"); shell_done = sh
            elif n == 0:
                p("s_waitcnt lgkmcnt(0)")
            q = i + j
            c_in = "0" if first[q] else r4(ACC(q))
            first[q] = False
            p(f"v_mfma_f32_16x16x32_bf16 {r4(ACC(q))}, {r4(FA(s, i))}, {r4(FB(s, j))}, {c_in}")
            if n >= pf_start and ni < len(nxt): p(nxt[ni]); ni += 1
        assert ni == len(nxt), (rho, ni)
    p.stamp()
    p(f"""
    s_lshl_b32 s42, s53, 13
    s_add_u32 s42, s42, {EX}
    v_lshl_add_u32 v28, v1, 4, s42
    s_cmp_lg_u32 s36, 0
    s_cbranch_scc1 L_{name}_x1
    """)
    for q in range(2, 8): p(f"ds_write_b128 v28, {r4(ACC(q))} offset:{1024*q}")
    for r in range(8): p(f"v_mov_b32 v{64+r}, v{ACC(0)+r}")
    p(f"s_branch L_{name}_x2\nL_{name}_x1:")
    for q in (0, 1, 2, 3, 6, 7): p(f"ds_write_b128 v28, {r4(ACC(q))} offset:{1024*q}")
    for r in range(8): p(f"v_mov_b32 v{64+r}, v{ACC(4)+r}")
    p(f"""
    L_{name}_x2:
    s_xor_b32 s42, s53, 1
    s_lshl_b32 s42, s42, 13
    s_lshl_b32 s43, s36, 12
    s_add_u32 s42, s42, s43
    s_add_u32 s42, s42, {EX}
    v_lshl_add_u32 v29, v1, 4, s42
    s_waitcnt lgkmcnt(0)
    s_barrier                                 ; 4
    ds_read_b128 v[72:75], v29
    ds_read_b128 v[76:79], v29 offset:1024
    s_lshl_b32 s44, s36, 2
    s_waitcnt lgkmcnt(0)
    """)
    for q in range(4): p(f"v_pk_add_f32 {r2(64+2*q)}, {r2(64+2*q)}, {r2(72+2*q)}")
    p(f"s_branch L_{name}_fin")
    p(f"L_{name}_V:")
    if "notouch" not in exp:
        p(f"""
        v_mov_b32 v26, {TOUCH_OFF}
        v_mov_b32 v27, 128
        global_load_dword v28, v26, s[26:27]
        global_load_dword v29, v27, s[24:25]
        """)
    for i in range(8):
        p(f"global_load_dword v{2+i}, v25, s[4:5] offset:{(i-4)*896}" + (" sc1" if "gsc1" in exp else " nt" if "gnt" in exp else ""))
    p.stamp(2)
    p(f"""
    v_mov_b32 v31, 0
    s_mov_b32 s47, 0
    s_cmp_lg_u32 s33, 4
    s_cbranch_scc1 L_{name}_go
    s_waitcnt vmcnt(0)
    L_{name}_poll:
    global_load_dword v24, v31, s[24:25] sc1
    s_waitcnt vmcnt(0)
    v_readfirstlane_b32 s48, v24
    s_add_u32 s47, s47, 1
    s_cmp_ge_u32 s48, 32
    s_cbranch_scc1 L_{name}_go
    s_cmp_ge_u32 s47, 0x40000
    s_cbranch_scc1 L_{name}_go
    s_sleep {SLP}
    s_branch L_{name}_poll
    L_{name}_go:
    v_and_b32 v25, 255, v0
    v_lshlrev_b32 v25, 5, v25
    v_add_u32 v25, {STATS_OFF}, v25
    v_and_b32 v24, 255, v0
    v_lshlrev_b32 v24, 4, v24                 ; tid'*16
    """)
    p.stamp(3)
    p(f"""
    s_barrier                                 ; 1
    global_load_dwordx4 v[16:19], v25, s[26:27] sc1
    global_load_dwordx4 v[20:23], v25, s[26:27] offset:16 sc1
    """)
    p.stamp(4)
    p.stamp(5)
    p(f"""
    s_barrier                                 ; 2
    s_waitcnt vmcnt(0)
    """)
    p.stamp(6)
    for i in range(8):
        S = 16 + i; X = 2 + i
        u0 = 48 + i; u1 = 56 + i
        t = 32 + 4*(i & 1)
        p(f"""
        v_lshlrev_b32 v{t}, 16, v{S}              ; mean
        v_and_b32 v{t+1}, s46, v{S}               ; std
        v_rcp_f32 v{t+1}, v{t+1}
        v_lshlrev_b32 v{t+2}, 16, v{X}
        v_and_b32 v{t+3}, s46, v{X}
        v_sub_f32 v{t+2}, v{t+2}, v{t}
        v_sub_f32 v{t+3}, v{t+3}, v{t}
        v_cvt_pk_bf16_f32 v{t+2}, v{t+2}, v{t+3}
        v_lshlrev_b32 v{t+3}, 16, v{t+2}
        v_and_b32 v{t+2}, s46, v{t+2}
        v_mul_f32 v{u0}, v{t+3}, v{t+1}
        v_mul_f32 v{u1}, v{t+2}, v{t+1}
        """)
    p("s_mov_b32 s48, 0x05040100\ns_mov_b32 s49, 0x07060302")
    for j in range(4):
        p(f"v_cvt_pk_bf16_f32 v{64+j}, v{48+2*j}, v{49+2*j}")
        p(f"v_cvt_pk_bf16_f32 v{68+j}, v{56+2*j}, v{57+2*j}")
        p(f"v_perm_b32 v{72+j}, v{3+2*j}, v{2+2*j}, s48")
        p(f"v_perm_b32 v{76+j}, v{3+2*j}, v{2+2*j}, s49")
    p(f"""
    v_add_u32 v33, {UL0 + 512}, v24
    ds_write_b128 v33, v[64:67]
    ds_write_b128 v33, v[68:71] offset:4608
    ds_write_b128 v33, v[72:75] offset:{XL0 - UL0 - 512}
    ds_write_b128 v33, v[76:79] offset:{XL0 + 4096 - UL0 - 512}
    s_cmp_lg_u32 s33, 4
    s_cbranch_scc1 L_{name}_nopad
    v_mov_b32 v60, 0
    v_mov_b32 v61, 0
    v_mov_b32 v62, 0
    v_mov_b32 v63, 0
    v_lshrrev_b32 v34, 5, v1
    s_movk_i32 s43, 4608
    v_mul_u32_u24 v34, s43, v34
    v_and_b32 v35, 31, v1
    v_lshl_add_u32 v34, v35, 4, v34
    v_add_u32 v34, {UL0}, v34
    ds_write_b128 v34, v[60:63]
    L_{name}_nopad:
    s_waitcnt lgkmcnt(0)
    """)
    p.stamp(7)
    p(f"""
    s_barrier                                 ; 3
    s_lshl_b32 s42, s35, 14                   ; c * 16384
    s_lshl_b32 s43, s36, 12                   ; 4hf * 1024
    s_add_u32 s42, s42, s43
    s_add_u32 s42, s42, {EX + 2048}
    v_lshl_add_u32 v29, v1, 4, s42
    """)
    if getattr(p, "warm_w", False):
        p(f"""
        s_and_b32 s54, s3, 7
        s_lshr_b32 s54, s54, 2
        s_mul_i32 s54, s54, 7
        s_lshr_b32 s55, s3, 5
        s_add_u32 s54, s54, s55                   ; ct
        v_lshrrev_b32 v34, 4, v1
        s_lshl_b32 s55, s53, 2
        v_add_u32 v34, s55, v34
        s_movk_i32 s55, 3584
        v_mul_lo_u32 v34, v34, s55
        v_and_b32 v35, 15, v1
        v_lshl_add_u32 v34, v35, 4, v34
        s_lshl_b32 s54, s54, 8
        v_add_u32 v34, s54, v34
        """)
        for i in range(10):
            p(f"global_load_dwordx4 {r4(96 + 8*(i % 4))}, v34, s[28:29]")
            p(f"global_load_dwordx4 {r4(100 + 8*(i % 4))}, v34, s[30:31]")
            p(f"v_add_u32 v34, {16*3584}, v34")
    p(f"""
    s_barrier                                 ; 4
    ds_read_b128 v[64:67], v29
    ds_read_b128 v[68:71], v29 offset:1024
    ds_read_b128 v[72:75], v29 offset:8192
    ds_read_b128 v[76:79], v29 offset:{8192 + 1024}
    s_lshl_b32 s44, s36, 2
    s_add_u32 s44, s44, 2
    s_waitcnt lgkmcnt(0)
    """)
    for q in range(4): p(f"v_pk_add_f32 {r2(64+2*q)}, {r2(64+2*q)}, {r2(72+2*q)}")
    p(f"""
    L_{name}_fin:
    v_and_b32 v30, 15, v1
    v_lshlrev_b32 v30, 5, v30
    v_lshrrev_b32 v31, 4, v1
    v_lshl_add_u32 v30, v31, 3, v30
    s_lshl_b32 s44, s44, 9                    ; q0 * 512 B
    v_add_u32 v30, s44, v30
    s_mul_i32 s42, s35, 4608
    s_add_u32 s42, s42, {UL0 + 512}
    v_add_u32 v32, s42, v30                   ; u address
    s_lshl_b32 s42, s35, 12
    s_add_u32 s42, s42, {XL0}
    v_add_u32 v33, s42, v30                   ; x address
    ds_read_b64 v[80:81], v32
    ds_read_b64 v[82:83], v32 offset:512
    ds_read_b64 v[84:85], v33
    ds_read_b64 v[86:87], v33 offset:512
    s_lshl_b32 s42, s37, 12
    s_add_u32 s42, s42, {HT_OFF}
    v_add_u32 v35, s42, v30
    v_mov_b32 v36, s41                        ; Dskip
    s_waitcnt lgkmcnt(0)
    """)
    for j in range(2):
        u = 80 + 2*j; x = 84 + 2*j; y = 64 + 4*j
        t = 40 + 8*j
        p(f"""
        v_lshlrev_b32 v{t}, 16, v{u}
        v_and_b32 v{t+1}, s46, v{u}
        v_lshlrev_b32 v{t+2}, 16, v{u+1}
        v_and_b32 v{t+3}, s46, v{u+1}
        v_lshlrev_b32 v{t+4}, 16, v{x}
        v_and_b32 v{t+5}, s46, v{x}
        v_lshlrev_b32 v{t+6}, 16, v{x+1}
        v_and_b32 v{t+7}, s46, v{x+1}
        v_pk_fma_f32 {r2(y)}, {r2(t)}, v[36:37], {r2(y)} op_sel_hi:[1,0,1]
        v_pk_fma_f32 {r2(y+2)}, {r2(t+2)}, v[36:37], {r2(y+2)} op_sel_hi:[1,0,1]
        v_pk_add_f32 {r2(y)}, {r2(y)}, {r2(t+4)}
        v_pk_add_f32 {r2(y+2)}, {r2(y+2)}, {r2(t+6)}
        v_cvt_pk_bf16_f32 v{56+2*j}, v{y}, v{y+1}
        v_cvt_pk_bf16_f32 v{57+2*j}, v{y+2}, v{y+3}
        global_store_dwordx2 v35, {r2(56+2*j)}, s[26:27] offset:{512*j} {hsc}
        """)
    p.stamp()

def gen_k1b(name="k1_kernel", stamps=False, exp=""):
    p = Prog(); p.stamps_on = stamps
    if 'cyc' in exp: p.stamp_op = 's_memtime'
    if 'wl' in exp or 'w4' in exp: p.stamp_tid = (256 if "w4" in exp else 448)
    E = f"L_{name}_end"
    p.exp = exp
    p(f"""
    s_cmp_ge_u32 s2, 256
    s_cbranch_scc1 {E}
    """)
    p.stamp()
    p(f"""
    s_load_dwordx16 s[4:19], s[0:1], 0
    s_load_dwordx2 s[20:21], s[0:1], 64
    s_load_dwordx4 s[24:27], s[0:1], 112
    s_load_dwordx4 s[28:31], s[0:1], 80
    v_lshrrev_b32 v2, 6, v0
    v_and_b32 v1, 63, v0
    v_readfirstlane_b32 s33, v2
    s_cmp_lt_u32 s2, 32
    s_cbranch_scc1 L_{name}_spare
    s_sub_u32 s3, s2, 32
    """)
    gen_conv(p, name)
    if 'fine' in exp: p.nstamp = 12
    p.stamp_flush(STAMP_OFF, ws="s[26:27]")
    p(f"s_branch {E}")
    p(f"L_{name}_spare:")
    gen_spare_stats(p, name)
    gen_spare_cs(p, name)
    if stamps:
        p.stamp(5)
        p.nstamp = 6
        p.stamp_flush(STAMP_OFF, ws="s[26:27]", tag="b")
    p(f"""
    {E}:
    s_endpgm
    """)
    return kernel_text(name, p, vgpr=224, sgpr=96, denorm=(0 if 'ftz' in exp else 3))

K1B_LAUNCH = f"grid=(256,1,1) block=(512,1,1) lds={LDS_K1}"
if __name__ == "__main__":
    import sys
    s = f"; @launch kernel=k1_kernel {K1B_LAUNCH}\n" + '.amdgcn_target "amdgcn-amd-amdhsa--gfx950"\n.text\n' + gen_k1b(stamps=(len(sys.argv) > 2), exp=(sys.argv[2] if len(sys.argv) > 2 else ''))
    open(sys.argv[1], "w").write(s)
```

```python
from asmtool import *
from layout import *
from k2 import std_chain, gen_k2_stats, r4, r2

class VM:
    def __init__(self, p): self.p = p; self.ops = []
    def issue(self, tag, n=1): self.ops += [tag] * n
    def count_after(self, tags):
        last = max(i for i, t in enumerate(self.ops) if t in tags)
        return len(self.ops) - 1 - last
    def wait(self, *tags, extra=""):
        n = self.count_after(set(tags))
        assert n <= 63
        self.p(f"s_waitcnt vmcnt({n}){extra}")

def gen_gemm(p, name, exp="", merged=False):
    NSLOT = 6; SLOT = 24576; EBASE = NSLOT * SLOT
    def ACC(k, mt, nt): return 96 + (0 if k == "g" else 32) + 16*mt + 4*nt
    def SET(s, nm): return 32 + 32*s + {"G0": 0, "G1": 4, "U0": 8, "U1": 12, "X0": 16, "X1": 20, "X2": 24, "X3": 28}[nm]
    E = f"L_{name}_end"
    XSC = "sc1" if merged else ""
    p(f"""
    s_sub_u32 s3, s2, 32
    s_and_b32 s34, s3, 7                      ; xcd
    s_lshr_b32 s35, s3, 3                     ; j
    s_and_b32 s36, s34, 3
    s_lshl_b32 s36, s36, 2
    s_and_b32 s37, s35, 3
    s_add_u32 s36, s36, s37                   ; rt
    s_lshr_b32 s59, s34, 2                    ; ch
    s_mul_i32 s37, s59, 7
    s_lshr_b32 s60, s35, 2                    ; dc (0..6)
    s_add_u32 s37, s37, s60                   ; ct
    s_and_b32 s38, s33, 3
    s_lshr_b32 s39, s33, 2                    ; th
    v_lshrrev_b32 v4, 4, v1                   ; l>>4
    s_lshr_b32 s40, s33, 1
    s_and_b32 s40, s40, 1
    s_lshl_b32 s40, s40, 2
    v_or_b32 v5, s40, v4
    v_lshlrev_b32 v5, 1, v5
    v_and_b32 v6, 15, v1
    v_xor_b32 v5, v5, v6                      ; usrc
    v_lshlrev_b32 v5, 4, v5                   ; usrc*16
    s_lshl_b32 s40, s33, 2
    v_add_u32 v4, s40, v4                     ; row_local
    v_lshlrev_b32 v2, 12, v4                  ; *4096
    s_lshl_b32 s40, s36, 8
    v_add3_u32 v2, v2, v5, s40                ; vX
    s_movk_i32 s41, 3584
    v_mul_lo_u32 v3, v4, s41
    s_lshl_b32 s40, s37, 8
    v_add3_u32 v3, v3, v5, s40                ; vW
    s_lshl_b32 s42, s33, 10
    s_mov_b32 s50, {32*4096}
    s_mov_b32 s51, {32*3584}
    s_mov_b32 s18, {HT_BYTES}
    s_mov_b32 s19, 0x20000
    s_mov_b32 s22, {W_BYTES}
    s_mov_b32 s23, 0x20000
    s_mov_b32 s26, {W_BYTES}
    s_mov_b32 s27, 0x20000
    v_lshrrev_b32 v10, 4, v1
    v_lshlrev_b32 v10, 4, v10
    s_lshl_b32 s40, s37, 9
    s_lshl_b32 s41, s38, 7
    s_add_u32 s40, s40, s41
    s_add_u32 s40, s40, {CS_OFF}
    v_add_u32 v10, s40, v10
    v_add_u32 v11, {1792*4}, v10
    s_waitcnt lgkmcnt(0)
    """)
    if merged:
        p(f"""
        s_waitcnt vmcnt(0)
        s_barrier
        s_cmp_lg_u32 s33, 0
        s_cbranch_scc1 L_{name}_s2w
        s_and_b32 s40, s2, 7
        s_lshl_b32 s40, s40, 7
        s_add_u32 s40, s40, {CNT_OFF + 16*128}
        v_mov_b32 v12, s40
        v_mov_b32 v13, 1
        s_mov_b64 s[56:57], exec
        s_mov_b64 exec, 1
        global_atomic_add v12, v13, s[12:13] sc1
        s_mov_b64 exec, s[56:57]
        v_min_u32 v12, 7, v1
        v_lshlrev_b32 v12, 7, v12
        v_add_u32 v12, {CNT_OFF + 16*128}, v12
        s_mov_b32 s58, 0
        L_{name}_s2p:
        global_load_dword v13, v12, s[12:13] sc1
        s_waitcnt vmcnt(0)
        v_cmp_gt_u32 vcc, 32, v13
        s_add_u32 s58, s58, 1
        s_cmp_ge_u32 s58, 0x40000
        s_cbranch_scc1 L_{name}_s2w
        s_cbranch_vccz L_{name}_s2w
        s_sleep 1
        s_branch L_{name}_s2p
        L_{name}_s2w:
        s_barrier
        """)
    p.stamp()
    p(f"""
    s_add_u32 s16, s12, {HT_OFF}
    s_addc_u32 s17, s13, 0
    s_mov_b32 s20, s8
    s_mov_b32 s21, s9
    s_mov_b32 s24, s10
    s_mov_b32 s25, s11
    global_load_dwordx4 v[160:163], v10, s[12:13] {XSC}
    global_load_dwordx4 v[164:167], v10, s[12:13] offset:64 {XSC}
    global_load_dwordx4 v[168:171], v11, s[12:13] {XSC}
    global_load_dwordx4 v[172:175], v11, s[12:13] offset:64 {XSC}
    """)
    def dma_parts(base):
        return [
            f"s_mov_b32 m0, {base}\ns_add_u32 s45, {base}, 8192\nbuffer_load_dwordx4 v2, s[16:19], 0 offen {XSC} lds",
            f"s_mov_b32 m0, s45\ns_add_u32 s45, {base}, 16384\nbuffer_load_dwordx4 v3, s[20:23], 0 offen lds\nv_add_u32 v2, s50, v2",
            f"s_mov_b32 m0, s45\ns_nop 0\nbuffer_load_dwordx4 v3, s[24:27], 0 offen lds\nv_add_u32 v3, s51, v3",
        ]
    PRE = NSLOT - 1
    for c in range(PRE):
        p(f"s_add_u32 s44, s42, {c*SLOT}")
        for d in dma_parts("s44"): p(d)
    p(f"""
    s_add_u32 s28, s12, {HF_OFF}
    s_addc_u32 s29, s13, 0
    s_mov_b32 s30, {HF_BYTES}
    s_mov_b32 s31, 0x20000
    s_mov_b32 s8, s4
    s_mov_b32 s9, s5
    s_mov_b32 s10, {W_BYTES}
    s_mov_b32 s11, 0x20000
    s_mov_b32 s4, s6
    s_mov_b32 s5, s7
    s_mov_b32 s6, {X_BYTES}
    s_mov_b32 s7, 0x20000
    v_lshrrev_b32 v10, 3, v1
    s_lshl_b32 s40, s38, 3
    v_add_u32 v10, s40, v10
    s_movk_i32 s41, 896
    v_mul_lo_u32 v10, v10, s41
    v_lshrrev_b32 v11, 4, v1
    v_lshlrev_b32 v11, 1, v11
    v_and_b32 v12, 7, v1
    v_xor_b32 v11, v11, v12
    v_lshlrev_b32 v11, 4, v11
    s_lshl_b32 s40, s60, 7
    v_add3_u32 v10, v10, v11, s40             ; vWd
    v_lshrrev_b32 v14, 4, v1                  ; kg
    v_bfe_u32 v11, v1, 2, 2                   ; rr
    v_lshl_add_u32 v12, v14, 3, v11
    v_lshlrev_b32 v12, 8, v12                 ; (8kg+rr)*256
    v_and_b32 v13, 3, v1
    v_lshl_add_u32 v12, v13, 3, v12           ; + 8cc
    v_and_b32 v14, 1, v14
    v_lshl_or_b32 v11, v14, 2, v11            ; f
    """)
    for i in range(2):
        p(f"""
        s_lshl_b32 s40, s38, 1
        s_add_u32 s40, s40, {i}
        v_xor_b32 v13, s40, v11
        v_lshl_add_u32 v{4+i}, v13, 5, v12
        """)
    for i in range(4):
        p(f"""
        s_lshl_b32 s40, s39, 2
        s_add_u32 s40, s40, {i}
        v_xor_b32 v13, s40, v11
        v_lshl_add_u32 v{6+i}, v13, 5, v12
        """)
    for i in range(6): p(f"v_add_u32 v{20+i}, {SLOT}, v{4+i}")
    for r in range(96, 160): p(f"v_mov_b32 v{r}, 0")
    def rd(s, nm, h, abase=None):
        if abase is None: abase = 20 + 6*(1 - s)
        if nm[0] == "G": areg, sub = abase + int(nm[1]), 8192
        elif nm[0] == "U": areg, sub = abase + int(nm[1]), 16384
        else: areg, sub = abase + 2 + int(nm[1]), 0
        b = SET(s, nm) + 2*h
        return f"ds_read_b64_tr_b16 {r2(b)}, v{areg} offset:{sub + 1024*h}"
    def mf(s, k, mt, nt):
        acc = ACC(k, mt, nt)
        a = SET(s, ("G" if k == "g" else "U") + str(mt)); b = SET(s, f"X{nt}")
        return f"v_mfma_f32_16x16x32_bf16 {r4(acc)}, {r4(a)}, {r4(b)}, {r4(acc)}"
    RD_ORDER = ["G0", "X0", "U0", "X1", "G1", "U1", "X2", "X3"]
    MF_ORDER = [("g",0,0), ("u",0,0), ("g",0,1), ("u",0,1), ("g",1,0), ("g",1,1), ("u",1,0), ("u",1,1),
                ("g",0,2), ("u",0,2), ("g",1,2), ("u",1,2), ("g",0,3), ("u",0,3), ("g",1,3), ("u",1,3)]
    need_rd = {"G0": 1, "X0": 3, "U0": 5, "X1": 7, "G1": 9, "U1": 11, "X2": 13, "X3": 15}
    p(f"""
    s_waitcnt vmcnt({3*(PRE-1)})
    s_barrier
    """)
    p.stamp()
    for nm in RD_ORDER:
        for h in range(2): p(rd(0, nm, h, abase=4))
    p(f"""
    s_mov_b32 s48, 0                          ; iteration
    s_mov_b32 s53, {2*SLOT}
    s_add_u32 s54, s42, {PRE*SLOT}
    L_{name}_loop:
    """)
    def chunk(s, vmw, dp, last=False, static_c=None, hooks={}):
        reads = [] if last else [rd(1 - s, nm, h) for nm in RD_ORDER for h in range(2)]
        done = -1
        other = 20 + 6*(1 - s)
        for i in range(16):
            k, mt, nt = MF_ORDER[i]
            need = max(need_rd[("G" if k == "g" else "U") + str(mt)], need_rd[f"X{nt}"])
            if need > done:
                allowed = (15 - need) + (0 if last else i)
                p(f"s_waitcnt lgkmcnt({min(allowed, 15)})")
                done = need
            p(mf(s, k, mt, nt))
            if i == 0:
                vmw(); p("s_barrier")
            if not last: p(reads[i])
            if i in (2, 5, 8): dp((i - 2)//3)
            if i in hooks: hooks[i]()
            if 10 <= i <= 15 and not last:
                if static_c is None: p(f"v_add_u32 v{other + i - 10}, s53, v{4 + i - 10}")
                elif static_c + 2 <= 13: p(f"v_add_u32 v{other + i - 10}, {((static_c + 2) % NSLOT)*SLOT}, v{4 + i - 10}")
            if i == 9 and static_c is None:
                p(f"""
                s_add_u32 s54, s54, {SLOT}
                s_sub_u32 s55, s54, s42
                s_cmp_eq_u32 s55, {NSLOT*SLOT}
                s_cselect_b32 s54, s42, s54
                """)
        if static_c is None:
            p(f"""
            s_add_u32 s53, s53, {SLOT}
            s_cmp_eq_u32 s53, {NSLOT*SLOT}
            s_cselect_b32 s53, 0, s53
            """)
    loop_dp = dma_parts("s54")
    for s in range(2):
        chunk(s, lambda: p(f"s_waitcnt vmcnt({3*(PRE-2)})"), lambda j: p(loop_dp[j]))
    p(f"""
    s_add_u32 s48, s48, 1
    s_cmp_lt_u32 s48, 4
    s_cbranch_scc1 L_{name}_loop
    """)
    vm = VM(p)
    for c in range(13): vm.issue(f"c{c}", 3)
    def kstep_soff(s): return s * 32 * 896
    def wd_piece(lds_base, s_th0, s_th1, tag):
        a, b = kstep_soff(s_th0), kstep_soff(s_th1)
        p(f"""
        s_mul_i32 s46, s39, {b - a}
        s_add_u32 m0, s42, {lds_base}
        s_add_u32 s46, s46, {a}
        buffer_load_dwordx4 v10, s[8:11], s46 offen lds
        """)
        vm.issue(tag)
    stage = [(kq, n) for kq in range(4) for n in range(4)]
    def stage_ks(i): return 14*stage[i][0] + stage[i][1]
    def final_ks(L): return 14*(L // 10) + 4 + (L % 10)
    for j in range(2):
        wd_piece(EBASE + 8192*j, stage_ks(2*j), stage_ks(2*j + 1), "E")
    def tail_dp(c):
        if c == 8:
            parts = dma_parts("s44")
            def f(j):
                if j == 0: p(f"s_add_u32 s44, s42, {(13 % NSLOT)*SLOT}")
                p(parts[j]); vm.issue("c13")
            return f
        slot = (c - 1) % NSLOT
        def f(j):
            b0 = 2*j
            if c == 9:   ks = (stage_ks(4 + b0), stage_ks(4 + b0 + 1))
            elif c == 10: ks = (stage_ks(10 + b0), stage_ks(10 + b0 + 1))
            else:        ks = (final_ks(6*slot + b0), final_ks(6*slot + b0 + 1))
            wd_piece(slot*SLOT + 8192*j, ks[0], ks[1], f"w{c}")
        return f
    def stats_addr():
        p(f"""
        v_and_b32 v11, 15, v1
        s_lshl_b32 s40, s36, 7
        s_lshl_b32 s41, s39, 6
        s_add_u32 s40, s40, s41
        v_add_u32 v11, s40, v11
        v_lshlrev_b32 v11, 3, v11
        v_add_u32 v11, {ST2_OFF}, v11
        """)
    def stats_loads():
        for nt in range(4):
            p(f"global_load_dwordx2 {r2(176+2*nt)}, v11, s[12:13] offset:{128*nt} sc1")
        vm.issue("st", 4)
    for c in range(8, 14):
        last = (c == 13)
        vmw = (lambda c=c: vm.wait(f"c{c+1}")) if c < 13 else (lambda: None)
        hooks = {}
        if c == 11: hooks = {11: stats_addr}
        if c == 12: hooks = {11: stats_loads}
        chunk(c & 1, vmw, tail_dp(c), last=last, static_c=c, hooks=hooks)
    p.stamp()
    vm.wait("st")
    p(f"""
    s_mov_b32 s58, 0
    L_{name}_poll:
    v_max_u32 v184, v176, v177
    v_max3_u32 v184, v184, v178, v179
    v_max3_u32 v184, v184, v180, v181
    v_max3_u32 v184, v184, v182, v183
    v_cmp_eq_u32 vcc, -1, v184
    s_add_u32 s58, s58, 1
    s_cmp_ge_u32 s58, 0x40000
    s_cbranch_scc1 L_{name}_got
    s_cbranch_vccz L_{name}_got
    s_sleep 2
    global_load_dwordx2 v[176:177], v11, s[12:13] sc1
    global_load_dwordx2 v[178:179], v11, s[12:13] offset:128 sc1
    global_load_dwordx2 v[180:181], v11, s[12:13] offset:256 sc1
    global_load_dwordx2 v[182:183], v11, s[12:13] offset:384 sc1
    s_waitcnt vmcnt(0)
    s_branch L_{name}_poll
    L_{name}_got:
    s_mov_b32 s40, 0xbfb8aa3b                 ; -log2(e)
    """)
    for nt in range(4):
        m, r = 176 + 2*nt, 177 + 2*nt
        p(f"""
        v_mul_f32 v{184+nt}, s40, v{r}
        v_mul_f32 v{192+nt}, -v{r}, v{m}
        v_mul_f32 v{188+nt}, -v{184+nt}, v{m}
        """)
    p(f"""
    s_lshl_b32 s40, s36, 3
    s_lshl_b32 s41, s39, 2
    s_add_u32 s40, s40, s41
    s_mul_i32 s40, s40, 56
    s_lshl_b32 s41, s37, 2
    s_add_u32 s40, s40, s41
    s_add_u32 s40, s40, s38
    s_lshl_b32 s40, s40, 10
    v_lshl_add_u32 v11, v1, 4, s40
    s_mov_b32 s41, 0
    """)
    p.stamp()
    CSG = 160; CSU = 168
    for nt in range(4):
        a, b, rb, rs = 184 + nt, 188 + nt, 192 + nt, 177 + 2*nt
        out = 196 + 4*nt
        for mt in range(2):
            g = ACC("g", mt, nt); u = ACC("u", mt, nt)
            for r in range(4):
                p(f"v_mul_f32 v{g+r}, v{a}, v{g+r}")
                p(f"v_mul_f32 v{u+r}, v{rs}, v{u+r}")
            for r in range(4):
                p(f"v_fma_f32 v{g+r}, v{b}, v{CSG+4*mt+r}, v{g+r}")
                p(f"v_fma_f32 v{u+r}, v{rb}, v{CSU+4*mt+r}, v{u+r}")
            for r in range(4): p(f"v_exp_f32 v{g+r}, v{g+r}")
        for mt in range(2):
            g = ACC("g", mt, nt)
            for r in range(4): p(f"v_add_f32 v{g+r}, 1.0, v{g+r}")
        for mt in range(2):
            g = ACC("g", mt, nt)
            for r in range(4): p(f"v_rcp_f32 v{g+r}, v{g+r}")
        for mt in range(2):
            g = ACC("g", mt, nt); u = ACC("u", mt, nt)
            for r in range(4): p(f"v_mul_f32 v{u+r}, v{u+r}, v{g+r}")
        for mt in range(2):
            u = ACC("u", mt, nt)
            p(f"v_cvt_pk_bf16_f32 v{out+2*mt}, v{u}, v{u+1}")
            p(f"v_cvt_pk_bf16_f32 v{out+2*mt+1}, v{u+2}, v{u+3}")
        p(f"buffer_store_dwordx4 {r4(out)}, v11, s[28:31], s41 offen sc1")
        vm.issue("hs")
        p(f"s_add_u32 s41, s41, {56*1024}")
    p.stamp()
    vm.wait("E", "w9", "w10")
    p("s_barrier")
    for j in range(3):
        wd_piece(1*SLOT + 8192*j, final_ks(6 + 2*j), final_ks(6 + 2*j + 1), "wf")
    p(f"""
    v_lshrrev_b32 v14, 4, v1                  ; kg
    v_bfe_u32 v15, v1, 2, 2                   ; rr
    v_lshl_add_u32 v12, v14, 2, v15
    v_lshlrev_b32 v12, 7, v12
    v_and_b32 v13, 3, v1
    v_lshl_add_u32 v12, v13, 3, v12
    v_and_b32 v14, 1, v14
    v_lshrrev_b32 v15, 1, v15
    v_lshl_or_b32 v15, v14, 1, v15            ; g3
    v_xor_b32 v15, s38, v15                   ; g3 ^ kq
    s_lshl_b32 s40, s38, 2
    s_add_u32 s40, s40, 8
    s_lshl_b32 s40, s40, 12                   ; (8 + 4kq)*4096
    s_cmp_eq_u32 s38, 0
    s_cselect_b32 s40, {EBASE}, s40
    s_mul_i32 s41, s38, 40960
    """)
    for j in range(4):
        p(f"""
        v_xor_b32 v13, {j}, v15
        v_lshl_add_u32 v13, v13, 5, v12
        v_add_u32 v{20+j}, s40, v13
        v_add_u32 v{24+j}, s41, v13
        """)
    for n in range(4):
        for j in range(4):
            b = 32 + 16*n + 4*j
            p(f"ds_read_b64_tr_b16 {r2(b)}, v{20+j} offset:{n*4096}")
            p(f"ds_read_b64_tr_b16 {r2(b+2)}, v{20+j} offset:{n*4096 + 2048}")
    p(f"""
    s_lshl_b32 s40, s36, 1
    s_add_u32 s40, s40, s59                   ; rt2
    s_lshl_b32 s41, s40, 2
    s_lshl_b32 s43, s39, 1
    s_add_u32 s41, s41, s43                   ; T16(nt=0)
    s_mul_i32 s43, s41, 56
    s_mul_i32 s44, s38, 14
    s_add_u32 s43, s43, s44
    s_lshl_b32 s43, s43, 10
    v_lshl_add_u32 v2, v1, 4, s43             ; vH0
    v_add_u32 v3, {56*1024}, v2               ; vH1
    v_and_b32 v4, 15, v1
    s_lshl_b32 s41, s41, 4                    ; t0
    v_add_u32 v4, s41, v4                     ; t (nt=0)
    s_lshl_b32 s43, s60, 6
    s_lshl_b32 s44, s38, 4
    s_add_u32 s43, s43, s44
    v_lshrrev_b32 v5, 4, v1                   ; rg
    v_lshlrev_b32 v6, 2, v5
    v_add_u32 v6, s43, v6
    v_lshlrev_b32 v6, 12, v6
    v_lshl_add_u32 v6, v4, 1, v6              ; vRes
    v_and_b32 v7, 1, v5
    v_lshl_add_u32 v4, v7, 4, v4
    s_movk_i32 s44, 896
    v_mul_lo_u32 v4, v4, s44
    v_lshrrev_b32 v5, 1, v5
    v_lshlrev_b32 v5, 4, v5
    s_lshl_b32 s43, s43, 1
    v_add3_u32 v7, v4, v5, s43                ; vOut
    s_lshl_b32 s40, s36, 7
    s_add_u32 s40, s40, {CNT_OFF}
    v_mov_b32 v8, s40
    """)
    vm.wait("hs", extra=" lgkmcnt(0)")
    p("s_barrier")
    p.stamp()
    p(f"""
    s_cmp_lg_u32 s33, 0
    s_cbranch_scc1 L_{name}_noarr
    v_mov_b32 v9, 1
    s_mov_b64 s[56:57], exec
    s_mov_b64 exec, 1
    global_atomic_add v8, v9, s[12:13] sc1
    s_mov_b64 exec, s[56:57]
    L_{name}_noarr:
    """)
    for j in range(8):
        if j < 6: base, L0 = 12*4096 + 8192*j, 12 + 2*j
        else: base, L0 = EBASE + 8192*(j - 6), 36 + 2*(j - 6)
        wd_piece(base, final_ks(L0), final_ks(L0 + 1), "wr")
    for i in range(8):
        nt, r = i >> 2, i & 3
        p(f"s_mov_b32 s40, {r*4096 + nt*32}")
        p(f"buffer_load_ushort v{12 + i}, v6, s[16:19], s40 offen {XSC}")
    p(f"""
    s_cmp_lg_u32 s33, 0
    s_cbranch_scc1 L_{name}_nopoll
    s_mov_b32 s58, 0
    L_{name}_poll2:
    global_load_dword v9, v8, s[12:13] sc1
    s_waitcnt vmcnt(0)
    v_readfirstlane_b32 s40, v9
    s_add_u32 s58, s58, 1
    s_cmp_ge_u32 s40, 14
    s_cbranch_scc1 L_{name}_nopoll
    s_cmp_ge_u32 s58, 0x40000
    s_cbranch_scc1 L_{name}_nopoll
    s_sleep 1
    s_branch L_{name}_poll2
    L_{name}_nopoll:
    {"" if "b4late" in exp else "s_waitcnt vmcnt(0)"}
    s_barrier                                 ; B4
    """)
    p.stamp()
    HB = 96; A2 = 208; AB = [240, 32, 48]
    def ACC2(j, nt): return A2 + 8*j + 4*nt
    vm2 = VM(p)
    HD = 3
    for tok in exp.split("_"):
        if tok.startswith("hd"): HD = int(tok[2:])
    def h_issue(n):
        p(f"s_mov_b32 s40, {n*1024}")
        p(f"buffer_load_dwordx4 {r4(HB + 8*n)}, v2, s[28:31], s40 offen sc1")
        p(f"buffer_load_dwordx4 {r4(HB + 8*n + 4)}, v3, s[28:31], s40 offen sc1")
        vm2.issue(f"h{n}", 2)
    for n in range(min(HD, 14)): h_issue(n)
    def abuf(n):
        if n < 4: return 32 + 16*n
        if n == 4: return 240
        return 32 + 16*((n - 5) % 2) if n >= 5 else None
    def a_reads(n):
        m = n - 4
        o = []
        for j in range(4):
            b = abuf(n) + 4*j
            o.append(f"ds_read_b64_tr_b16 {r2(b)}, v{24+j} offset:{m*4096}")
            o.append(f"ds_read_b64_tr_b16 {r2(b+2)}, v{24+j} offset:{m*4096 + 2048}")
        return o
    for n in range(14):
        vm2.wait(f"h{n}", extra=(" lgkmcnt(0)" if n >= 4 else ""))
        if n == 3 and "b4late" in exp: p("s_barrier")
        nxt = a_reads(n + 1) if (n + 1 >= 4 and n + 1 < 14) else []
        k = 0
        for nt in range(2):
            for j in range(4):
                c_in = "0" if n == 0 else r4(ACC2(j, nt))
                p(f"v_mfma_f32_16x16x32_bf16 {r4(ACC2(j, nt))}, {r4(abuf(n) + 4*j)}, {r4(HB + 8*n + 4*nt)}, {c_in}")
                if k < len(nxt): p(nxt[k])
                k += 1
                if k == 2 and n + HD < 14: h_issue(n + HD)
    p.stamp()
    p(f"""
    s_barrier
    v_lshlrev_b32 v9, 4, v1
    """)
    for j in range(1, 4):
        p(f"""
        s_xor_b32 s40, s33, {j}
        s_mul_i32 s40, s40, {3*2048}
        s_add_u32 s40, s40, {(j-1)*2048}
        v_add_u32 v10, s40, v9
        ds_write_b128 v10, {r4(ACC2(j, 0))}
        ds_write_b128 v10, {r4(ACC2(j, 1))} offset:1024
        """)
    p(f"""
    s_mul_i32 s40, s33, {3*2048}
    v_add_u32 v10, s40, v9
    s_waitcnt lgkmcnt(0)
    s_barrier
    """)
    for k in range(3):
        p(f"ds_read_b128 {r4(32 + 8*k)}, v10 offset:{k*2048}")
        p(f"ds_read_b128 {r4(36 + 8*k)}, v10 offset:{k*2048 + 1024}")
    for i in range(8): p(f"v_lshlrev_b32 v{12+i}, 16, v{12+i}")
    for k in range(3):
        p(f"s_waitcnt lgkmcnt({4 - 2*k})")
        for q in range(4):
            p(f"v_pk_add_f32 {r2(A2 + 2*q)}, {r2(A2 + 2*q)}, {r2(32 + 8*k + 2*q)}")
    for q in range(4): p(f"v_cvt_pk_bf16_f32 v{56+q}, v{A2 + 2*q}, v{A2 + 2*q + 1}")
    for q in range(4):
        p(f"v_lshlrev_b32 v{A2 + 2*q}, 16, v{56+q}")
        p(f"v_and_b32 v{A2 + 2*q + 1}, 0xffff0000, v{56+q}")
    for q in range(4): p(f"v_pk_add_f32 {r2(A2 + 2*q)}, {r2(A2 + 2*q)}, {r2(12 + 2*q)}")
    for q in range(4): p(f"v_cvt_pk_bf16_f32 v{56+q}, v{A2 + 2*q}, v{A2 + 2*q + 1}")
    p("""
    v_permlane16_swap_b32 v56, v58
    v_permlane16_swap_b32 v57, v59
    buffer_store_dwordx4 v[56:59], v7, s[4:7], 0 offen
    """)
    p.stamp()

def gen_k23(name="k23_kernel", stamps=False, exp=""):
    p = Prog(); p.stamps_on = stamps
    if 'cyc' in exp: p.stamp_op = 's_memtime'
    if 'wl' in exp: p.stamp_tid = 448
    E = f"L_{name}_end"
    p(f"""
    s_cmp_ge_u32 s2, 256
    s_cbranch_scc1 {E}
    """)
    p.stamp()
    p(f"""
    s_load_dwordx4 s[8:11], s[0:1], 80
    s_load_dwordx2 s[12:13], s[0:1], 120      ; ws
    s_load_dwordx4 s[4:7], s[0:1], 96
    v_lshrrev_b32 v2, 6, v0
    v_and_b32 v1, 63, v0                      ; lane
    v_readfirstlane_b32 s33, v2
    s_cmp_lt_u32 s2, 32
    s_cbranch_scc1 L_{name}_stats
    """)
    gen_gemm(p, name, exp)
    p.stamp_flush(STAMP_OFF + 0x4000)
    p(f"s_branch {E}")
    p(f"L_{name}_stats:")
    gen_k2_stats(p, name, tail=("" if "nowarm" in exp else "warm"))
    p(f"""
    {E}:
    s_endpgm
    """)
    return kernel_text(name, p, vgpr=256, sgpr=96)

K23_LAUNCH = "grid=(256,1,1) block=(512,1,1) lds=163840"
if __name__ == "__main__":
    import sys
    s = f"; @launch kernel=k23_kernel {K23_LAUNCH}\n" + '.amdgcn_target "amdgcn-amd-amdhsa--gfx950"\n.text\n' + gen_k23(stamps=(len(sys.argv) > 2), exp=(sys.argv[2] if len(sys.argv) > 2 else ''))
    open(sys.argv[1], "w").write(s)
```

```python
from asmtool import *
from layout import *
from k1b import gen_conv, gen_spare_stats, gen_spare_cs, r4
from k2 import gen_k2_stats
from k23 import gen_gemm

KNAME = "sequential_preLN__ssm_conv_s4__glu_gated_glu__prompt_kernel"

def gen_kall(name=KNAME, stamps=False, exp=""):
    p = Prog(); p.stamps_on = stamps; p.exp = exp
    if 'cyc' in exp: p.stamp_op = 's_memtime'
    if 'wl' in exp: p.stamp_tid = 448
    lab = "kall"
    E = f"L_{lab}_end"
    p(f"""
    s_cmp_ge_u32 s2, 256
    s_cbranch_scc1 {E}
    """)
    p.stamp()
    p(f"""
    s_load_dwordx16 s[4:19], s[0:1], 0
    s_load_dwordx2 s[20:21], s[0:1], 64
    s_load_dwordx4 s[24:27], s[0:1], 112
    s_load_dwordx4 s[28:31], s[0:1], 80
    v_lshrrev_b32 v2, 6, v0
    v_and_b32 v1, 63, v0
    v_readfirstlane_b32 s33, v2
    s_cmp_lt_u32 s2, 32
    s_cbranch_scc1 L_{lab}_spare
    s_sub_u32 s3, s2, 32
    """)
    p.warm_w = "nowarmw" not in exp
    coarse = stamps and "k1st" not in exp
    if coarse: p.stamps_on = False
    gen_conv(p, lab, hsc="sc1")
    if coarse: p.stamps_on = True
    p.stamp()
    p(f"""
    s_load_dwordx4 s[8:11], s[0:1], 80
    s_load_dwordx2 s[12:13], s[0:1], 120      ; ws
    s_load_dwordx4 s[4:7], s[0:1], 96
    """)
    if stamps and not coarse: p.stamps_on = False
    gen_gemm(p, lab + "g", exp, merged=True)
    if stamps:
        p.stamps_on = True
        p.stamp_flush(STAMP_OFF + 0x4000)
    p(f"s_branch {E}")
    p(f"L_{lab}_spare:")
    so = p.stamps_on; p.stamps_on = False
    gen_spare_stats(p, lab)
    gen_spare_cs(p, lab, sc1="sc1")
    p(f"""
    s_load_dwordx2 s[12:13], s[0:1], 120      ; ws
    s_load_dwordx4 s[4:7], s[0:1], 96
    s_barrier
    s_cmp_lg_u32 s33, 0
    s_cbranch_scc1 L_{lab}_sp2w
    v_mov_b32 v12, 0
    s_mov_b32 s58, 0
    L_{lab}_sp1p:
    global_load_dword v13, v12, s[24:25] sc1
    s_waitcnt vmcnt(0)
    v_readfirstlane_b32 s40, v13
    s_add_u32 s58, s58, 1
    s_cmp_ge_u32 s40, 32
    s_cbranch_scc1 L_{lab}_sp1d
    s_cmp_ge_u32 s58, 0x40000
    s_cbranch_scc1 L_{lab}_sp1d
    s_sleep 8
    s_branch L_{lab}_sp1p
    L_{lab}_sp1d:
    s_waitcnt lgkmcnt(0)
    s_and_b32 s40, s2, 7
    s_lshl_b32 s40, s40, 7
    s_add_u32 s40, s40, {CNT_OFF + 16*128}
    v_mov_b32 v12, s40
    v_mov_b32 v13, 1
    s_mov_b64 s[56:57], exec
    s_mov_b64 exec, 1
    global_atomic_add v12, v13, s[12:13] sc1
    s_mov_b64 exec, s[56:57]
    v_min_u32 v12, 7, v1
    v_lshlrev_b32 v12, 7, v12
    v_add_u32 v12, {CNT_OFF + 16*128}, v12
    s_mov_b32 s58, 0
    L_{lab}_sp2p:
    global_load_dword v13, v12, s[12:13] sc1
    s_waitcnt vmcnt(0)
    v_cmp_gt_u32 vcc, 32, v13
    s_add_u32 s58, s58, 1
    s_cmp_ge_u32 s58, 0x40000
    s_cbranch_scc1 L_{lab}_sp2w
    s_cbranch_vccz L_{lab}_sp2w
    s_sleep 8
    s_branch L_{lab}_sp2p
    L_{lab}_sp2w:
    s_waitcnt lgkmcnt(0)
    s_barrier
    """)
    gen_k2_stats(p, lab, tail=("" if "nowarm_" in exp + "_" else "warm"), sc="sc1")
    p.stamps_on = so
    p(f"""
    {E}:
    s_endpgm
    """)
    return kernel_text(name, p, vgpr=256, sgpr=100)

KALL_LAUNCH = "grid=(256,1,1) block=(512,1,1) lds=163840"
```

```python
import sys
from k1 import gen_k1, K1_LAUNCH
from k2 import gen_k2, K2_LAUNCH
from k3 import gen_k3, K3_LAUNCH
from k23 import gen_k23, K23_LAUNCH
from k1b import gen_k1b, K1B_LAUNCH
from kall import gen_kall, KALL_LAUNCH
def build(stamps=False, exp=""):
    if "sep" in exp: return build3(stamps, exp)
    if "two" in exp or "oldk1" in exp: return build2(stamps, exp)
    s = "; pre-LN S4 convolution block + pre-LN GLU block, one launch (workgroup hand-offs through d_debug / d_ws)\n"
    s += "; kernarg: 13 input pointers, d_out (104), d_debug (112), d_ws (120)\n"
    s += f"; @launch {KALL_LAUNCH}\n"
    s += '.amdgcn_target "amdgcn-amd-amdhsa--gfx950"\n.text\n'
    s += gen_kall(stamps=stamps, exp=exp)
    return s
def build2(stamps=False, exp=""):
    s = "; sequential preLN -> S4 convolution -> GLU MLP, two launches\n"
    s += "; kernarg: 13 input pointers, d_out (104), d_debug (112), d_ws (120)\n"
    old = "oldk1" in exp
    s += f"; @launch kernel=k1_kernel {K1_LAUNCH if old else K1B_LAUNCH}\n"
    s += f"; @launch kernel=k23_kernel {K23_LAUNCH}\n"
    s += '.amdgcn_target "amdgcn-amd-amdhsa--gfx950"\n.text\n'
    s += (gen_k1 if old else gen_k1b)(stamps=stamps, exp=exp) + gen_k23(stamps=stamps, exp=exp)
    return s
def build3(stamps=False, exp=""):
    s = "; sequential preLN -> S4 convolution -> GLU MLP, three launches\n"
    s += "; kernarg: 13 input pointers, d_out (104), d_debug (112), d_ws (120)\n"
    s += f"; @launch kernel=k1_kernel {K1_LAUNCH}\n"
    s += f"; @launch kernel=k2_kernel {K2_LAUNCH}\n"
    s += f"; @launch kernel=k3_kernel {K3_LAUNCH}\n"
    s += '.amdgcn_target "amdgcn-amd-amdhsa--gfx950"\n.text\n'
    s += gen_k1(stamps=stamps, exp=exp) + gen_k2(stamps=stamps, exp=exp) + gen_k3(stamps=stamps, exp=exp)
    return s
if __name__ == "__main__":
    out = sys.argv[1] if len(sys.argv) > 1 else "sequential_preLN__ssm_conv_s4__glu_gated_glu__prompt.s"
    open(out, "w").write(build(stamps=(len(sys.argv) > 2 and not sys.argv[2].startswith("ns")), exp=(sys.argv[2] if len(sys.argv) > 2 else "")))
```

```python
from asmtool import *
from layout import *
import struct

def r4(b): return f"v[{b}:{b+3}]"
def r2(b): return f"v[{b}:{b+1}]"
def fbits(x): return "0x%08x" % struct.unpack("<I", struct.pack("<f", x))[0]

WREG = 53 * 528
KCS = 4160
KCC = 4 * KCS
TB = 4 * WREG
UL0 = TB + 12288
XL0 = UL0 + 2 * 4608
LDS_K1 = XL0 + 2 * 4096
EX = 40960

def cmul_multi(p, items):
    for d, x, y in items: p(f"v_pk_mul_f32 {r2(d)}, {r2(x)}, {r2(y)} op_sel_hi:[1,0]")
    for d, x, y in items: p(f"v_pk_fma_f32 {r2(d)}, {r2(x)}, {r2(y)}, {r2(d)} op_sel:[1,1,0] op_sel_hi:[0,1,1] neg_lo:[1,0,0]")

def gen_spare_stats(p, name):
    p(f"""
    v_lshrrev_b32 v2, 3, v1                   ; lane>>3
    s_lshl_b32 s34, s2, 6
    s_lshl_b32 s35, s33, 3
    s_add_u32 s34, s34, s35                   ; 64b + 8w
    v_add_u32 v2, s34, v2                     ; row
    s_movk_i32 s35, 896
    v_mul_lo_u32 v3, v2, s35
    v_and_b32 v4, 7, v1
    v_lshl_add_u32 v3, v4, 4, v3
    s_waitcnt lgkmcnt(0)
    """)
    for i in range(7):
        p(f"global_load_dwordx4 {r4(32 + 4*i)}, v3, s[4:5] offset:{128*i}")
    if "notouch" not in getattr(p, "exp", ""):
        p(f"""
        v_mov_b32 v24, {TOUCH_OFF}
        v_mov_b32 v25, 128
        global_load_dword v26, v24, s[26:27]
        global_load_dword v27, v25, s[24:25]
        """)
    p(f"""
    s_mov_b32 s44, 0x3f803f80
    v_mov_b32 v10, 0
    v_mov_b32 v11, 0
    v_mov_b32 v14, 0
    v_mov_b32 v15, 0
    s_lshl_b32 s40, s2, 9
    s_add_u32 s40, s40, {ST2_OFF}
    v_lshl_add_u32 v20, v1, 3, s40
    v_mov_b32 v18, -1
    v_mov_b32 v19, -1
    v_lshlrev_b32 v21, 7, v1
    v_add_u32 v21, {CNT_OFF}, v21
    v_mov_b32 v22, 0
    s_mov_b64 s[46:47], exec
    s_cmp_lg_u32 s33, 1
    s_cbranch_scc1 L_{name}_noinit
    global_store_dwordx2 v20, v[18:19], s[26:27] sc1
    s_cmp_lg_u32 s2, 0
    s_cbranch_scc1 L_{name}_noinit
    s_mov_b32 exec_hi, 0
    global_store_dword v21, v22, s[26:27] sc1
    s_mov_b64 exec, s[46:47]
    L_{name}_noinit:
    """)
    for i in range(7):
        p(f"s_waitcnt vmcnt({6 - i})" if False else "")
    p.stamp(1)
    p("s_waitcnt vmcnt(0)")
    p.stamp(2)
    for i in range(7):
        for j in range(4):
            v = 32 + 4*i + j
            if j & 1:
                p(f"v_dot2_f32_bf16 v14, v{v}, s44, v14")
                p(f"v_dot2_f32_bf16 v15, v{v}, v{v}, v15")
            else:
                p(f"v_dot2_f32_bf16 v10, v{v}, s44, v10")
                p(f"v_dot2_f32_bf16 v11, v{v}, v{v}, v11")
    p("v_add_f32 v10, v10, v14\nv_add_f32 v11, v11, v15")
    for dpp in ("quad_perm:[1,0,3,2]", "quad_perm:[2,3,0,1]", "row_half_mirror"):
        for r in (10, 11):
            p(f"v_add_f32_dpp v{r}, v{r}, v{r} {dpp} row_mask:0xf bank_mask:0xf")
    p(f"""
    s_mov_b32 s40, 0x3b124925                 ; 1/448
    s_mov_b32 s41, 0x3727c5ac                 ; 1e-5
    v_mul_f32 v10, s40, v10
    v_mul_f32 v11, s40, v11
    v_fma_f32 v11, -v10, v10, v11
    v_max_f32 v11, 0, v11
    v_cvt_pk_bf16_f32 v16, v11, v11
    v_lshlrev_b32 v16, 16, v16
    v_add_f32 v16, s41, v16
    v_cvt_pk_bf16_f32 v16, v16, v16
    v_lshlrev_b32 v16, 16, v16
    v_sqrt_f32 v16, v16
    v_cvt_pk_bf16_f32 v16, v10, v16
    v_lshlrev_b32 v2, 2, v2
    v_add_u32 v2, {STATS_OFF}, v2
    s_mov_b32 s42, 0x01010101
    s_mov_b32 s43, 0x01010101
    s_mov_b64 exec, s[42:43]
    global_store_dword v2, v16, s[26:27] sc1
    s_mov_b64 exec, s[46:47]
    """)
    p.stamp(3)
    p(f"""
    s_waitcnt vmcnt(0)
    s_barrier
    """)
    p.stamp(4)
    p(f"""
    s_cmp_lg_u32 s33, 0
    s_cbranch_scc1 L_{name}_nosig
    v_mov_b32 v4, 0
    v_mov_b32 v5, 1
    s_mov_b64 exec, 1
    global_atomic_add v4, v5, s[24:25] sc1
    s_mov_b64 exec, s[46:47]
    L_{name}_nosig:
    """)

def gen_spare_cs(p, name, sc1=""):
    p(f"""
    s_movk_i32 s35, 4682
    v_mul_u32_u24 v6, s35, v0
    v_lshrrev_b32 v6, 16, v6                  ; rg (0..36)
    v_mul_u32_u24 v7, 14, v6
    v_sub_u32 v7, v0, v7                      ; u
    s_and_b32 s36, s2, 15
    s_mul_i32 s36, s36, 224
    s_movk_i32 s35, {14*3584 // 16}
    v_mul_u32_u24 v8, s35, v6
    v_lshlrev_b32 v8, 4, v8                   ; rg*14*3584
    v_lshl_add_u32 v8, v7, 4, v8
    v_add_u32 v8, s36, v8
    s_cmp_lt_u32 s2, 16
    s_cselect_b32 s36, s28, s30
    s_cselect_b32 s37, s29, s31
    s_mov_b32 s38, {W_BYTES}
    s_mov_b32 s39, 0x20000
    s_mov_b32 s40, 0
    """)
    for i in range(14):
        p(f"buffer_load_dwordx4 {r4(96 + 4*i)}, v8, s[36:39], 0 offen")
        if i < 13: p(f"v_add_u32 v8, 3584, v8")
    for r in range(8): p(f"v_mov_b32 v{32+r}, 0")
    p("s_mov_b32 s44, 0xffff0000")
    for i in range(14):
        p(f"s_waitcnt vmcnt({13 - i})")
        for j in range(4):
            v = 96 + 4*i + j
            t = 40 + 2*(j & 1)
            p(f"v_lshlrev_b32 v{t}, 16, v{v}\nv_and_b32 v{t+1}, s44, v{v}\nv_pk_add_f32 {r2(32+2*j)}, {r2(32+2*j)}, {r2(t)}")
    p(f"""
    s_movk_i32 s35, 448
    v_mul_u32_u24 v9, s35, v6
    v_lshl_add_u32 v9, v7, 5, v9
    v_mov_b32 v10, 448
    v_cmp_gt_u32 vcc, v10, v0
    s_and_saveexec_b64 s[42:43], vcc
    s_cbranch_execz L_{name}_csnw
    ds_write_b128 v9, v[32:35]
    ds_write_b128 v9, v[36:39] offset:16
    L_{name}_csnw:
    s_mov_b64 exec, s[42:43]
    s_waitcnt lgkmcnt(0)
    s_barrier
    v_mov_b32 v10, 112
    v_cmp_gt_u32 vcc, v10, v0
    s_and_saveexec_b64 s[42:43], vcc
    s_cbranch_execz L_{name}_csdone
    v_lshlrev_b32 v9, 2, v0
    """)
    for g in range(32): p(f"ds_read_b32 v{32+g}, v9 offset:{448*g}")
    p("s_waitcnt lgkmcnt(0)")
    for g in range(0, 32, 2): p(f"v_add_f32 v{32+g}, v{32+g}, v{33+g}")
    for g in range(2, 32, 2): p(f"v_add_f32 v32, v32, v{32+g}")
    p(f"""
    s_mul_i32 s40, s2, 448
    s_add_u32 s40, s40, {CS_OFF}
    v_add_u32 v9, s40, v9
    global_store_dword v9, v32, s[26:27] {sc1}
    L_{name}_csdone:
    s_mov_b64 exec, s[42:43]
    s_waitcnt vmcnt(0)
    """)

def gen_conv(p, name, hsc=""):
    exp = getattr(p, "exp", "")
    SLP = 8
    for tok in exp.split("_"):
        if tok.startswith("slp"): SLP = int(tok[3:])
    p(f"""
    s_and_b32 s34, s3, 7
    s_mul_i32 s34, s34, 56
    s_lshr_b32 s35, s3, 3
    s_lshl_b32 s35, s35, 1
    s_add_u32 s34, s34, s35                   ; d0
    s_bfe_u32 s35, s33, 0x10001               ; c  = (w>>1)&1
    s_and_b32 s36, s33, 1                     ; hf
    s_add_u32 s37, s34, s35                   ; d
    s_lshr_b32 s52, s33, 2                    ; role
    s_and_b32 s53, s33, 3                     ; sub
    s_lshl_b32 s38, s37, 9
    s_lshl_b32 s39, s36, 8
    s_add_u32 s38, s38, s39
    v_lshl_add_u32 v24, v1, 2, s38
    s_movk_i32 s39, 7168
    v_and_b32 v23, 255, v0
    v_mul_u32_u24 v25, s39, v23
    s_lshl_b32 s38, s34, 1
    s_add_u32 s39, s38, 3584
    v_add_u32 v25, s39, v25
    s_mul_i32 s42, s53, {WREG}
    v_lshl_add_u32 v26, v1, 3, s42
    s_waitcnt lgkmcnt(0)
    """)
    p.stamp()
    p(f"""
    s_load_dword s40, s[18:19], s38
    s_load_dword s41, s[20:21], s38
    s_cmp_lg_u32 s52, 0
    s_cbranch_scc1 L_{name}_noparam
    global_load_dword v10, v24, s[6:7]
    global_load_dword v11, v24, s[8:9]
    global_load_dword v12, v24, s[10:11]
    global_load_dword v13, v24, s[12:13]
    global_load_dword v14, v24, s[14:15]
    global_load_dword v15, v24, s[16:17]
    s_waitcnt vmcnt(0)
    L_{name}_noparam:
    s_barrier
    s_mov_b32 s46, 0xffff0000
    s_waitcnt lgkmcnt(0)
    s_cmp_eq_u32 s35, 0
    s_cselect_b32 s43, 16, 0
    s_lshl_b32 s41, s41, s43
    s_and_b32 s41, s41, 0xffff0000
    s_cmp_lg_u32 s52, 0
    s_cbranch_scc1 L_{name}_V
    s_lshl_b32 s40, s40, s43
    s_and_b32 s40, s40, 0xffff0000
    s_mov_b32 s44, 0x3fb8aa3b                 ; log2(e)
    s_mov_b32 s45, 0x3e22f983                 ; 1/(2 pi)
    v_mov_b32 v30, s40
    v_mul_f32 v30, s44, v30
    v_exp_f32 v30, v30
    v_cvt_pk_bf16_f32 v30, v30, v30
    v_and_b32 v30, s46, v30
    """)
    wr = [0]
    def put(row, src, neg):
        wp = 16 + 2*(wr[0] % 4); wr[0] += 1
        for k in range(2):
            s = src(k)
            p(f"v_cvt_pk_bf16_f32 v{wp+k}, v{s}, {'-' if neg else ''}v{s+1}")
        p(f"ds_write_b64 v26, {r2(wp)} offset:{row*528}")
    def unp(k, d, s):
        return f"v_lshlrev_b32 v{d}, 16, v{s}" if k == 0 else f"v_and_b32 v{d}, s46, v{s}"
    def expz(dst, Z, L, T):
        for k in range(2):
            t = T(k)
            if L == 1.0:
                p(f"v_exp_f32 v{t}, v{Z(k)}")
                p(f"v_fract_f32 v{t+1}, v{Z(k)+1}")
            else:
                p(f"v_pk_mul_f32 {r2(t)}, {r2(Z(k))}, {r2(28)} op_sel_hi:[1,0]")
        if L != 1.0:
            for k in range(2):
                t = T(k)
                p(f"v_exp_f32 v{t}, v{t}")
                p(f"v_fract_f32 v{t+1}, v{t+1}")
        for k in range(2):
            p(f"v_cos_f32 v{dst(k)}, v{T(k)+1}")
            p(f"v_sin_f32 v{dst(k)+1}, v{T(k)+1}")
        for k in range(2):
            p(f"v_pk_mul_f32 {r2(dst(k))}, {r2(dst(k))}, {r2(T(k))} op_sel_hi:[1,0]")
    names = ["Z", "CB", "E1", "E256", "E2", "E4", "Pa", "Pb", "T1", "T2", "T3", "Ta", "Tb", "R4", "Rt", "Tm",
             "E8", "E16", "Oa", "Ob", "Ea", "Eb"]
    def U(nm): return lambda k: 32 + 2*names.index(nm) + 44*k
    p("s_waitcnt vmcnt(0)")
    p.stamp()
    for k in range(2):
        Z, Pa, Pb = U("Z")(k), U("Pa")(k), U("Pb")(k)
        p(unp(k, Z, 10)); p(unp(k, Z+1, 11))
        p(unp(k, Pa, 12)); p(unp(k, Pa+1, 13))
        p(unp(k, Pb, 14)); p(unp(k, Pb+1, 15))
    for k in range(2):
        p(f"v_pk_mul_f32 {r2(U('Z')(k))}, {r2(U('Z')(k))}, v[30:31] op_sel_hi:[1,0]")
        p(f"v_pk_mul_f32 {r2(U('Pa')(k))}, {r2(U('Pa')(k))}, v[30:31] op_sel_hi:[1,0]")
    cmul_multi(p, [(U("CB")(k), U("Pb")(k), U("Pa")(k)) for k in range(2)])
    for k in range(2):
        p(f"v_mul_f32 v{U('Z')(k)}, s44, v{U('Z')(k)}")
        p(f"v_mul_f32 v{U('Z')(k)+1}, s45, v{U('Z')(k)+1}")
    p(f"v_mov_b32 v28, {fbits(8.0)}")
    expz(U("E8"), U("Z"), 8.0, U("Tm"))
    expz(U("E1"), U("Z"), 1.0, U("Tm"))
    p(f"v_mov_b32 v28, {fbits(256.0)}")
    expz(U("E256"), U("Z"), 256.0, U("Tm"))
    if 'fine' in exp: p.stamp(10)
    for k in range(2):
        p(f"v_mov_b32 v{U('Tm')(k)}, 1.0\nv_mov_b32 v{U('Tm')(k)+1}, 0")
    put(21, U("Tm"), False)
    put(22, U("E8"), False)
    put(0, U("CB"), True)
    def rnd(items, puts):
        cmul_multi(p, [(U(d)(k), U(x)(k), U(y)(k)) for (d, x, y) in items for k in range(2)])
        for row, nm in puts: put(row, U(nm), row < 21)
    rnd([("E16", "E8", "E8"), ("Pa", "CB", "E1"), ("T1", "CB", "E256"), ("E2", "E1", "E1")], [(23, "E16"), (1, "Pa"), (8, "T1")])
    urounds = [
        ([("Pb", "Pa", "E1"), ("T2", "T1", "E256"), ("E4", "E2", "E2")], [(2, "Pb"), (9, "T2")]),
        ([("Pa", "Pb", "E1"), ("T3", "T2", "E256"), ("Rt", "T1", "E2")], [(3, "Pa"), (10, "T3"), (16, "Rt")]),
        ([("Pb", "Pa", "E1"), ("Ta", "T3", "E256"), ("R4", "T1", "E4")], [(4, "Pb"), (11, "Ta"), (17, "R4")]),
        ([("Pa", "Pb", "E1"), ("Tb", "Ta", "E256"), ("Rt", "R4", "E2")], [(5, "Pa"), (12, "Tb"), (18, "Rt")]),
        ([("Pb", "Pa", "E1"), ("Ta", "Tb", "E256"), ("Rt", "T2", "E4")], [(6, "Pb"), (13, "Ta"), (19, "Rt")]),
        ([("Pa", "Pb", "E1"), ("Tb", "Ta", "E256"), ("Rt", "T3", "E4")], [(7, "Pa"), (14, "Tb"), (20, "Rt")]),
        ([("Ta", "Tb", "E256")], [(15, "Ta")]),
    ]
    o, e = "E8", "E16"
    no, ne = "Oa", "Ea"
    for n, j in enumerate(range(3, 32, 2)):
        items = [(no, o, "E16")]; puts = [(21 + j, no)]
        if j + 1 < 32: items.append((ne, e, "E16")); puts.append((21 + j + 1, ne))
        if n < len(urounds):
            items = items + urounds[n][0]; puts = puts + urounds[n][1]
        rnd(items, puts)
        o, e = no, ne
        no = "Ob" if no == "Oa" else "Oa"
        ne = "Eb" if ne == "Ea" else "Ea"
    if 'fine' in exp: p.stamp(11)
    p(f"""
    v_and_b32 v27, 31, v1
    v_min_u32 v28, 20, v27
    s_movk_i32 s43, 528
    v_mul_u32_u24 v28, s43, v28
    v_mul_u32_u24 v27, s43, v27
    v_lshrrev_b32 v29, 5, v1
    v_lshlrev_b32 v29, 4, v29                 ; kk*16
    v_add3_u32 v28, v28, v29, s42
    s_add_u32 s43, s42, {21*528}
    v_add3_u32 v27, v27, v29, s43
    s_waitcnt lgkmcnt(0)
    """)
    p.stamp()
    DEPTH = 6
    def kr(ks):
        b = 96 + 8*(ks % 8)
        p(f"ds_read_b128 {r4(b)}, v28 offset:{32*ks}")
        p(f"ds_read_b128 {r4(b+4)}, v27 offset:{32*ks}")
    for ks in range(DEPTH): kr(ks)
    p(f"""
    v_lshrrev_b32 v29, 5, v1
    v_lshlrev_b32 v29, 9, v29                 ; half*4*128
    v_and_b32 v24, 31, v1
    v_lshl_add_u32 v29, v24, 2, v29
    s_mul_i32 s42, s53, 3072
    s_add_u32 s42, s42, {TB}
    v_add_u32 v29, s42, v29
    """)
    for ks in range(16):
        outstanding_after = 2 * (min(ks + DEPTH, 16) - (ks + 1))
        p(f"s_waitcnt lgkmcnt({outstanding_after})")
        b = 96 + 8*(ks % 8)
        p(f"v_mfma_f32_32x32x16_bf16 v[160:175], {r4(b)}, {r4(b+4)}, " + ("0" if ks == 0 else "v[160:175]"))
        if ks + DEPTH < 16: kr(ks + DEPTH)
    for r in range(12):
        p(f"ds_write_b32 v29, v{160+r} offset:{((r & 3) + 8*(r >> 2))*128}")
    p(f"""
    s_mul_i32 s42, s35, 6144
    s_add_u32 s42, s42, {TB}
    v_lshl_add_u32 v26, v1, 2, s42
    s_waitcnt lgkmcnt(0)
    s_barrier                                 ; 1
    """)
    p.stamp()
    p(f"""
    s_cmp_lg_u32 s36, 0
    s_cbranch_scc1 L_{name}_g1
    """)
    seg1 = [256, 256, 512, 544, 544, 544, 576, 257]
    p("v_cmp_gt_u32 vcc, 32, v1")
    for e in range(8):
        p(f"v_mov_b32 v{40+e}, {(seg1[e]-32)*4}")
        p(f"v_mov_b32 v48, {32*e*4}")
        p(f"v_cndmask_b32 v{40+e}, v{40+e}, v48, vcc")
        p(f"v_add_u32 v{40+e}, v{40+e}, v26")
    for e in range(8):
        p(f"ds_read2st64_b32 {r2(48+2*e)}, v{40+e} offset0:0 offset1:12")
    p(f"v_add_u32 v32, {288*4}, v26\nv_add_u32 v33, {608*4}, v26\nv_add_u32 v34, {289*4}, v26")
    for i in range(3):
        p(f"ds_read2st64_b32 {r2(64+2*i)}, v{32+i} offset0:0 offset1:12")
    p("s_waitcnt lgkmcnt(0)")
    for e in range(8): p(f"v_add_f32 v{48+2*e}, v{48+2*e}, v{49+2*e}")
    for i in range(3): p(f"v_add_f32 v{64+2*i}, v{64+2*i}, v{65+2*i}")
    for j in range(4):
        p(f"v_cvt_pk_bf16_f32 v{96+j}, v{48+2*(7-2*j)}, v{48+2*(6-2*j)}")
    p(f"""
    v_cvt_pk_bf16_f32 v100, v68, v68
    v_cvt_pk_bf16_f32 v101, v66, v66          ; (K5,K4) = (Q,Q)
    v_cvt_pk_bf16_f32 v102, v66, v64          ; (K3,K2) = (Q,G)
    v_cvt_pk_bf16_f32 v103, v64, v64          ; (K1,K0) = (G,G)
    s_branch L_{name}_g2
    L_{name}_g1:
    """)
    for it in range(2):
        p(f"v_add_u32 v{40+it}, {(352+64*it)*4}, v26")
        p(f"v_add_u32 v{42+it}, {(353+64*it)*4}, v26")
    for it in range(2):
        p(f"ds_read2st64_b32 {r2(48+4*it)}, v{40+it} offset0:0 offset1:12")
        p(f"ds_read2st64_b32 {r2(50+4*it)}, v{42+it} offset0:0 offset1:12")
    p(f"""
    v_and_b32 v44, 1, v1
    v_cmp_eq_u32 vcc, 1, v44
    v_lshrrev_b32 v45, 1, v1
    s_movk_i32 s43, {KCS}
    v_mul_u32_u24 v45, s43, v45
    v_lshl_add_u32 v45, v44, 4, v45
    s_mul_i32 s42, s35, {KCC}
    s_add_u32 s42, s42, {256*16}
    v_add_u32 v45, s42, v45
    v_mov_b32 v60, 0
    v_mov_b32 v61, 0
    v_mov_b32 v62, 0
    v_mov_b32 v63, 0
    s_mov_b64 s[50:51], exec
    s_mov_b64 exec, 0xff
    ds_write_b128 v45, v[60:63]
    s_mov_b64 exec, s[50:51]
    s_waitcnt lgkmcnt(0)
    """)
    for it in range(2):
        G, Gn = 48 + 4*it, 50 + 4*it
        p(f"""
        v_add_f32 v{G}, v{G}, v{G+1}
        v_add_f32 v{Gn}, v{Gn}, v{Gn+1}
        v_cndmask_b32 v46, v{G}, v{Gn}, vcc
        v_cvt_pk_bf16_f32 v{96+4*it}, v{Gn}, v{Gn}       ; (K7,K6)
        v_cvt_pk_bf16_f32 v{97+4*it}, v{Gn}, v46         ; (K5,K4)
        v_cvt_pk_bf16_f32 v{98+4*it}, v{G}, v{G}         ; (K3,K2)
        v_cvt_pk_bf16_f32 v{99+4*it}, v{G}, v{G}         ; (K1,K0)
        """)
    p(f"""
    L_{name}_g2:
    s_mul_i32 s42, s35, {KCC}
    s_lshl_b32 s43, s36, 11                   ; 128*hf*16
    s_sub_u32 s42, s42, s43
    s_add_u32 s42, s42, {255*16}
    v_lshlrev_b32 v27, 4, v1
    v_sub_u32 v27, s42, v27                   ; it = 0
    v_subrev_u32 v28, 1024, v27               ; it = 1
    ds_write_b128 v27, v[96:99]
    ds_write_b128 v28, v[100:103]
    s_waitcnt lgkmcnt(0)
    s_barrier                                 ; 2
    ds_read_b64 v[104:105], v27 offset:16
    ds_read_b64 v[108:109], v28 offset:16
    """)
    p.stamp()
    p(f"""
    v_and_b32 v36, 3, v1                      ; rr & 3
    v_bfe_u32 v35, v1, 2, 1                   ; rr >> 2
    v_bfe_u32 v37, v1, 3, 1                   ; qq
    v_lshrrev_b32 v38, 4, v1                  ; kg
    v_sub_u32 v36, 3, v36
    s_movk_i32 s43, {KCS}
    v_mul_u32_u24 v36, s43, v36
    v_sub_u32 v39, v38, v37
    v_lshl_add_u32 v36, v39, 4, v36
    v_sub_u32 v35, 1, v35
    v_lshl_add_u32 v36, v35, 3, v36
    s_mul_i32 s42, s35, {KCC}
    s_add_u32 s42, s42, {16*253 - 3584}
    s_lshl_b32 s43, s36, 8                    ; 64 * 4 hf
    s_sub_u32 s42, s42, s43
    v_add_u32 v24, s42, v36
    v_and_b32 v36, 15, v1                     ; cc
    v_lshlrev_b32 v36, 5, v36
    v_lshl_add_u32 v36, v38, 4, v36
    s_mul_i32 s42, s35, 4608
    s_add_u32 s42, s42, {UL0 + 480}
    s_sub_u32 s42, s42, s43
    v_add_u32 v25, s42, v36
    """)
    for it in range(2):
        own = 96 + 4*it; nb = 104 + 4*it
        adr = 27 + it
        a = [own, own+1, own+2, own+3, nb, nb+1]
        Bb = 112 + 16*it; Ao = 117 + 16*it; Bo = 121 + 16*it
        p(f"s_waitcnt lgkmcnt({1 - it})")
        for i in range(4): p(f"v_alignbit_b32 v{Bb+i}, v{a[i+1]}, v{a[i]}, 16")
        for i in range(1, 5): p(f"v_mov_b32 v{Ao+i}, v{a[i]}")
        for i in range(1, 5): p(f"v_alignbit_b32 v{Bo+i}, v{a[i+1]}, v{a[i]}, 16")
        p(f"ds_write_b128 v{adr}, {r4(Bb)} offset:{1*KCS}")
        p(f"ds_write_b128 v{adr}, {r4(Ao+1)} offset:{2*KCS}")
        p(f"ds_write_b128 v{adr}, {r4(Bo+1)} offset:{3*KCS}")
    p(f"""
    s_waitcnt lgkmcnt(0)
    s_barrier                                 ; 3
    """)
    p.stamp()
    def FA(s, i): return 64 + 64*s + 4*i
    def FB(s, i): return 96 + 64*s + 4*i
    def ACC(q): return 192 + 4*q
    def frag_reads(s, areg, breg):
        o = []
        for i in range(8):
            o.append(f"ds_read_b64 {r2(FA(s, i))}, v{areg} offset:{(7-i)*512}")
            o.append(f"ds_read_b64 {r2(FA(s, i)+2)}, v{areg} offset:{(7-i)*512 + 8}")
            o.append(f"ds_read_b128 {r4(FB(s, i))}, v{breg} offset:{i*512}")
        return o
    pairs = []
    for s in range(8):
        for j in range(s + 1):
            if s + j <= 7:
                pairs.append((s, j))
                if j < s: pairs.append((j, s))
    for x in frag_reads(0, 24, 25): p(x)
    first = [True]*8
    for rho in range(4):
        s = rho & 1
        nxt = []
        if rho < 3:
            p(f"v_subrev_u32 v{28+2*(rho&1)}, {64*(rho+1)}, v24")
            p(f"v_subrev_u32 v{29+2*(rho&1)}, {64*(rho+1)}, v25")
            nxt = frag_reads(1 - s, 28 + 2*(rho & 1), 29 + 2*(rho & 1))
        ni = 0
        shell_done = -1
        pf_start = 12 if rho == 0 else 1
        for n, (i, j) in enumerate(pairs):
            sh = max(i, j)
            if rho == 0:
                if sh > shell_done and sh <= 3:
                    p(f"s_waitcnt lgkmcnt({min(15, 21 - 3*sh) if sh < 3 else 0})"); shell_done = sh
            elif n == 0:
                p("s_waitcnt lgkmcnt(0)")
            q = i + j
            c_in = "0" if first[q] else r4(ACC(q))
            first[q] = False
            p(f"v_mfma_f32_16x16x32_bf16 {r4(ACC(q))}, {r4(FA(s, i))}, {r4(FB(s, j))}, {c_in}")
            if n >= pf_start and ni < len(nxt): p(nxt[ni]); ni += 1
        assert ni == len(nxt), (rho, ni)
    p.stamp()
    p(f"""
    s_lshl_b32 s42, s53, 13
    s_add_u32 s42, s42, {EX}
    v_lshl_add_u32 v28, v1, 4, s42
    s_cmp_lg_u32 s36, 0
    s_cbranch_scc1 L_{name}_x1
    """)
    for q in range(2, 8): p(f"ds_write_b128 v28, {r4(ACC(q))} offset:{1024*q}")
    for r in range(8): p(f"v_mov_b32 v{64+r}, v{ACC(0)+r}")
    p(f"s_branch L_{name}_x2\nL_{name}_x1:")
    for q in (0, 1, 2, 3, 6, 7): p(f"ds_write_b128 v28, {r4(ACC(q))} offset:{1024*q}")
    for r in range(8): p(f"v_mov_b32 v{64+r}, v{ACC(4)+r}")
    p(f"""
    L_{name}_x2:
    s_xor_b32 s42, s53, 1
    s_lshl_b32 s42, s42, 13
    s_lshl_b32 s43, s36, 12
    s_add_u32 s42, s42, s43
    s_add_u32 s42, s42, {EX}
    v_lshl_add_u32 v29, v1, 4, s42
    s_waitcnt lgkmcnt(0)
    s_barrier                                 ; 4
    ds_read_b128 v[72:75], v29
    ds_read_b128 v[76:79], v29 offset:1024
    s_lshl_b32 s44, s36, 2
    s_waitcnt lgkmcnt(0)
    """)
    for q in range(4): p(f"v_pk_add_f32 {r2(64+2*q)}, {r2(64+2*q)}, {r2(72+2*q)}")
    p(f"s_branch L_{name}_fin")
    p(f"L_{name}_V:")
    if "notouch" not in exp:
        p(f"""
        v_mov_b32 v26, {TOUCH_OFF}
        v_mov_b32 v27, 128
        global_load_dword v28, v26, s[26:27]
        global_load_dword v29, v27, s[24:25]
        """)
    for i in range(8):
        p(f"global_load_dword v{2+i}, v25, s[4:5] offset:{(i-4)*896}" + (" sc1" if "gsc1" in exp else " nt" if "gnt" in exp else ""))
    p.stamp(2)
    p(f"""
    v_mov_b32 v31, 0
    s_mov_b32 s47, 0
    s_cmp_lg_u32 s33, 4
    s_cbranch_scc1 L_{name}_go
    s_waitcnt vmcnt(0)
    L_{name}_poll:
    global_load_dword v24, v31, s[24:25] sc1
    s_waitcnt vmcnt(0)
    v_readfirstlane_b32 s48, v24
    s_add_u32 s47, s47, 1
    s_cmp_ge_u32 s48, 32
    s_cbranch_scc1 L_{name}_go
    s_cmp_ge_u32 s47, 0x40000
    s_cbranch_scc1 L_{name}_go
    s_sleep {SLP}
    s_branch L_{name}_poll
    L_{name}_go:
    v_and_b32 v25, 255, v0
    v_lshlrev_b32 v25, 5, v25
    v_add_u32 v25, {STATS_OFF}, v25
    v_and_b32 v24, 255, v0
    v_lshlrev_b32 v24, 4, v24                 ; tid'*16
    """)
    p.stamp(3)
    p(f"""
    s_barrier                                 ; 1
    global_load_dwordx4 v[16:19], v25, s[26:27] sc1
    global_load_dwordx4 v[20:23], v25, s[26:27] offset:16 sc1
    """)
    p.stamp(4)
    p.stamp(5)
    p(f"""
    s_barrier                                 ; 2
    s_waitcnt vmcnt(0)
    """)
    p.stamp(6)
    for i in range(8):
        S = 16 + i; X = 2 + i
        u0 = 48 + i; u1 = 56 + i
        t = 32 + 4*(i & 1)
        p(f"""
        v_lshlrev_b32 v{t}, 16, v{S}              ; mean
        v_and_b32 v{t+1}, s46, v{S}               ; std
        v_rcp_f32 v{t+1}, v{t+1}
        v_lshlrev_b32 v{t+2}, 16, v{X}
        v_and_b32 v{t+3}, s46, v{X}
        v_sub_f32 v{t+2}, v{t+2}, v{t}
        v_sub_f32 v{t+3}, v{t+3}, v{t}
        v_cvt_pk_bf16_f32 v{t+2}, v{t+2}, v{t+3}
        v_lshlrev_b32 v{t+3}, 16, v{t+2}
        v_and_b32 v{t+2}, s46, v{t+2}
        v_mul_f32 v{u0}, v{t+3}, v{t+1}
        v_mul_f32 v{u1}, v{t+2}, v{t+1}
        """)
    p("s_mov_b32 s48, 0x05040100\ns_mov_b32 s49, 0x07060302")
    for j in range(4):
        p(f"v_cvt_pk_bf16_f32 v{64+j}, v{48+2*j}, v{49+2*j}")
        p(f"v_cvt_pk_bf16_f32 v{68+j}, v{56+2*j}, v{57+2*j}")
        p(f"v_perm_b32 v{72+j}, v{3+2*j}, v{2+2*j}, s48")
        p(f"v_perm_b32 v{76+j}, v{3+2*j}, v{2+2*j}, s49")
    p(f"""
    v_add_u32 v33, {UL0 + 512}, v24
    ds_write_b128 v33, v[64:67]
    ds_write_b128 v33, v[68:71] offset:4608
    ds_write_b128 v33, v[72:75] offset:{XL0 - UL0 - 512}
    ds_write_b128 v33, v[76:79] offset:{XL0 + 4096 - UL0 - 512}
    s_cmp_lg_u32 s33, 4
    s_cbranch_scc1 L_{name}_nopad
    v_mov_b32 v60, 0
    v_mov_b32 v61, 0
    v_mov_b32 v62, 0
    v_mov_b32 v63, 0
    v_lshrrev_b32 v34, 5, v1
    s_movk_i32 s43, 4608
    v_mul_u32_u24 v34, s43, v34
    v_and_b32 v35, 31, v1
    v_lshl_add_u32 v34, v35, 4, v34
    v_add_u32 v34, {UL0}, v34
    ds_write_b128 v34, v[60:63]
    L_{name}_nopad:
    s_waitcnt lgkmcnt(0)
    """)
    p.stamp(7)
    p(f"""
    s_barrier                                 ; 3
    s_lshl_b32 s42, s35, 14                   ; c * 16384
    s_lshl_b32 s43, s36, 12                   ; 4hf * 1024
    s_add_u32 s42, s42, s43
    s_add_u32 s42, s42, {EX + 2048}
    v_lshl_add_u32 v29, v1, 4, s42
    """)
    if getattr(p, "warm_w", False):
        p(f"""
        s_and_b32 s54, s3, 7
        s_lshr_b32 s54, s54, 2
        s_mul_i32 s54, s54, 7
        s_lshr_b32 s55, s3, 5
        s_add_u32 s54, s54, s55                   ; ct
        v_lshrrev_b32 v34, 4, v1
        s_lshl_b32 s55, s53, 2
        v_add_u32 v34, s55, v34
        s_movk_i32 s55, 3584
        v_mul_lo_u32 v34, v34, s55
        v_and_b32 v35, 15, v1
        v_lshl_add_u32 v34, v35, 4, v34
        s_lshl_b32 s54, s54, 8
        v_add_u32 v34, s54, v34
        """)
        NW = 10
        for tok in exp.split("_"):
            if tok.startswith("nw"): NW = int(tok[2:])
        for i in range(NW):
            p(f"global_load_dwordx4 {r4(96 + 8*(i % 4))}, v34, s[28:29]")
            p(f"global_load_dwordx4 {r4(100 + 8*(i % 4))}, v34, s[30:31]")
            p(f"v_add_u32 v34, {16*3584}, v34")
    p(f"""
    s_barrier                                 ; 4
    ds_read_b128 v[64:67], v29
    ds_read_b128 v[68:71], v29 offset:1024
    ds_read_b128 v[72:75], v29 offset:8192
    ds_read_b128 v[76:79], v29 offset:{8192 + 1024}
    s_lshl_b32 s44, s36, 2
    s_add_u32 s44, s44, 2
    s_waitcnt lgkmcnt(0)
    """)
    for q in range(4): p(f"v_pk_add_f32 {r2(64+2*q)}, {r2(64+2*q)}, {r2(72+2*q)}")
    p(f"""
    L_{name}_fin:
    v_and_b32 v30, 15, v1
    v_lshlrev_b32 v30, 5, v30
    v_lshrrev_b32 v31, 4, v1
    v_lshl_add_u32 v30, v31, 3, v30
    s_lshl_b32 s44, s44, 9                    ; q0 * 512 B
    v_add_u32 v30, s44, v30
    s_mul_i32 s42, s35, 4608
    s_add_u32 s42, s42, {UL0 + 512}
    v_add_u32 v32, s42, v30                   ; u address
    s_lshl_b32 s42, s35, 12
    s_add_u32 s42, s42, {XL0}
    v_add_u32 v33, s42, v30                   ; x address
    ds_read_b64 v[80:81], v32
    ds_read_b64 v[82:83], v32 offset:512
    ds_read_b64 v[84:85], v33
    ds_read_b64 v[86:87], v33 offset:512
    s_lshl_b32 s42, s37, 12
    s_add_u32 s42, s42, {HT_OFF}
    v_add_u32 v35, s42, v30
    v_mov_b32 v36, s41                        ; Dskip
    s_waitcnt lgkmcnt(0)
    """)
    for j in range(2):
        u = 80 + 2*j; x = 84 + 2*j; y = 64 + 4*j
        t = 40 + 8*j
        p(f"""
        v_lshlrev_b32 v{t}, 16, v{u}
        v_and_b32 v{t+1}, s46, v{u}
        v_lshlrev_b32 v{t+2}, 16, v{u+1}
        v_and_b32 v{t+3}, s46, v{u+1}
        v_lshlrev_b32 v{t+4}, 16, v{x}
        v_and_b32 v{t+5}, s46, v{x}
        v_lshlrev_b32 v{t+6}, 16, v{x+1}
        v_and_b32 v{t+7}, s46, v{x+1}
        v_pk_fma_f32 {r2(y)}, {r2(t)}, v[36:37], {r2(y)} op_sel_hi:[1,0,1]
        v_pk_fma_f32 {r2(y+2)}, {r2(t+2)}, v[36:37], {r2(y+2)} op_sel_hi:[1,0,1]
        v_pk_add_f32 {r2(y)}, {r2(y)}, {r2(t+4)}
        v_pk_add_f32 {r2(y+2)}, {r2(y+2)}, {r2(t+6)}
        v_cvt_pk_bf16_f32 v{56+2*j}, v{y}, v{y+1}
        v_cvt_pk_bf16_f32 v{57+2*j}, v{y+2}, v{y+3}
        global_store_dwordx2 v35, {r2(56+2*j)}, s[26:27] offset:{512*j} {hsc}
        """)
    p.stamp()

def gen_k1b(name="k1_kernel", stamps=False, exp=""):
    p = Prog(); p.stamps_on = stamps
    if 'cyc' in exp: p.stamp_op = 's_memtime'
    if 'wl' in exp or 'w4' in exp: p.stamp_tid = (256 if "w4" in exp else 448)
    E = f"L_{name}_end"
    p.exp = exp
    p(f"""
    s_cmp_ge_u32 s2, 256
    s_cbranch_scc1 {E}
    """)
    p.stamp()
    p(f"""
    s_load_dwordx16 s[4:19], s[0:1], 0
    s_load_dwordx2 s[20:21], s[0:1], 64
    s_load_dwordx4 s[24:27], s[0:1], 112
    s_load_dwordx4 s[28:31], s[0:1], 80
    v_lshrrev_b32 v2, 6, v0
    v_and_b32 v1, 63, v0
    v_readfirstlane_b32 s33, v2
    s_cmp_lt_u32 s2, 32
    s_cbranch_scc1 L_{name}_spare
    s_sub_u32 s3, s2, 32
    """)
    p.warm_w = "nowarmw" not in exp
    gen_conv(p, name)
    if 'fine' in exp: p.nstamp = 12
    p.stamp_flush(STAMP_OFF, ws="s[26:27]")
    p(f"s_branch {E}")
    p(f"L_{name}_spare:")
    gen_spare_stats(p, name)
    gen_spare_cs(p, name)
    if stamps:
        p.stamp(5)
        p.nstamp = 6
        p.stamp_flush(STAMP_OFF, ws="s[26:27]", tag="b")
    p(f"""
    {E}:
    s_endpgm
    """)
    return kernel_text(name, p, vgpr=224, sgpr=96, denorm=(0 if 'ftz' in exp else 3))

K1B_LAUNCH = f"grid=(256,1,1) block=(512,1,1) lds={LDS_K1}"
if __name__ == "__main__":
    import sys
    s = f"; @launch kernel=k1_kernel {K1B_LAUNCH}\n" + '.amdgcn_target "amdgcn-amd-amdhsa--gfx950"\n.text\n' + gen_k1b(stamps=(len(sys.argv) > 2), exp=(sys.argv[2] if len(sys.argv) > 2 else ''))
    open(sys.argv[1], "w").write(s)
```

```python
from asmtool import *
from layout import *
from k2 import std_chain, gen_k2_stats, r4, r2

class VM:
    def __init__(self, p): self.p = p; self.ops = []
    def issue(self, tag, n=1): self.ops += [tag] * n
    def count_after(self, tags):
        last = max(i for i, t in enumerate(self.ops) if t in tags)
        return len(self.ops) - 1 - last
    def wait(self, *tags, extra=""):
        n = self.count_after(set(tags))
        assert n <= 63
        self.p(f"s_waitcnt vmcnt({n}){extra}")

def gen_gemm(p, name, exp="", merged=False):
    NSLOT = 6; SLOT = 24576; EBASE = NSLOT * SLOT
    def ACC(k, mt, nt): return 96 + (0 if k == "g" else 32) + 16*mt + 4*nt
    def SET(s, nm): return 32 + 32*s + {"G0": 0, "G1": 4, "U0": 8, "U1": 12, "X0": 16, "X1": 20, "X2": 24, "X3": 28}[nm]
    E = f"L_{name}_end"
    XSC = "sc1" if (merged and "xplain" not in exp) else ""
    p(f"""
    s_sub_u32 s3, s2, 32
    s_and_b32 s34, s3, 7                      ; xcd
    s_lshr_b32 s35, s3, 3                     ; j
    s_and_b32 s36, s34, 3
    s_lshl_b32 s36, s36, 2
    s_and_b32 s37, s35, 3
    s_add_u32 s36, s36, s37                   ; rt
    s_lshr_b32 s59, s34, 2                    ; ch
    s_mul_i32 s37, s59, 7
    s_lshr_b32 s60, s35, 2                    ; dc (0..6)
    s_add_u32 s37, s37, s60                   ; ct
    s_and_b32 s38, s33, 3
    s_lshr_b32 s39, s33, 2                    ; th
    v_lshrrev_b32 v4, 4, v1                   ; l>>4
    s_lshr_b32 s40, s33, 1
    s_and_b32 s40, s40, 1
    s_lshl_b32 s40, s40, 2
    v_or_b32 v5, s40, v4
    v_lshlrev_b32 v5, 1, v5
    v_and_b32 v6, 15, v1
    v_xor_b32 v5, v5, v6                      ; usrc
    v_lshlrev_b32 v5, 4, v5                   ; usrc*16
    s_lshl_b32 s40, s33, 2
    v_add_u32 v4, s40, v4                     ; row_local
    v_lshlrev_b32 v2, 12, v4                  ; *4096
    s_lshl_b32 s40, s36, 8
    v_add3_u32 v2, v2, v5, s40                ; vX
    s_movk_i32 s41, 3584
    v_mul_lo_u32 v3, v4, s41
    s_lshl_b32 s40, s37, 8
    v_add3_u32 v3, v3, v5, s40                ; vW
    s_lshl_b32 s42, s33, 10
    s_mov_b32 s50, {32*4096}
    s_mov_b32 s51, {32*3584}
    s_mov_b32 s18, {HT_BYTES}
    s_mov_b32 s19, 0x20000
    s_mov_b32 s22, {W_BYTES}
    s_mov_b32 s23, 0x20000
    s_mov_b32 s26, {W_BYTES}
    s_mov_b32 s27, 0x20000
    v_lshrrev_b32 v17, 4, v1
    v_lshlrev_b32 v17, 4, v17
    s_lshl_b32 s40, s37, 9
    s_lshl_b32 s41, s38, 7
    s_add_u32 s40, s40, s41
    s_add_u32 s40, s40, {CS_OFF}
    v_add_u32 v17, s40, v17
    v_add_u32 v18, {1792*4}, v17
    v_lshrrev_b32 v10, 3, v1
    s_lshl_b32 s40, s38, 3
    v_add_u32 v10, s40, v10
    s_movk_i32 s41, 896
    v_mul_lo_u32 v10, v10, s41
    v_lshrrev_b32 v11, 4, v1
    v_lshlrev_b32 v11, 1, v11
    v_and_b32 v12, 7, v1
    v_xor_b32 v11, v11, v12
    v_lshlrev_b32 v11, 4, v11
    s_lshl_b32 s40, s60, 7
    v_add3_u32 v10, v10, v11, s40             ; vWd
    v_lshrrev_b32 v14, 4, v1                  ; kg
    v_bfe_u32 v11, v1, 2, 2                   ; rr
    v_lshl_add_u32 v12, v14, 3, v11
    v_lshlrev_b32 v12, 8, v12                 ; (8kg+rr)*256
    v_and_b32 v13, 3, v1
    v_lshl_add_u32 v12, v13, 3, v12           ; + 8cc
    v_and_b32 v14, 1, v14
    v_lshl_or_b32 v11, v14, 2, v11            ; f
    """)
    for i in range(2):
        p(f"""
        s_lshl_b32 s40, s38, 1
        s_add_u32 s40, s40, {i}
        v_xor_b32 v13, s40, v11
        v_lshl_add_u32 v{4+i}, v13, 5, v12
        """)
    for i in range(4):
        p(f"""
        s_lshl_b32 s40, s39, 2
        s_add_u32 s40, s40, {i}
        v_xor_b32 v13, s40, v11
        v_lshl_add_u32 v{6+i}, v13, 5, v12
        """)
    for i in range(6): p(f"v_add_u32 v{20+i}, {SLOT}, v{4+i}")
    p(f"""
    s_mov_b32 s30, {HF_BYTES}
    s_mov_b32 s31, 0x20000
    s_waitcnt lgkmcnt(0)
    """)
    if merged:
        p("s_waitcnt vmcnt(0)")
        if "s2" in exp: p.stamp(12)
        p("s_barrier")
        if "s2" in exp: p.stamp(13)
        p(f"""
        s_cmp_lg_u32 s33, 0
        s_cbranch_scc1 L_{name}_s2w

        s_and_b32 s40, s2, 7
        s_lshl_b32 s40, s40, 7
        s_add_u32 s41, s40, {S2A_OFF}
        v_mov_b32 v12, s41
        v_mov_b32 v13, 1
        s_mov_b64 s[56:57], exec
        s_mov_b64 exec, 1
        global_atomic_add v14, v12, v13, s[12:13] sc0 sc1
        s_waitcnt vmcnt(0)
        v_readfirstlane_b32 s41, v14
        s_mov_b64 exec, s[56:57]
        s_cmp_lg_u32 s41, 31
        s_cbranch_scc1 L_{name}_s2nl
        v_lshlrev_b32 v12, 7, v1
        v_add_u32 v12, {S2T_OFF}, v12
        s_mov_b64 exec, 0xff
        global_atomic_add v12, v13, s[12:13] sc1
        s_mov_b64 exec, s[56:57]
        L_{name}_s2nl:
        s_add_u32 s41, s40, {S2T_OFF}
        v_mov_b32 v12, s41
        s_mov_b32 s58, 0
        L_{name}_s2p:
        global_load_dword v13, v12, s[12:13] sc1
        s_waitcnt vmcnt(0)
        v_readfirstlane_b32 s41, v13
        s_add_u32 s58, s58, 1
        s_cmp_ge_u32 s41, 8
        s_cbranch_scc1 L_{name}_s2w
        s_cmp_ge_u32 s58, 0x40000
        s_cbranch_scc1 L_{name}_s2w
        s_sleep 1
        s_branch L_{name}_s2p
        L_{name}_s2w:
        s_barrier
        """)
    p.stamp()
    p(f"""
    s_add_u32 s16, s12, {HT_OFF}
    s_addc_u32 s17, s13, 0
    s_mov_b32 s20, s8
    s_mov_b32 s21, s9
    s_mov_b32 s24, s10
    s_mov_b32 s25, s11
    """)
    def dma_parts(base):
        return [
            f"s_mov_b32 m0, {base}\ns_add_u32 s45, {base}, 8192\nbuffer_load_dwordx4 v2, s[16:19], 0 offen {XSC} lds",
            f"s_mov_b32 m0, s45\ns_add_u32 s45, {base}, 16384\nbuffer_load_dwordx4 v3, s[20:23], 0 offen lds\nv_add_u32 v2, s50, v2",
            f"s_mov_b32 m0, s45\ns_nop 0\nbuffer_load_dwordx4 v3, s[24:27], 0 offen lds\nv_add_u32 v3, s51, v3",
        ]
    PRE = NSLOT - 1
    PRE0 = 3
    for c in range(PRE0):
        p(f"s_add_u32 s44, s42, {c*SLOT}")
        for d in dma_parts("s44"): p(d)
        if "pro" in exp and c == 0: p.stamp(13)
    if "pro" in exp: p.stamp(14)
    p(f"""
    s_add_u32 s28, s12, {HF_OFF}
    s_addc_u32 s29, s13, 0
    s_mov_b32 s8, s4
    s_mov_b32 s9, s5
    s_mov_b32 s10, {W_BYTES}
    s_mov_b32 s11, 0x20000
    s_mov_b32 s4, s6
    s_mov_b32 s5, s7
    s_mov_b32 s6, {X_BYTES}
    s_mov_b32 s7, 0x20000
    """)
    def rd(s, nm, h, abase=None):
        if abase is None: abase = 20 + 6*(1 - s)
        if nm[0] == "G": areg, sub = abase + int(nm[1]), 8192
        elif nm[0] == "U": areg, sub = abase + int(nm[1]), 16384
        else: areg, sub = abase + 2 + int(nm[1]), 0
        b = SET(s, nm) + 2*h
        return f"ds_read_b64_tr_b16 {r2(b)}, v{areg} offset:{sub + 1024*h}"
    def mf(s, k, mt, nt, zero=False):
        acc = ACC(k, mt, nt)
        a = SET(s, ("G" if k == "g" else "U") + str(mt)); b = SET(s, f"X{nt}")
        return f"v_mfma_f32_16x16x32_bf16 {r4(acc)}, {r4(a)}, {r4(b)}, " + ("0" if zero else r4(acc))
    RD_ORDER = ["G0", "X0", "U0", "X1", "G1", "U1", "X2", "X3"]
    MF_ORDER = [("g",0,0), ("u",0,0), ("g",0,1), ("u",0,1), ("g",1,0), ("g",1,1), ("u",1,0), ("u",1,1),
                ("g",0,2), ("u",0,2), ("g",1,2), ("u",1,2), ("g",0,3), ("u",0,3), ("g",1,3), ("u",1,3)]
    need_rd = {"G0": 1, "X0": 3, "U0": 5, "X1": 7, "G1": 9, "U1": 11, "X2": 13, "X3": 15}
    if "pro" in exp: p.stamp(15)
    p(f"""
    s_waitcnt vmcnt({3*(PRE0-1)})
    """)
    if "pro" in exp: p.stamp(12)
    p("s_barrier")
    p.stamp()
    for nm in RD_ORDER:
        for h in range(2): p(rd(0, nm, h, abase=4))
    def chunk(s, vmw, dp, last=False, static_c=None, hooks={}, zero=False, dpos=(2, 5, 8)):
        reads = [] if last else [rd(1 - s, nm, h) for nm in RD_ORDER for h in range(2)]
        done = -1
        other = 20 + 6*(1 - s)
        for i in range(16):
            k, mt, nt = MF_ORDER[i]
            need = max(need_rd[("G" if k == "g" else "U") + str(mt)], need_rd[f"X{nt}"])
            if need > done:
                allowed = (15 - need) + (0 if last else i)
                p(f"s_waitcnt lgkmcnt({min(allowed, 15)})")
                done = need
            p(mf(s, k, mt, nt, zero))
            if i == 0:
                vmw(); p("s_barrier")
            if not last: p(reads[i])
            if i in dpos: dp(dpos.index(i))
            if i in hooks: hooks[i]()
            if 10 <= i <= 15 and not last:
                if static_c is None: p(f"v_add_u32 v{other + i - 10}, s53, v{4 + i - 10}")
                elif static_c + 2 <= 13: p(f"v_add_u32 v{other + i - 10}, {((static_c + 2) % NSLOT)*SLOT}, v{4 + i - 10}")
            if i == 9 and static_c is None:
                p(f"""
                s_add_u32 s54, s54, {SLOT}
                s_sub_u32 s55, s54, s42
                s_cmp_eq_u32 s55, {NSLOT*SLOT}
                s_cselect_b32 s54, s42, s54
                """)
        if static_c is None:
            p(f"""
            s_add_u32 s53, s53, {SLOT}
            s_cmp_eq_u32 s53, {NSLOT*SLOT}
            s_cselect_b32 s53, 0, s53
            """)
    for c in range(2):
        parts = dma_parts("s44")
        def dp(j, c=c, parts=parts):
            n = 3 + 2*c + j // 3
            if j % 3 == 0: p(f"s_add_u32 s44, s42, {(n % NSLOT)*SLOT}")
            p(parts[j % 3])
        chunk(c, (lambda c=c: p(f"s_waitcnt vmcnt({3*(1 + c)})")), dp, static_c=c, zero=(c == 0), dpos=(1, 3, 5, 7, 9, 11))
    p(f"""
    s_mov_b32 s48, 0                          ; iteration
    s_mov_b32 s53, {4*SLOT}
    s_add_u32 s54, s42, {1*SLOT}
    L_{name}_loop:
    """)
    loop_dp = dma_parts("s54")
    for s in range(2):
        chunk(s, lambda: p(f"s_waitcnt vmcnt({3*(PRE-2)})"), lambda j: p(loop_dp[j]))
    p(f"""
    s_add_u32 s48, s48, 1
    s_cmp_lt_u32 s48, 3
    s_cbranch_scc1 L_{name}_loop
    """)
    vm = VM(p)
    for c in range(13): vm.issue(f"c{c}", 3)
    def kstep_soff(s): return s * 32 * 896
    def wd_piece(lds_base, s_th0, s_th1, tag):
        a, b = kstep_soff(s_th0), kstep_soff(s_th1)
        p(f"""
        s_mul_i32 s46, s39, {b - a}
        s_add_u32 m0, s42, {lds_base}
        s_add_u32 s46, s46, {a}
        buffer_load_dwordx4 v10, s[8:11], s46 offen lds
        """)
        vm.issue(tag)
    stage = [(kq, n) for kq in range(4) for n in range(4)]
    def stage_ks(i): return 14*stage[i][0] + stage[i][1]
    def final_ks(L): return 14*(L // 10) + 4 + (L % 10)
    for j in range(2):
        wd_piece(EBASE + 8192*j, stage_ks(2*j), stage_ks(2*j + 1), "E")
    def tail_dp(c):
        if c == 8:
            parts = dma_parts("s44")
            def f(j):
                if j == 0: p(f"s_add_u32 s44, s42, {(13 % NSLOT)*SLOT}")
                p(parts[j]); vm.issue("c13")
            return f
        slot = (c - 1) % NSLOT
        def f(j):
            b0 = 2*j
            if c == 9:   ks = (stage_ks(4 + b0), stage_ks(4 + b0 + 1))
            elif c == 10: ks = (stage_ks(10 + b0), stage_ks(10 + b0 + 1))
            else:        ks = (final_ks(6*slot + b0), final_ks(6*slot + b0 + 1))
            wd_piece(slot*SLOT + 8192*j, ks[0], ks[1], f"w{c}")
        return f
    def stats_addr():
        p(f"""
        v_and_b32 v11, 15, v1
        s_lshl_b32 s40, s36, 7
        s_lshl_b32 s41, s39, 6
        s_add_u32 s40, s40, s41
        v_add_u32 v11, s40, v11
        v_lshlrev_b32 v11, 3, v11
        v_add_u32 v11, {ST2_OFF}, v11
        """)
    def cs_loads():
        p(f"""
        global_load_dwordx4 v[160:163], v17, s[12:13] {XSC}
        global_load_dwordx4 v[164:167], v17, s[12:13] offset:64 {XSC}
        global_load_dwordx4 v[168:171], v18, s[12:13] {XSC}
        global_load_dwordx4 v[172:175], v18, s[12:13] offset:64 {XSC}
        """)
        vm.issue("cs", 4)
    def stats_loads():
        for nt in range(4):
            p(f"global_load_dwordx2 {r2(176+2*nt)}, v11, s[12:13] offset:{128*nt} sc1")
        vm.issue("st", 4)
    for c in range(8, 14):
        last = (c == 13)
        vmw = (lambda c=c: vm.wait(f"c{c+1}")) if c < 13 else (lambda: None)
        hooks = {}
        if c == 9: hooks = {11: cs_loads}
        if c == 11: hooks = {11: stats_addr}
        if c == 12: hooks = {11: stats_loads}
        chunk(c & 1, vmw, tail_dp(c), last=last, static_c=c, hooks=hooks)
    p.stamp()
    vm.wait("st", "cs")
    p(f"""
    s_mov_b32 s58, 0
    L_{name}_poll:
    v_max_u32 v184, v176, v177
    v_max3_u32 v184, v184, v178, v179
    v_max3_u32 v184, v184, v180, v181
    v_max3_u32 v184, v184, v182, v183
    v_cmp_eq_u32 vcc, -1, v184
    s_add_u32 s58, s58, 1
    s_cmp_ge_u32 s58, 0x40000
    s_cbranch_scc1 L_{name}_got
    s_cbranch_vccz L_{name}_got
    s_sleep 2
    global_load_dwordx2 v[176:177], v11, s[12:13] sc1
    global_load_dwordx2 v[178:179], v11, s[12:13] offset:128 sc1
    global_load_dwordx2 v[180:181], v11, s[12:13] offset:256 sc1
    global_load_dwordx2 v[182:183], v11, s[12:13] offset:384 sc1
    s_waitcnt vmcnt(0)
    s_branch L_{name}_poll
    L_{name}_got:
    s_mov_b32 s40, 0xbfb8aa3b                 ; -log2(e)
    """)
    for nt in range(4):
        m, r = 176 + 2*nt, 177 + 2*nt
        p(f"""
        v_mul_f32 v{184+nt}, s40, v{r}
        v_mul_f32 v{192+nt}, -v{r}, v{m}
        v_mul_f32 v{188+nt}, -v{184+nt}, v{m}
        """)
    p(f"""
    s_lshl_b32 s40, s36, 3
    s_lshl_b32 s41, s39, 2
    s_add_u32 s40, s40, s41
    s_mul_i32 s40, s40, 56
    s_lshl_b32 s41, s37, 2
    s_add_u32 s40, s40, s41
    s_add_u32 s40, s40, s38
    s_lshl_b32 s40, s40, 10
    v_lshl_add_u32 v11, v1, 4, s40
    s_mov_b32 s41, 0
    """)
    p.stamp()
    CSG = 160; CSU = 168
    for nt in range(4):
        a, b, rb, rs = 184 + nt, 188 + nt, 192 + nt, 177 + 2*nt
        out = 196 + 4*nt
        for mt in range(2):
            g = ACC("g", mt, nt); u = ACC("u", mt, nt)
            for r in range(4):
                p(f"v_mul_f32 v{g+r}, v{a}, v{g+r}")
                p(f"v_mul_f32 v{u+r}, v{rs}, v{u+r}")
            for r in range(4):
                p(f"v_fma_f32 v{g+r}, v{b}, v{CSG+4*mt+r}, v{g+r}")
                p(f"v_fma_f32 v{u+r}, v{rb}, v{CSU+4*mt+r}, v{u+r}")
            for r in range(4): p(f"v_exp_f32 v{g+r}, v{g+r}")
        for mt in range(2):
            g = ACC("g", mt, nt)
            for r in range(4): p(f"v_add_f32 v{g+r}, 1.0, v{g+r}")
        for mt in range(2):
            g = ACC("g", mt, nt)
            for r in range(4): p(f"v_rcp_f32 v{g+r}, v{g+r}")
        for mt in range(2):
            g = ACC("g", mt, nt); u = ACC("u", mt, nt)
            for r in range(4): p(f"v_mul_f32 v{u+r}, v{u+r}, v{g+r}")
        for mt in range(2):
            u = ACC("u", mt, nt)
            p(f"v_cvt_pk_bf16_f32 v{out+2*mt}, v{u}, v{u+1}")
            p(f"v_cvt_pk_bf16_f32 v{out+2*mt+1}, v{u+2}, v{u+3}")
        p(f"buffer_store_dwordx4 {r4(out)}, v11, s[28:31], s41 offen sc1")
        vm.issue("hs")
        p(f"s_add_u32 s41, s41, {56*1024}")
    p.stamp()
    vm.wait("E", "w9", "w10")
    p("s_barrier")
    for j in range(3):
        wd_piece(1*SLOT + 8192*j, final_ks(6 + 2*j), final_ks(6 + 2*j + 1), "wf")
    p(f"""
    v_lshrrev_b32 v14, 4, v1                  ; kg
    v_bfe_u32 v15, v1, 2, 2                   ; rr
    v_lshl_add_u32 v12, v14, 2, v15
    v_lshlrev_b32 v12, 7, v12
    v_and_b32 v13, 3, v1
    v_lshl_add_u32 v12, v13, 3, v12
    v_and_b32 v14, 1, v14
    v_lshrrev_b32 v15, 1, v15
    v_lshl_or_b32 v15, v14, 1, v15            ; g3
    v_xor_b32 v15, s38, v15                   ; g3 ^ kq
    s_lshl_b32 s40, s38, 2
    s_add_u32 s40, s40, 8
    s_lshl_b32 s40, s40, 12                   ; (8 + 4kq)*4096
    s_cmp_eq_u32 s38, 0
    s_cselect_b32 s40, {EBASE}, s40
    s_mul_i32 s41, s38, 40960
    """)
    for j in range(4):
        p(f"""
        v_xor_b32 v13, {j}, v15
        v_lshl_add_u32 v13, v13, 5, v12
        v_add_u32 v{20+j}, s40, v13
        v_add_u32 v{24+j}, s41, v13
        """)
    for n in range(4):
        for j in range(4):
            b = 32 + 16*n + 4*j
            p(f"ds_read_b64_tr_b16 {r2(b)}, v{20+j} offset:{n*4096}")
            p(f"ds_read_b64_tr_b16 {r2(b+2)}, v{20+j} offset:{n*4096 + 2048}")
    p(f"""
    s_lshl_b32 s40, s36, 1
    s_add_u32 s40, s40, s59                   ; rt2
    s_lshl_b32 s41, s40, 2
    s_lshl_b32 s43, s39, 1
    s_add_u32 s41, s41, s43                   ; T16(nt=0)
    s_mul_i32 s43, s41, 56
    s_mul_i32 s44, s38, 14
    s_add_u32 s43, s43, s44
    s_lshl_b32 s43, s43, 10
    v_lshl_add_u32 v2, v1, 4, s43             ; vH0
    v_add_u32 v3, {56*1024}, v2               ; vH1
    v_and_b32 v4, 15, v1
    s_lshl_b32 s41, s41, 4                    ; t0
    v_add_u32 v4, s41, v4                     ; t (nt=0)
    s_lshl_b32 s43, s60, 6
    s_lshl_b32 s44, s38, 4
    s_add_u32 s43, s43, s44
    v_lshrrev_b32 v5, 4, v1                   ; rg
    v_lshlrev_b32 v6, 2, v5
    v_add_u32 v6, s43, v6
    v_lshlrev_b32 v6, 12, v6
    v_lshl_add_u32 v6, v4, 1, v6              ; vRes
    v_and_b32 v7, 1, v5
    v_lshl_add_u32 v4, v7, 4, v4
    s_movk_i32 s44, 896
    v_mul_lo_u32 v4, v4, s44
    v_lshrrev_b32 v5, 1, v5
    v_lshlrev_b32 v5, 4, v5
    s_lshl_b32 s43, s43, 1
    v_add3_u32 v7, v4, v5, s43                ; vOut
    s_lshl_b32 s40, s36, 7
    s_add_u32 s40, s40, {CNT_OFF}
    v_mov_b32 v8, s40
    """)
    vm.wait("hs", extra=" lgkmcnt(0)")
    p("s_barrier")
    p.stamp()
    p(f"""
    s_cmp_lg_u32 s33, 0
    s_cbranch_scc1 L_{name}_noarr
    v_mov_b32 v9, 1
    s_mov_b64 s[56:57], exec
    s_mov_b64 exec, 1
    global_atomic_add v8, v9, s[12:13] sc1
    s_mov_b64 exec, s[56:57]
    L_{name}_noarr:
    """)
    for j in range(8):
        if j < 6: base, L0 = 12*4096 + 8192*j, 12 + 2*j
        else: base, L0 = EBASE + 8192*(j - 6), 36 + 2*(j - 6)
        wd_piece(base, final_ks(L0), final_ks(L0 + 1), "wr")
    for i in range(8):
        nt, r = i >> 2, i & 3
        p(f"s_mov_b32 s40, {r*4096 + nt*32}")
        p(f"buffer_load_ushort v{12 + i}, v6, s[16:19], s40 offen {XSC}")
    p(f"""
    s_cmp_lg_u32 s33, 0
    s_cbranch_scc1 L_{name}_nopoll
    s_mov_b32 s58, 0
    L_{name}_poll2:
    global_load_dword v9, v8, s[12:13] sc1
    s_waitcnt vmcnt(0)
    v_readfirstlane_b32 s40, v9
    s_add_u32 s58, s58, 1
    s_cmp_ge_u32 s40, 14
    s_cbranch_scc1 L_{name}_nopoll
    s_cmp_ge_u32 s58, 0x40000
    s_cbranch_scc1 L_{name}_nopoll
    s_sleep 1
    s_branch L_{name}_poll2
    L_{name}_nopoll:
    {"" if "b4late" in exp else "s_waitcnt vmcnt(0)"}
    s_barrier                                 ; B4
    """)
    p.stamp()
    HB = 96; A2 = 208; AB = [240, 32, 48]
    def ACC2(j, nt): return A2 + 8*j + 4*nt
    vm2 = VM(p)
    HD = 3
    for tok in exp.split("_"):
        if tok.startswith("hd"): HD = int(tok[2:])
    def h_issue(n):
        p(f"s_mov_b32 s40, {n*1024}")
        p(f"buffer_load_dwordx4 {r4(HB + 8*n)}, v2, s[28:31], s40 offen sc1")
        p(f"buffer_load_dwordx4 {r4(HB + 8*n + 4)}, v3, s[28:31], s40 offen sc1")
        vm2.issue(f"h{n}", 2)
    for n in range(min(HD, 14)): h_issue(n)
    def abuf(n):
        if n < 4: return 32 + 16*n
        if n == 4: return 240
        return 32 + 16*((n - 5) % 2) if n >= 5 else None
    def a_reads(n):
        m = n - 4
        o = []
        for j in range(4):
            b = abuf(n) + 4*j
            o.append(f"ds_read_b64_tr_b16 {r2(b)}, v{24+j} offset:{m*4096}")
            o.append(f"ds_read_b64_tr_b16 {r2(b+2)}, v{24+j} offset:{m*4096 + 2048}")
        return o
    for n in range(14):
        vm2.wait(f"h{n}", extra=(" lgkmcnt(0)" if n >= 4 else ""))
        if n == 3 and "b4late" in exp: p("s_barrier")
        nxt = a_reads(n + 1) if (n + 1 >= 4 and n + 1 < 14) else []
        k = 0
        for nt in range(2):
            for j in range(4):
                c_in = "0" if n == 0 else r4(ACC2(j, nt))
                p(f"v_mfma_f32_16x16x32_bf16 {r4(ACC2(j, nt))}, {r4(abuf(n) + 4*j)}, {r4(HB + 8*n + 4*nt)}, {c_in}")
                if k < len(nxt): p(nxt[k])
                k += 1
                if k == 2 and n + HD < 14: h_issue(n + HD)
    p.stamp()
    p(f"""
    s_barrier
    v_lshlrev_b32 v9, 4, v1
    """)
    for j in range(1, 4):
        p(f"""
        s_xor_b32 s40, s33, {j}
        s_mul_i32 s40, s40, {3*2048}
        s_add_u32 s40, s40, {(j-1)*2048}
        v_add_u32 v10, s40, v9
        ds_write_b128 v10, {r4(ACC2(j, 0))}
        ds_write_b128 v10, {r4(ACC2(j, 1))} offset:1024
        """)
    p(f"""
    s_mul_i32 s40, s33, {3*2048}
    v_add_u32 v10, s40, v9
    s_waitcnt lgkmcnt(0)
    s_barrier
    """)
    for k in range(3):
        p(f"ds_read_b128 {r4(32 + 8*k)}, v10 offset:{k*2048}")
        p(f"ds_read_b128 {r4(36 + 8*k)}, v10 offset:{k*2048 + 1024}")
    for i in range(8): p(f"v_lshlrev_b32 v{12+i}, 16, v{12+i}")
    for k in range(3):
        p(f"s_waitcnt lgkmcnt({4 - 2*k})")
        for q in range(4):
            p(f"v_pk_add_f32 {r2(A2 + 2*q)}, {r2(A2 + 2*q)}, {r2(32 + 8*k + 2*q)}")
    for q in range(4): p(f"v_cvt_pk_bf16_f32 v{56+q}, v{A2 + 2*q}, v{A2 + 2*q + 1}")
    for q in range(4):
        p(f"v_lshlrev_b32 v{A2 + 2*q}, 16, v{56+q}")
        p(f"v_and_b32 v{A2 + 2*q + 1}, 0xffff0000, v{56+q}")
    for q in range(4): p(f"v_pk_add_f32 {r2(A2 + 2*q)}, {r2(A2 + 2*q)}, {r2(12 + 2*q)}")
    for q in range(4): p(f"v_cvt_pk_bf16_f32 v{56+q}, v{A2 + 2*q}, v{A2 + 2*q + 1}")
    p("""
    v_permlane16_swap_b32 v56, v58
    v_permlane16_swap_b32 v57, v59
    buffer_store_dwordx4 v[56:59], v7, s[4:7], 0 offen
    """)
    p.stamp()

def gen_k23(name="k23_kernel", stamps=False, exp=""):
    p = Prog(); p.stamps_on = stamps
    if 'cyc' in exp: p.stamp_op = 's_memtime'
    if 'wl' in exp: p.stamp_tid = 448
    E = f"L_{name}_end"
    p(f"""
    s_cmp_ge_u32 s2, 256
    s_cbranch_scc1 {E}
    """)
    p.stamp()
    p(f"""
    s_load_dwordx4 s[8:11], s[0:1], 80
    s_load_dwordx2 s[12:13], s[0:1], 120      ; ws
    s_load_dwordx4 s[4:7], s[0:1], 96
    v_lshrrev_b32 v2, 6, v0
    v_and_b32 v1, 63, v0                      ; lane
    v_readfirstlane_b32 s33, v2
    s_cmp_lt_u32 s2, 32
    s_cbranch_scc1 L_{name}_stats
    """)
    gen_gemm(p, name, exp)
    p.stamp_flush(STAMP_OFF + 0x4000)
    p(f"s_branch {E}")
    p(f"L_{name}_stats:")
    gen_k2_stats(p, name, tail=("" if "nowarm" in exp else "warm"))
    p(f"""
    {E}:
    s_endpgm
    """)
    return kernel_text(name, p, vgpr=256, sgpr=96)

K23_LAUNCH = "grid=(256,1,1) block=(512,1,1) lds=163840"
if __name__ == "__main__":
    import sys
    s = f"; @launch kernel=k23_kernel {K23_LAUNCH}\n" + '.amdgcn_target "amdgcn-amd-amdhsa--gfx950"\n.text\n' + gen_k23(stamps=(len(sys.argv) > 2), exp=(sys.argv[2] if len(sys.argv) > 2 else ''))
    open(sys.argv[1], "w").write(s)
```

```python
from asmtool import *
from layout import *
from k1b import gen_conv, gen_spare_stats, gen_spare_cs, r4
from k2 import gen_k2_stats
from k23 import gen_gemm

KNAME = "sequential_preLN__ssm_conv_s4__glu_gated_glu__prompt_kernel"

def gen_kall(name=KNAME, stamps=False, exp=""):
    p = Prog(); p.stamps_on = stamps; p.exp = exp
    if 'cyc' in exp: p.stamp_op = 's_memtime'
    if 'wl' in exp: p.stamp_tid = 448
    lab = "kall"
    E = f"L_{lab}_end"
    p(f"""
    s_cmp_ge_u32 s2, 256
    s_cbranch_scc1 {E}
    """)
    p.stamp()
    p(f"""
    s_load_dwordx16 s[4:19], s[0:1], 0
    s_load_dwordx2 s[20:21], s[0:1], 64
    s_load_dwordx4 s[24:27], s[0:1], 112
    s_load_dwordx4 s[28:31], s[0:1], 80
    v_lshrrev_b32 v2, 6, v0
    v_and_b32 v1, 63, v0
    v_readfirstlane_b32 s33, v2
    s_cmp_lt_u32 s2, 32
    s_cbranch_scc1 L_{lab}_spare
    s_sub_u32 s3, s2, 32
    """)
    p.warm_w = "nowarmw" not in exp
    coarse = stamps and "k1st" not in exp
    if coarse: p.stamps_on = False
    gen_conv(p, lab, hsc="sc1")
    if coarse: p.stamps_on = True
    p.stamp()
    p(f"""
    s_load_dwordx4 s[8:11], s[0:1], 80
    s_load_dwordx2 s[12:13], s[0:1], 120      ; ws
    s_load_dwordx4 s[4:7], s[0:1], 96
    """)
    if stamps and not coarse: p.stamps_on = False
    gen_gemm(p, lab + "g", exp, merged=True)
    if stamps:
        p.stamps_on = True
        p.stamp_flush(STAMP_OFF + 0x4000)
    p(f"s_branch {E}")
    p(f"L_{lab}_spare:")
    so = p.stamps_on; p.stamps_on = False
    gen_spare_stats(p, lab)
    gen_spare_cs(p, lab, sc1="sc1")
    p(f"""
    s_load_dwordx2 s[12:13], s[0:1], 120      ; ws
    s_load_dwordx4 s[4:7], s[0:1], 96
    s_barrier
    s_cmp_lg_u32 s33, 0
    s_cbranch_scc1 L_{lab}_sp2w
    v_mov_b32 v12, 0
    s_mov_b32 s58, 0
    L_{lab}_sp1p:
    global_load_dword v13, v12, s[24:25] sc1
    s_waitcnt vmcnt(0)
    v_readfirstlane_b32 s40, v13
    s_add_u32 s58, s58, 1
    s_cmp_ge_u32 s40, 32
    s_cbranch_scc1 L_{lab}_sp1d
    s_cmp_ge_u32 s58, 0x40000
    s_cbranch_scc1 L_{lab}_sp1d
    s_sleep 8
    s_branch L_{lab}_sp1p
    L_{lab}_sp1d:
    s_waitcnt lgkmcnt(0)

        s_and_b32 s40, s2, 7
        s_lshl_b32 s40, s40, 7
        s_add_u32 s41, s40, {S2A_OFF}
        v_mov_b32 v12, s41
        v_mov_b32 v13, 1
        s_mov_b64 s[56:57], exec
        s_mov_b64 exec, 1
        global_atomic_add v14, v12, v13, s[12:13] sc0 sc1
        s_waitcnt vmcnt(0)
        v_readfirstlane_b32 s41, v14
        s_mov_b64 exec, s[56:57]
        s_cmp_lg_u32 s41, 31
        s_cbranch_scc1 L_{lab}_sp2nl
        v_lshlrev_b32 v12, 7, v1
        v_add_u32 v12, {S2T_OFF}, v12
        s_mov_b64 exec, 0xff
        global_atomic_add v12, v13, s[12:13] sc1
        s_mov_b64 exec, s[56:57]
        L_{lab}_sp2nl:
        s_add_u32 s41, s40, {S2T_OFF}
        v_mov_b32 v12, s41
        s_mov_b32 s58, 0
        L_{lab}_sp2p:
        global_load_dword v13, v12, s[12:13] sc1
        s_waitcnt vmcnt(0)
        v_readfirstlane_b32 s41, v13
        s_add_u32 s58, s58, 1
        s_cmp_ge_u32 s41, 8
        s_cbranch_scc1 L_{lab}_sp2w
        s_cmp_ge_u32 s58, 0x40000
        s_cbranch_scc1 L_{lab}_sp2w
        s_sleep 8
        s_branch L_{lab}_sp2p
    L_{lab}_sp2w:
    s_waitcnt lgkmcnt(0)
    s_barrier
    """)
    gen_k2_stats(p, lab, tail=("" if "nowarm_" in exp + "_" else "warm"), sc="sc1")
    p.stamps_on = so
    p(f"""
    {E}:
    s_endpgm
    """)
    return kernel_text(name, p, vgpr=256, sgpr=100)

KALL_LAUNCH = "grid=(256,1,1) block=(512,1,1) lds=163840"
```

```python
from asmtool import *
from layout import *
import struct

def r4(b): return f"v[{b}:{b+3}]"
def r2(b): return f"v[{b}:{b+1}]"
def fbits(x): return "0x%08x" % struct.unpack("<I", struct.pack("<f", x))[0]

WREG = 53 * 528
KCS = 4160
KCC = 4 * KCS
TB = 4 * WREG
UL0 = TB + 12288
XL0 = UL0 + 2 * 4608
LDS_K1 = XL0 + 2 * 4096
EX = 40960

def cmul_multi(p, items):
    for d, x, y in items: p(f"v_pk_mul_f32 {r2(d)}, {r2(x)}, {r2(y)} op_sel_hi:[1,0]")
    for d, x, y in items: p(f"v_pk_fma_f32 {r2(d)}, {r2(x)}, {r2(y)}, {r2(d)} op_sel:[1,1,0] op_sel_hi:[0,1,1] neg_lo:[1,0,0]")

def gen_spare_stats(p, name):
    p(f"""
    v_lshrrev_b32 v2, 3, v1                   ; lane>>3
    s_lshl_b32 s34, s2, 6
    s_lshl_b32 s35, s33, 3
    s_add_u32 s34, s34, s35                   ; 64b + 8w
    v_add_u32 v2, s34, v2                     ; row
    s_movk_i32 s35, 896
    v_mul_lo_u32 v3, v2, s35
    v_and_b32 v4, 7, v1
    v_lshl_add_u32 v3, v4, 4, v3
    s_waitcnt lgkmcnt(0)
    """)
    for i in range(7):
        p(f"global_load_dwordx4 {r4(32 + 4*i)}, v3, s[4:5] offset:{128*i}")
    if "notouch" not in getattr(p, "exp", ""):
        p(f"""
        v_mov_b32 v24, {TOUCH_OFF}
        v_mov_b32 v25, 64
        global_load_dword v26, v24, s[26:27]
        global_load_dword v27, v25, s[24:25]
        """)
    p(f"""
    s_mov_b32 s44, 0x3f803f80
    v_mov_b32 v10, 0
    v_mov_b32 v11, 0
    v_mov_b32 v14, 0
    v_mov_b32 v15, 0
    s_lshl_b32 s40, s2, 9
    s_add_u32 s40, s40, {ST2_OFF}
    v_lshl_add_u32 v20, v1, 3, s40
    v_mov_b32 v18, -1
    v_mov_b32 v19, -1
    v_lshlrev_b32 v21, 7, v1
    v_add_u32 v21, {CNT_OFF}, v21
    v_mov_b32 v22, 0
    s_mov_b64 s[46:47], exec
    s_cmp_lg_u32 s33, 1
    s_cbranch_scc1 L_{name}_noinit
    global_store_dwordx2 v20, v[18:19], s[26:27] sc1
    s_cmp_lg_u32 s2, 0
    s_cbranch_scc1 L_{name}_noinit
    s_mov_b32 exec_hi, 0
    global_store_dword v21, v22, s[26:27] sc1
    s_mov_b64 exec, s[46:47]
    L_{name}_noinit:
    """)
    for i in range(7):
        p(f"s_waitcnt vmcnt({6 - i})" if False else "")
    p.stamp(1)
    p("s_waitcnt vmcnt(0)")
    p.stamp(2)
    for i in range(7):
        for j in range(4):
            v = 32 + 4*i + j
            if j & 1:
                p(f"v_dot2_f32_bf16 v14, v{v}, s44, v14")
                p(f"v_dot2_f32_bf16 v15, v{v}, v{v}, v15")
            else:
                p(f"v_dot2_f32_bf16 v10, v{v}, s44, v10")
                p(f"v_dot2_f32_bf16 v11, v{v}, v{v}, v11")
    p("v_add_f32 v10, v10, v14\nv_add_f32 v11, v11, v15")
    for dpp in ("quad_perm:[1,0,3,2]", "quad_perm:[2,3,0,1]", "row_half_mirror"):
        for r in (10, 11):
            p(f"v_add_f32_dpp v{r}, v{r}, v{r} {dpp} row_mask:0xf bank_mask:0xf")
    p(f"""
    s_mov_b32 s40, 0x3b124925                 ; 1/448
    s_mov_b32 s41, 0x3727c5ac                 ; 1e-5
    v_mul_f32 v10, s40, v10
    v_mul_f32 v11, s40, v11
    v_fma_f32 v11, -v10, v10, v11
    v_max_f32 v11, 0, v11
    v_cvt_pk_bf16_f32 v16, v11, v11
    v_lshlrev_b32 v16, 16, v16
    v_add_f32 v16, s41, v16
    v_cvt_pk_bf16_f32 v16, v16, v16
    v_lshlrev_b32 v16, 16, v16
    v_sqrt_f32 v16, v16
    v_cvt_pk_bf16_f32 v16, v10, v16
    v_and_b32 v17, 0xffff0000, v16
    v_lshlrev_b32 v16, 16, v16                ; mean
    v_rcp_f32 v17, v17                        ; 1 / std
    v_lshlrev_b32 v2, 3, v2
    v_add_u32 v2, {STATS_OFF}, v2
    s_mov_b32 s42, 0x01010101
    s_mov_b32 s43, 0x01010101
    s_mov_b64 exec, s[42:43]
    global_store_dwordx2 v2, v[16:17], s[26:27] sc1
    s_mov_b64 exec, s[46:47]
    """)
    p.stamp(3)
    p(f"""
    s_waitcnt vmcnt(0)
    s_barrier
    """)
    p.stamp(4)
    p(f"""
    s_cmp_lg_u32 s33, 0
    s_cbranch_scc1 L_{name}_nosig
    v_mov_b32 v4, 0
    v_mov_b32 v5, 1
    s_mov_b64 exec, 1
    global_atomic_add v6, v4, v5, s[24:25] sc0 sc1
    s_waitcnt vmcnt(0)
    v_readfirstlane_b32 s40, v6
    s_cmp_lg_u32 s40, 31
    s_cbranch_scc1 L_{name}_notlast
    global_store_dword v4, v5, s[24:25] offset:128 sc1
    L_{name}_notlast:
    s_mov_b64 exec, s[46:47]
    L_{name}_nosig:
    """)

def gen_spare_cs(p, name, sc1=""):
    p(f"""
    s_movk_i32 s35, 4682
    v_mul_u32_u24 v6, s35, v0
    v_lshrrev_b32 v6, 16, v6                  ; rg (0..36)
    v_mul_u32_u24 v7, 14, v6
    v_sub_u32 v7, v0, v7                      ; u
    s_and_b32 s36, s2, 15
    s_mul_i32 s36, s36, 224
    s_movk_i32 s35, {14*3584 // 16}
    v_mul_u32_u24 v8, s35, v6
    v_lshlrev_b32 v8, 4, v8                   ; rg*14*3584
    v_lshl_add_u32 v8, v7, 4, v8
    v_add_u32 v8, s36, v8
    s_cmp_lt_u32 s2, 16
    s_cselect_b32 s36, s28, s30
    s_cselect_b32 s37, s29, s31
    s_mov_b32 s38, {W_BYTES}
    s_mov_b32 s39, 0x20000
    s_mov_b32 s40, 0
    """)
    for i in range(14):
        p(f"buffer_load_dwordx4 {r4(96 + 4*i)}, v8, s[36:39], 0 offen")
        if i < 13: p(f"v_add_u32 v8, 3584, v8")
    for r in range(8): p(f"v_mov_b32 v{32+r}, 0")
    p("s_mov_b32 s44, 0xffff0000")
    for i in range(14):
        p(f"s_waitcnt vmcnt({13 - i})")
        for j in range(4):
            v = 96 + 4*i + j
            t = 40 + 2*(j & 1)
            p(f"v_lshlrev_b32 v{t}, 16, v{v}\nv_and_b32 v{t+1}, s44, v{v}\nv_pk_add_f32 {r2(32+2*j)}, {r2(32+2*j)}, {r2(t)}")
    p(f"""
    s_movk_i32 s35, 448
    v_mul_u32_u24 v9, s35, v6
    v_lshl_add_u32 v9, v7, 5, v9
    v_mov_b32 v10, 448
    v_cmp_gt_u32 vcc, v10, v0
    s_and_saveexec_b64 s[42:43], vcc
    s_cbranch_execz L_{name}_csnw
    ds_write_b128 v9, v[32:35]
    ds_write_b128 v9, v[36:39] offset:16
    L_{name}_csnw:
    s_mov_b64 exec, s[42:43]
    s_waitcnt lgkmcnt(0)
    s_barrier
    v_mov_b32 v10, 112
    v_cmp_gt_u32 vcc, v10, v0
    s_and_saveexec_b64 s[42:43], vcc
    s_cbranch_execz L_{name}_csdone
    v_lshlrev_b32 v9, 2, v0
    """)
    for g in range(32): p(f"ds_read_b32 v{32+g}, v9 offset:{448*g}")
    p("s_waitcnt lgkmcnt(0)")
    for g in range(0, 32, 2): p(f"v_add_f32 v{32+g}, v{32+g}, v{33+g}")
    for g in range(2, 32, 2): p(f"v_add_f32 v32, v32, v{32+g}")
    p(f"""
    s_mul_i32 s40, s2, 448
    s_add_u32 s40, s40, {CS_OFF}
    v_add_u32 v9, s40, v9
    global_store_dword v9, v32, s[26:27] {sc1}
    L_{name}_csdone:
    s_mov_b64 exec, s[42:43]
    s_waitcnt vmcnt(0)
    """)

def gen_conv(p, name, hsc=""):
    exp = getattr(p, "exp", "")
    SLP = 2
    for tok in exp.split("_"):
        if tok.startswith("slp"): SLP = int(tok[3:])
    p(f"""
    s_and_b32 s34, s3, 7
    s_mul_i32 s34, s34, 56
    s_lshr_b32 s35, s3, 3
    s_lshl_b32 s35, s35, 1
    s_add_u32 s34, s34, s35                   ; d0
    s_bfe_u32 s35, s33, 0x10001               ; c  = (w>>1)&1
    s_and_b32 s36, s33, 1                     ; hf
    s_add_u32 s37, s34, s35                   ; d
    s_lshr_b32 s52, s33, 2                    ; role
    s_and_b32 s53, s33, 3                     ; sub
    s_lshl_b32 s38, s37, 9
    s_lshl_b32 s39, s36, 8
    s_add_u32 s38, s38, s39
    v_lshl_add_u32 v24, v1, 2, s38
    s_movk_i32 s39, 7168
    v_and_b32 v23, 255, v0
    v_mul_u32_u24 v25, s39, v23
    s_lshl_b32 s38, s34, 1
    s_add_u32 s39, s38, 3584
    v_add_u32 v25, s39, v25
    s_mul_i32 s42, s53, {WREG}
    v_lshl_add_u32 v26, v1, 3, s42
    s_waitcnt lgkmcnt(0)
    """)
    p.stamp()
    p(f"""
    s_load_dword s40, s[18:19], s38
    s_load_dword s41, s[20:21], s38
    s_cmp_lg_u32 s52, 0
    s_cbranch_scc1 L_{name}_noparam
    global_load_dword v10, v24, s[6:7]
    global_load_dword v11, v24, s[8:9]
    global_load_dword v12, v24, s[10:11]
    global_load_dword v13, v24, s[12:13]
    global_load_dword v14, v24, s[14:15]
    global_load_dword v15, v24, s[16:17]
    s_waitcnt vmcnt(0)
    L_{name}_noparam:
    s_barrier
    s_mov_b32 s46, 0xffff0000
    s_waitcnt lgkmcnt(0)
    s_cmp_eq_u32 s35, 0
    s_cselect_b32 s43, 16, 0
    s_lshl_b32 s41, s41, s43
    s_and_b32 s41, s41, 0xffff0000
    s_cmp_lg_u32 s52, 0
    s_cbranch_scc1 L_{name}_V
    s_lshl_b32 s40, s40, s43
    s_and_b32 s40, s40, 0xffff0000
    s_mov_b32 s44, 0x3fb8aa3b                 ; log2(e)
    s_mov_b32 s45, 0x3e22f983                 ; 1/(2 pi)
    v_mov_b32 v30, s40
    v_mul_f32 v30, s44, v30
    v_exp_f32 v30, v30
    v_cvt_pk_bf16_f32 v30, v30, v30
    v_and_b32 v30, s46, v30
    """)
    wr = [0]
    def put(row, src, neg):
        wp = 16 + 2*(wr[0] % 4); wr[0] += 1
        for k in range(2):
            s = src(k)
            p(f"v_cvt_pk_bf16_f32 v{wp+k}, v{s}, {'-' if neg else ''}v{s+1}")
        p(f"ds_write_b64 v26, {r2(wp)} offset:{row*528}")
    def unp(k, d, s):
        return f"v_lshlrev_b32 v{d}, 16, v{s}" if k == 0 else f"v_and_b32 v{d}, s46, v{s}"
    def expz(dst, Z, L, T):
        for k in range(2):
            t = T(k)
            if L == 1.0:
                p(f"v_exp_f32 v{t}, v{Z(k)}")
                p(f"v_fract_f32 v{t+1}, v{Z(k)+1}")
            else:
                p(f"v_pk_mul_f32 {r2(t)}, {r2(Z(k))}, {r2(28)} op_sel_hi:[1,0]")
        if L != 1.0:
            for k in range(2):
                t = T(k)
                p(f"v_exp_f32 v{t}, v{t}")
                p(f"v_fract_f32 v{t+1}, v{t+1}")
        for k in range(2):
            p(f"v_cos_f32 v{dst(k)}, v{T(k)+1}")
            p(f"v_sin_f32 v{dst(k)+1}, v{T(k)+1}")
        for k in range(2):
            p(f"v_pk_mul_f32 {r2(dst(k))}, {r2(dst(k))}, {r2(T(k))} op_sel_hi:[1,0]")
    names = ["Z", "CB", "E1", "E256", "E2", "E4", "Pa", "Pb", "T1", "T2", "T3", "Ta", "Tb", "R4", "Rt", "Tm",
             "E8", "E16", "Oa", "Ob", "Ea", "Eb"]
    def U(nm): return lambda k: 32 + 2*names.index(nm) + 44*k
    p("s_waitcnt vmcnt(0)")
    p.stamp()
    for k in range(2):
        Z, Pa, Pb = U("Z")(k), U("Pa")(k), U("Pb")(k)
        p(unp(k, Z, 10)); p(unp(k, Z+1, 11))
        p(unp(k, Pa, 12)); p(unp(k, Pa+1, 13))
        p(unp(k, Pb, 14)); p(unp(k, Pb+1, 15))
    for k in range(2):
        p(f"v_pk_mul_f32 {r2(U('Z')(k))}, {r2(U('Z')(k))}, v[30:31] op_sel_hi:[1,0]")
        p(f"v_pk_mul_f32 {r2(U('Pa')(k))}, {r2(U('Pa')(k))}, v[30:31] op_sel_hi:[1,0]")
    cmul_multi(p, [(U("CB")(k), U("Pb")(k), U("Pa")(k)) for k in range(2)])
    for k in range(2):
        p(f"v_mul_f32 v{U('Z')(k)}, s44, v{U('Z')(k)}")
        p(f"v_mul_f32 v{U('Z')(k)+1}, s45, v{U('Z')(k)+1}")
    p(f"v_mov_b32 v28, {fbits(8.0)}")
    expz(U("E8"), U("Z"), 8.0, U("Tm"))
    expz(U("E1"), U("Z"), 1.0, U("Tm"))
    p(f"v_mov_b32 v28, {fbits(256.0)}")
    expz(U("E256"), U("Z"), 256.0, U("Tm"))
    if 'fine' in exp: p.stamp(10)
    for k in range(2):
        p(f"v_mov_b32 v{U('Tm')(k)}, 1.0\nv_mov_b32 v{U('Tm')(k)+1}, 0")
    put(21, U("Tm"), False)
    put(22, U("E8"), False)
    put(0, U("CB"), True)
    def rnd(items, puts):
        cmul_multi(p, [(U(d)(k), U(x)(k), U(y)(k)) for (d, x, y) in items for k in range(2)])
        for row, nm in puts: put(row, U(nm), row < 21)
    rnd([("E16", "E8", "E8"), ("Pa", "CB", "E1"), ("T1", "CB", "E256"), ("E2", "E1", "E1")], [(23, "E16"), (1, "Pa"), (8, "T1")])
    urounds = [
        ([("Pb", "Pa", "E1"), ("T2", "T1", "E256"), ("E4", "E2", "E2")], [(2, "Pb"), (9, "T2")]),
        ([("Pa", "Pb", "E1"), ("T3", "T2", "E256"), ("Rt", "T1", "E2")], [(3, "Pa"), (10, "T3"), (16, "Rt")]),
        ([("Pb", "Pa", "E1"), ("Ta", "T3", "E256"), ("R4", "T1", "E4")], [(4, "Pb"), (11, "Ta"), (17, "R4")]),
        ([("Pa", "Pb", "E1"), ("Tb", "Ta", "E256"), ("Rt", "R4", "E2")], [(5, "Pa"), (12, "Tb"), (18, "Rt")]),
        ([("Pb", "Pa", "E1"), ("Ta", "Tb", "E256"), ("Rt", "T2", "E4")], [(6, "Pb"), (13, "Ta"), (19, "Rt")]),
        ([("Pa", "Pb", "E1"), ("Tb", "Ta", "E256"), ("Rt", "T3", "E4")], [(7, "Pa"), (14, "Tb"), (20, "Rt")]),
        ([("Ta", "Tb", "E256")], [(15, "Ta")]),
    ]
    o, e = "E8", "E16"
    no, ne = "Oa", "Ea"
    for n, j in enumerate(range(3, 32, 2)):
        items = [(no, o, "E16")]; puts = [(21 + j, no)]
        if j + 1 < 32: items.append((ne, e, "E16")); puts.append((21 + j + 1, ne))
        if n < len(urounds):
            items = items + urounds[n][0]; puts = puts + urounds[n][1]
        rnd(items, puts)
        o, e = no, ne
        no = "Ob" if no == "Oa" else "Oa"
        ne = "Eb" if ne == "Ea" else "Ea"
    if 'fine' in exp: p.stamp(11)
    p(f"""
    v_and_b32 v27, 31, v1
    v_min_u32 v28, 20, v27
    s_movk_i32 s43, 528
    v_mul_u32_u24 v28, s43, v28
    v_mul_u32_u24 v27, s43, v27
    v_lshrrev_b32 v29, 5, v1
    v_lshlrev_b32 v29, 4, v29                 ; kk*16
    v_add3_u32 v28, v28, v29, s42
    s_add_u32 s43, s42, {21*528}
    v_add3_u32 v27, v27, v29, s43
    s_waitcnt lgkmcnt(0)
    """)
    p.stamp()
    DEPTH = 6
    def kr(ks):
        b = 96 + 8*(ks % 8)
        p(f"ds_read_b128 {r4(b)}, v28 offset:{32*ks}")
        p(f"ds_read_b128 {r4(b+4)}, v27 offset:{32*ks}")
    for ks in range(DEPTH): kr(ks)
    p(f"""
    v_lshrrev_b32 v29, 5, v1
    v_lshlrev_b32 v29, 9, v29                 ; half*4*128
    v_and_b32 v24, 31, v1
    v_lshl_add_u32 v29, v24, 2, v29
    s_mul_i32 s42, s53, 3072
    s_add_u32 s42, s42, {TB}
    v_add_u32 v29, s42, v29
    """)
    for ks in range(16):
        outstanding_after = 2 * (min(ks + DEPTH, 16) - (ks + 1))
        p(f"s_waitcnt lgkmcnt({outstanding_after})")
        b = 96 + 8*(ks % 8)
        p(f"v_mfma_f32_32x32x16_bf16 v[160:175], {r4(b)}, {r4(b+4)}, " + ("0" if ks == 0 else "v[160:175]"))
        if ks + DEPTH < 16: kr(ks + DEPTH)
    for r in range(12):
        p(f"ds_write_b32 v29, v{160+r} offset:{((r & 3) + 8*(r >> 2))*128}")
    p(f"""
    s_mul_i32 s42, s35, 6144
    s_add_u32 s42, s42, {TB}
    v_lshl_add_u32 v26, v1, 2, s42
    s_waitcnt lgkmcnt(0)
    s_barrier                                 ; 1
    """)
    p.stamp()
    p(f"""
    s_cmp_lg_u32 s36, 0
    s_cbranch_scc1 L_{name}_g1
    """)
    seg1 = [256, 256, 512, 544, 544, 544, 576, 257]
    p("v_cmp_gt_u32 vcc, 32, v1")
    for e in range(8):
        p(f"v_mov_b32 v{40+e}, {(seg1[e]-32)*4}")
        p(f"v_mov_b32 v48, {32*e*4}")
        p(f"v_cndmask_b32 v{40+e}, v{40+e}, v48, vcc")
        p(f"v_add_u32 v{40+e}, v{40+e}, v26")
    for e in range(8):
        p(f"ds_read2st64_b32 {r2(48+2*e)}, v{40+e} offset0:0 offset1:12")
    p(f"v_add_u32 v32, {288*4}, v26\nv_add_u32 v33, {608*4}, v26\nv_add_u32 v34, {289*4}, v26")
    for i in range(3):
        p(f"ds_read2st64_b32 {r2(64+2*i)}, v{32+i} offset0:0 offset1:12")
    p("s_waitcnt lgkmcnt(0)")
    for e in range(8): p(f"v_add_f32 v{48+2*e}, v{48+2*e}, v{49+2*e}")
    for i in range(3): p(f"v_add_f32 v{64+2*i}, v{64+2*i}, v{65+2*i}")
    for j in range(4):
        p(f"v_cvt_pk_bf16_f32 v{96+j}, v{48+2*(7-2*j)}, v{48+2*(6-2*j)}")
    p(f"""
    v_cvt_pk_bf16_f32 v100, v68, v68
    v_cvt_pk_bf16_f32 v101, v66, v66          ; (K5,K4) = (Q,Q)
    v_cvt_pk_bf16_f32 v102, v66, v64          ; (K3,K2) = (Q,G)
    v_cvt_pk_bf16_f32 v103, v64, v64          ; (K1,K0) = (G,G)
    s_branch L_{name}_g2
    L_{name}_g1:
    """)
    for it in range(2):
        p(f"v_add_u32 v{40+it}, {(352+64*it)*4}, v26")
        p(f"v_add_u32 v{42+it}, {(353+64*it)*4}, v26")
    for it in range(2):
        p(f"ds_read2st64_b32 {r2(48+4*it)}, v{40+it} offset0:0 offset1:12")
        p(f"ds_read2st64_b32 {r2(50+4*it)}, v{42+it} offset0:0 offset1:12")
    p(f"""
    v_and_b32 v44, 1, v1
    v_cmp_eq_u32 vcc, 1, v44
    v_lshrrev_b32 v45, 1, v1
    s_movk_i32 s43, {KCS}
    v_mul_u32_u24 v45, s43, v45
    v_lshl_add_u32 v45, v44, 4, v45
    s_mul_i32 s42, s35, {KCC}
    s_add_u32 s42, s42, {256*16}
    v_add_u32 v45, s42, v45
    v_mov_b32 v60, 0
    v_mov_b32 v61, 0
    v_mov_b32 v62, 0
    v_mov_b32 v63, 0
    s_mov_b64 s[50:51], exec
    s_mov_b64 exec, 0xff
    ds_write_b128 v45, v[60:63]
    s_mov_b64 exec, s[50:51]
    s_waitcnt lgkmcnt(0)
    """)
    for it in range(2):
        G, Gn = 48 + 4*it, 50 + 4*it
        p(f"""
        v_add_f32 v{G}, v{G}, v{G+1}
        v_add_f32 v{Gn}, v{Gn}, v{Gn+1}
        v_cndmask_b32 v46, v{G}, v{Gn}, vcc
        v_cvt_pk_bf16_f32 v{96+4*it}, v{Gn}, v{Gn}       ; (K7,K6)
        v_cvt_pk_bf16_f32 v{97+4*it}, v{Gn}, v46         ; (K5,K4)
        v_cvt_pk_bf16_f32 v{98+4*it}, v{G}, v{G}         ; (K3,K2)
        v_cvt_pk_bf16_f32 v{99+4*it}, v{G}, v{G}         ; (K1,K0)
        """)
    p(f"""
    L_{name}_g2:
    s_mul_i32 s42, s35, {KCC}
    s_lshl_b32 s43, s36, 11                   ; 128*hf*16
    s_sub_u32 s42, s42, s43
    s_add_u32 s42, s42, {255*16}
    v_lshlrev_b32 v27, 4, v1
    v_sub_u32 v27, s42, v27                   ; it = 0
    v_subrev_u32 v28, 1024, v27               ; it = 1
    ds_write_b128 v27, v[96:99]
    ds_write_b128 v28, v[100:103]
    s_waitcnt lgkmcnt(0)
    s_barrier                                 ; 2
    ds_read_b64 v[104:105], v27 offset:16
    ds_read_b64 v[108:109], v28 offset:16
    """)
    p.stamp()
    p(f"""
    v_and_b32 v36, 3, v1                      ; rr & 3
    v_bfe_u32 v35, v1, 2, 1                   ; rr >> 2
    v_bfe_u32 v37, v1, 3, 1                   ; qq
    v_lshrrev_b32 v38, 4, v1                  ; kg
    v_sub_u32 v36, 3, v36
    s_movk_i32 s43, {KCS}
    v_mul_u32_u24 v36, s43, v36
    v_sub_u32 v39, v38, v37
    v_lshl_add_u32 v36, v39, 4, v36
    v_sub_u32 v35, 1, v35
    v_lshl_add_u32 v36, v35, 3, v36
    s_mul_i32 s42, s35, {KCC}
    s_add_u32 s42, s42, {16*253 - 3584}
    s_lshl_b32 s43, s36, 8                    ; 64 * 4 hf
    s_sub_u32 s42, s42, s43
    v_add_u32 v24, s42, v36
    v_and_b32 v36, 15, v1                     ; cc
    v_lshlrev_b32 v36, 5, v36
    v_lshl_add_u32 v36, v38, 4, v36
    s_mul_i32 s42, s35, 4608
    s_add_u32 s42, s42, {UL0 + 480}
    s_sub_u32 s42, s42, s43
    v_add_u32 v25, s42, v36
    """)
    for it in range(2):
        own = 96 + 4*it; nb = 104 + 4*it
        adr = 27 + it
        a = [own, own+1, own+2, own+3, nb, nb+1]
        Bb = 112 + 16*it; Ao = 117 + 16*it; Bo = 121 + 16*it
        p(f"s_waitcnt lgkmcnt({1 - it})")
        for i in range(4): p(f"v_alignbit_b32 v{Bb+i}, v{a[i+1]}, v{a[i]}, 16")
        for i in range(1, 5): p(f"v_mov_b32 v{Ao+i}, v{a[i]}")
        for i in range(1, 5): p(f"v_alignbit_b32 v{Bo+i}, v{a[i+1]}, v{a[i]}, 16")
        p(f"ds_write_b128 v{adr}, {r4(Bb)} offset:{1*KCS}")
        p(f"ds_write_b128 v{adr}, {r4(Ao+1)} offset:{2*KCS}")
        p(f"ds_write_b128 v{adr}, {r4(Bo+1)} offset:{3*KCS}")
    p(f"""
    s_waitcnt lgkmcnt(0)
    s_barrier                                 ; 3
    """)
    p.stamp()
    def FA(s, i): return 64 + 64*s + 4*i
    def FB(s, i): return 96 + 64*s + 4*i
    def ACC(q): return 192 + 4*q
    def frag_reads(s, areg, breg):
        o = []
        for i in range(8):
            o.append(f"ds_read_b64 {r2(FA(s, i))}, v{areg} offset:{(7-i)*512}")
            o.append(f"ds_read_b64 {r2(FA(s, i)+2)}, v{areg} offset:{(7-i)*512 + 8}")
            o.append(f"ds_read_b128 {r4(FB(s, i))}, v{breg} offset:{i*512}")
        return o
    pairs = []
    for s in range(8):
        for j in range(s + 1):
            if s + j <= 7:
                pairs.append((s, j))
                if j < s: pairs.append((j, s))
    for x in frag_reads(0, 24, 25): p(x)
    first = [True]*8
    for rho in range(4):
        s = rho & 1
        nxt = []
        if rho < 3:
            p(f"v_subrev_u32 v{28+2*(rho&1)}, {64*(rho+1)}, v24")
            p(f"v_subrev_u32 v{29+2*(rho&1)}, {64*(rho+1)}, v25")
            nxt = frag_reads(1 - s, 28 + 2*(rho & 1), 29 + 2*(rho & 1))
        ni = 0
        shell_done = -1
        pf_start = 12 if rho == 0 else 1
        for n, (i, j) in enumerate(pairs):
            sh = max(i, j)
            if rho == 0:
                if sh > shell_done and sh <= 3:
                    p(f"s_waitcnt lgkmcnt({min(15, 21 - 3*sh) if sh < 3 else 0})"); shell_done = sh
            elif n == 0:
                p("s_waitcnt lgkmcnt(0)")
            q = i + j
            c_in = "0" if first[q] else r4(ACC(q))
            first[q] = False
            p(f"v_mfma_f32_16x16x32_bf16 {r4(ACC(q))}, {r4(FA(s, i))}, {r4(FB(s, j))}, {c_in}")
            if n >= pf_start and ni < len(nxt): p(nxt[ni]); ni += 1
        assert ni == len(nxt), (rho, ni)
    p.stamp()
    p(f"""
    s_lshl_b32 s42, s53, 13
    s_add_u32 s42, s42, {EX}
    v_lshl_add_u32 v28, v1, 4, s42
    s_cmp_lg_u32 s36, 0
    s_cbranch_scc1 L_{name}_x1
    """)
    for q in range(2, 8): p(f"ds_write_b128 v28, {r4(ACC(q))} offset:{1024*q}")
    for r in range(8): p(f"v_mov_b32 v{64+r}, v{ACC(0)+r}")
    p(f"s_branch L_{name}_x2\nL_{name}_x1:")
    for q in (0, 1, 2, 3, 6, 7): p(f"ds_write_b128 v28, {r4(ACC(q))} offset:{1024*q}")
    for r in range(8): p(f"v_mov_b32 v{64+r}, v{ACC(4)+r}")
    p(f"""
    L_{name}_x2:
    s_xor_b32 s42, s53, 1
    s_lshl_b32 s42, s42, 13
    s_lshl_b32 s43, s36, 12
    s_add_u32 s42, s42, s43
    s_add_u32 s42, s42, {EX}
    v_lshl_add_u32 v29, v1, 4, s42
    s_waitcnt lgkmcnt(0)
    s_barrier                                 ; 4
    ds_read_b128 v[72:75], v29
    ds_read_b128 v[76:79], v29 offset:1024
    s_lshl_b32 s44, s36, 2
    s_waitcnt lgkmcnt(0)
    """)
    for q in range(4): p(f"v_pk_add_f32 {r2(64+2*q)}, {r2(64+2*q)}, {r2(72+2*q)}")
    p(f"s_branch L_{name}_fin")
    p(f"L_{name}_V:")
    if "notouch" not in exp:
        p(f"""
        v_mov_b32 v26, {TOUCH_OFF}
        global_load_dword v28, v26, s[26:27]
        """)
    for i in range(8):
        p(f"global_load_dword v{2+i}, v25, s[4:5] offset:{(i-4)*896}" + (" sc1" if "gsc1" in exp else " nt" if "gnt" in exp else ""))
    p.stamp(2)
    p(f"""
    v_mov_b32 v31, 0
    s_mov_b32 s47, 0
    s_cmp_lg_u32 s33, 4
    s_cbranch_scc1 L_{name}_go
    s_waitcnt vmcnt(0)
    L_{name}_poll:
    global_load_dword v24, v31, s[24:25] offset:128 sc1
    s_waitcnt vmcnt(0)
    v_readfirstlane_b32 s48, v24
    s_add_u32 s47, s47, 1
    s_cmp_ge_u32 s48, 1
    s_cbranch_scc1 L_{name}_go
    s_cmp_ge_u32 s47, 0x40000
    s_cbranch_scc1 L_{name}_go
    s_sleep {SLP}
    s_branch L_{name}_poll
    L_{name}_go:
    v_and_b32 v25, 255, v0
    v_lshlrev_b32 v25, 6, v25
    v_add_u32 v25, {STATS_OFF}, v25
    v_and_b32 v24, 255, v0
    v_lshlrev_b32 v24, 4, v24                 ; tid'*16
    v_add_u32 v24, {UL0 + 512}, v24
    """)
    p.stamp(3)
    p(f"""
    s_barrier                                 ; 1
    s_waitcnt vmcnt(0)
    global_load_dwordx4 v[32:35], v25, s[26:27] sc1
    global_load_dwordx4 v[36:39], v25, s[26:27] offset:16 sc1
    global_load_dwordx4 v[40:43], v25, s[26:27] offset:32 sc1
    global_load_dwordx4 v[44:47], v25, s[26:27] offset:48 sc1
    s_mov_b32 s48, 0x05040100
    s_mov_b32 s49, 0x07060302
    """)
    for j in range(4):
        p(f"v_perm_b32 v{72+j}, v{3+2*j}, v{2+2*j}, s48")
        p(f"v_perm_b32 v{76+j}, v{3+2*j}, v{2+2*j}, s49")
    p(f"""
    ds_write_b128 v24, v[72:75] offset:{XL0 - UL0 - 512}
    ds_write_b128 v24, v[76:79] offset:{XL0 + 4096 - UL0 - 512}
    """)
    for i in range(8):
        p(f"v_lshlrev_b32 v{48+2*i}, 16, v{2+i}")
        p(f"v_and_b32 v{49+2*i}, s46, v{2+i}")
    p.stamp(4)
    p.stamp(5)
    p(f"""
    s_barrier                                 ; 2
    s_waitcnt vmcnt(0)
    """)
    p.stamp(6)
    for i in range(8):
        p(f"v_pk_add_f32 {r2(48+2*i)}, {r2(48+2*i)}, {r2(32+2*i)} op_sel_hi:[1,0] neg_lo:[0,1] neg_hi:[0,1]")
    for i in range(8):
        p(f"v_cvt_pk_bf16_f32 v{2+i}, v{48+2*i}, v{49+2*i}")
    for i in range(8):
        p(f"v_lshlrev_b32 v{48+2*i}, 16, v{2+i}")
        p(f"v_and_b32 v{49+2*i}, s46, v{2+i}")
    for i in range(8):
        p(f"v_pk_mul_f32 {r2(48+2*i)}, {r2(48+2*i)}, {r2(32+2*i)} op_sel:[0,1] op_sel_hi:[1,1]")
    for j in range(4):
        p(f"v_cvt_pk_bf16_f32 v{64+j}, v{48+4*j}, v{50+4*j}")
        p(f"v_cvt_pk_bf16_f32 v{68+j}, v{49+4*j}, v{51+4*j}")
    p(f"""
    ds_write_b128 v24, v[64:67]
    ds_write_b128 v24, v[68:71] offset:4608
    s_cmp_lg_u32 s33, 4
    s_cbranch_scc1 L_{name}_nopad
    v_mov_b32 v60, 0
    v_mov_b32 v61, 0
    v_mov_b32 v62, 0
    v_mov_b32 v63, 0
    v_lshrrev_b32 v34, 5, v1
    s_movk_i32 s43, 4608
    v_mul_u32_u24 v34, s43, v34
    v_and_b32 v35, 31, v1
    v_lshl_add_u32 v34, v35, 4, v34
    v_add_u32 v34, {UL0}, v34
    ds_write_b128 v34, v[60:63]
    L_{name}_nopad:
    s_waitcnt lgkmcnt(0)
    """)
    p.stamp(7)
    p(f"""
    s_barrier                                 ; 3
    s_lshl_b32 s42, s35, 14                   ; c * 16384
    s_lshl_b32 s43, s36, 12                   ; 4hf * 1024
    s_add_u32 s42, s42, s43
    s_add_u32 s42, s42, {EX + 2048}
    v_lshl_add_u32 v29, v1, 4, s42
    """)
    if getattr(p, "warm_w", False):
        p(f"""
        s_and_b32 s54, s3, 7
        s_lshr_b32 s54, s54, 2
        s_mul_i32 s54, s54, 7
        s_lshr_b32 s55, s3, 5
        s_add_u32 s54, s54, s55                   ; ct
        v_lshrrev_b32 v34, 4, v1
        s_lshl_b32 s55, s53, 2
        v_add_u32 v34, s55, v34
        s_movk_i32 s55, 3584
        v_mul_lo_u32 v34, v34, s55
        v_and_b32 v35, 15, v1
        v_lshl_add_u32 v34, v35, 4, v34
        s_lshl_b32 s54, s54, 8
        v_add_u32 v34, s54, v34
        """)
        NW = 10
        for tok in exp.split("_"):
            if tok.startswith("nw"): NW = int(tok[2:])
        if getattr(p, "sent_h", False):
            p(f"""
            s_and_b32 s55, s3, 3
            s_lshl_b32 s55, s55, 2
            s_bfe_u32 s56, s3, 0x20003
            s_add_u32 s55, s55, s56                   ; rt
            s_mul_i32 s55, s55, {8*56}
            s_lshr_b32 s56, s54, 8                    ; ct
            s_lshl_b32 s56, s56, 2
            s_add_u32 s55, s55, s56
            s_add_u32 s55, s55, s53
            s_lshl_b32 s55, s55, 10
            s_add_u32 s55, s55, {HF_OFF}
            v_lshl_add_u32 v36, v1, 4, s55
            v_mov_b32 v40, -1
            v_mov_b32 v41, -1
            v_mov_b32 v42, -1
            v_mov_b32 v43, -1
            """)
            for j in range(8):
                p("global_store_dwordx4 v36, v[40:43], s[26:27] sc1")
                if j < 7: p(f"v_add_u32 v36, {56*1024}, v36")
        for i in range(NW):
            p(f"global_load_dwordx4 {r4(96 + 8*(i % 4))}, v34, s[28:29]")
            p(f"global_load_dwordx4 {r4(100 + 8*(i % 4))}, v34, s[30:31]")
            p(f"v_add_u32 v34, {16*3584}, v34")
    p(f"""
    s_barrier                                 ; 4
    ds_read_b128 v[64:67], v29
    ds_read_b128 v[68:71], v29 offset:1024
    ds_read_b128 v[72:75], v29 offset:8192
    ds_read_b128 v[76:79], v29 offset:{8192 + 1024}
    s_lshl_b32 s44, s36, 2
    s_add_u32 s44, s44, 2
    s_waitcnt lgkmcnt(0)
    """)
    for q in range(4): p(f"v_pk_add_f32 {r2(64+2*q)}, {r2(64+2*q)}, {r2(72+2*q)}")
    p(f"""
    L_{name}_fin:
    v_and_b32 v30, 15, v1
    v_lshlrev_b32 v30, 5, v30
    v_lshrrev_b32 v31, 4, v1
    v_lshl_add_u32 v30, v31, 3, v30
    s_lshl_b32 s44, s44, 9                    ; q0 * 512 B
    v_add_u32 v30, s44, v30
    s_mul_i32 s42, s35, 4608
    s_add_u32 s42, s42, {UL0 + 512}
    v_add_u32 v32, s42, v30                   ; u address
    s_lshl_b32 s42, s35, 12
    s_add_u32 s42, s42, {XL0}
    v_add_u32 v33, s42, v30                   ; x address
    ds_read_b64 v[80:81], v32
    ds_read_b64 v[82:83], v32 offset:512
    ds_read_b64 v[84:85], v33
    ds_read_b64 v[86:87], v33 offset:512
    s_lshl_b32 s42, s37, 12
    s_add_u32 s42, s42, {HT_OFF}
    v_add_u32 v35, s42, v30
    v_mov_b32 v36, s41                        ; Dskip
    s_waitcnt lgkmcnt(0)
    """)
    for j in range(2):
        u = 80 + 2*j; x = 84 + 2*j; y = 64 + 4*j
        t = 40 + 8*j
        p(f"""
        v_lshlrev_b32 v{t}, 16, v{u}
        v_and_b32 v{t+1}, s46, v{u}
        v_lshlrev_b32 v{t+2}, 16, v{u+1}
        v_and_b32 v{t+3}, s46, v{u+1}
        v_lshlrev_b32 v{t+4}, 16, v{x}
        v_and_b32 v{t+5}, s46, v{x}
        v_lshlrev_b32 v{t+6}, 16, v{x+1}
        v_and_b32 v{t+7}, s46, v{x+1}
        v_pk_fma_f32 {r2(y)}, {r2(t)}, v[36:37], {r2(y)} op_sel_hi:[1,0,1]
        v_pk_fma_f32 {r2(y+2)}, {r2(t+2)}, v[36:37], {r2(y+2)} op_sel_hi:[1,0,1]
        v_pk_add_f32 {r2(y)}, {r2(y)}, {r2(t+4)}
        v_pk_add_f32 {r2(y+2)}, {r2(y+2)}, {r2(t+6)}
        v_cvt_pk_bf16_f32 v{56+2*j}, v{y}, v{y+1}
        v_cvt_pk_bf16_f32 v{57+2*j}, v{y+2}, v{y+3}
        global_store_dwordx2 v35, {r2(56+2*j)}, s[26:27] offset:{512*j} {hsc}
        """)
    p.stamp()

def gen_k1b(name="k1_kernel", stamps=False, exp=""):
    p = Prog(); p.stamps_on = stamps
    if 'cyc' in exp: p.stamp_op = 's_memtime'
    if 'wl' in exp or 'w4' in exp: p.stamp_tid = (256 if "w4" in exp else 448)
    E = f"L_{name}_end"
    p.exp = exp
    p(f"""
    s_cmp_ge_u32 s2, 256
    s_cbranch_scc1 {E}
    """)
    p.stamp()
    p(f"""
    s_load_dwordx16 s[4:19], s[0:1], 0
    s_load_dwordx2 s[20:21], s[0:1], 64
    s_load_dwordx4 s[24:27], s[0:1], 112
    s_load_dwordx4 s[28:31], s[0:1], 80
    v_lshrrev_b32 v2, 6, v0
    v_and_b32 v1, 63, v0
    v_readfirstlane_b32 s33, v2
    s_cmp_lt_u32 s2, 32
    s_cbranch_scc1 L_{name}_spare
    s_sub_u32 s3, s2, 32
    """)
    p.warm_w = "nowarmw" not in exp
    gen_conv(p, name)
    if 'fine' in exp: p.nstamp = 12
    p.stamp_flush(STAMP_OFF, ws="s[26:27]")
    p(f"s_branch {E}")
    p(f"L_{name}_spare:")
    gen_spare_stats(p, name)
    gen_spare_cs(p, name)
    if stamps:
        p.stamp(5)
        p.nstamp = 6
        p.stamp_flush(STAMP_OFF, ws="s[26:27]", tag="b")
    p(f"""
    {E}:
    s_endpgm
    """)
    return kernel_text(name, p, vgpr=224, sgpr=96, denorm=(0 if 'ftz' in exp else 3))

K1B_LAUNCH = f"grid=(256,1,1) block=(512,1,1) lds={LDS_K1}"
if __name__ == "__main__":
    import sys
    s = f"; @launch kernel=k1_kernel {K1B_LAUNCH}\n" + '.amdgcn_target "amdgcn-amd-amdhsa--gfx950"\n.text\n' + gen_k1b(stamps=(len(sys.argv) > 2), exp=(sys.argv[2] if len(sys.argv) > 2 else ''))
    open(sys.argv[1], "w").write(s)
```

```python
from asmtool import *
from layout import *
from k2 import std_chain, gen_k2_stats, r4, r2

class VM:
    def __init__(self, p): self.p = p; self.ops = []
    def issue(self, tag, n=1): self.ops += [tag] * n
    def count_after(self, tags):
        last = max(i for i, t in enumerate(self.ops) if t in tags)
        return len(self.ops) - 1 - last
    def wait(self, *tags, extra=""):
        n = self.count_after(set(tags))
        assert n <= 63
        self.p(f"s_waitcnt vmcnt({n}){extra}")

def gen_gemm(p, name, exp="", merged=False):
    NSLOT = 6; SLOT = 24576; EBASE = NSLOT * SLOT
    def ACC(k, mt, nt): return 96 + (0 if k == "g" else 32) + 16*mt + 4*nt
    def SET(s, nm): return 32 + 32*s + {"G0": 0, "G1": 4, "U0": 8, "U1": 12, "X0": 16, "X1": 20, "X2": 24, "X3": 28}[nm]
    E = f"L_{name}_end"
    XSC = "sc1" if (merged and "xplain" not in exp) else ""
    p(f"""
    s_sub_u32 s3, s2, 32
    s_and_b32 s34, s3, 7                      ; xcd
    s_lshr_b32 s35, s3, 3                     ; j
    s_and_b32 s36, s34, 3
    s_lshl_b32 s36, s36, 2
    s_and_b32 s37, s35, 3
    s_add_u32 s36, s36, s37                   ; rt
    s_lshr_b32 s59, s34, 2                    ; ch
    s_mul_i32 s37, s59, 7
    s_lshr_b32 s60, s35, 2                    ; dc (0..6)
    s_add_u32 s37, s37, s60                   ; ct
    s_and_b32 s38, s33, 3
    s_lshr_b32 s39, s33, 2                    ; th
    v_lshrrev_b32 v4, 4, v1                   ; l>>4
    s_lshr_b32 s40, s33, 1
    s_and_b32 s40, s40, 1
    s_lshl_b32 s40, s40, 2
    v_or_b32 v5, s40, v4
    v_lshlrev_b32 v5, 1, v5
    v_and_b32 v6, 15, v1
    v_xor_b32 v5, v5, v6                      ; usrc
    v_lshlrev_b32 v5, 4, v5                   ; usrc*16
    s_lshl_b32 s40, s33, 2
    v_add_u32 v4, s40, v4                     ; row_local
    v_lshlrev_b32 v2, 12, v4                  ; *4096
    s_lshl_b32 s40, s36, 8
    v_add3_u32 v2, v2, v5, s40                ; vX
    s_movk_i32 s41, 3584
    v_mul_lo_u32 v3, v4, s41
    s_lshl_b32 s40, s37, 8
    v_add3_u32 v3, v3, v5, s40                ; vW
    s_lshl_b32 s42, s33, 10
    s_mov_b32 s50, {32*4096}
    s_mov_b32 s51, {32*3584}
    s_mov_b32 s18, {HT_BYTES}
    s_mov_b32 s19, 0x20000
    s_mov_b32 s22, {W_BYTES}
    s_mov_b32 s23, 0x20000
    s_mov_b32 s26, {W_BYTES}
    s_mov_b32 s27, 0x20000
    v_lshrrev_b32 v17, 4, v1
    v_lshlrev_b32 v17, 4, v17
    s_lshl_b32 s40, s37, 9
    s_lshl_b32 s41, s38, 7
    s_add_u32 s40, s40, s41
    s_add_u32 s40, s40, {CS_OFF}
    v_add_u32 v17, s40, v17
    v_add_u32 v18, {1792*4}, v17
    v_lshrrev_b32 v10, 3, v1
    s_lshl_b32 s40, s38, 3
    v_add_u32 v10, s40, v10
    s_movk_i32 s41, 896
    v_mul_lo_u32 v10, v10, s41
    v_lshrrev_b32 v11, 4, v1
    v_lshlrev_b32 v11, 1, v11
    v_and_b32 v12, 7, v1
    v_xor_b32 v11, v11, v12
    v_lshlrev_b32 v11, 4, v11
    s_lshl_b32 s40, s60, 7
    v_add3_u32 v10, v10, v11, s40             ; vWd
    v_lshrrev_b32 v14, 4, v1                  ; kg
    v_bfe_u32 v11, v1, 2, 2                   ; rr
    v_lshl_add_u32 v12, v14, 3, v11
    v_lshlrev_b32 v12, 8, v12                 ; (8kg+rr)*256
    v_and_b32 v13, 3, v1
    v_lshl_add_u32 v12, v13, 3, v12           ; + 8cc
    v_and_b32 v14, 1, v14
    v_lshl_or_b32 v11, v14, 2, v11            ; f
    """)
    for i in range(2):
        p(f"""
        s_lshl_b32 s40, s38, 1
        s_add_u32 s40, s40, {i}
        v_xor_b32 v13, s40, v11
        v_lshl_add_u32 v{4+i}, v13, 5, v12
        """)
    for i in range(4):
        p(f"""
        s_lshl_b32 s40, s39, 2
        s_add_u32 s40, s40, {i}
        v_xor_b32 v13, s40, v11
        v_lshl_add_u32 v{6+i}, v13, 5, v12
        """)
    for i in range(6): p(f"v_add_u32 v{20+i}, {SLOT}, v{4+i}")
    p(f"""
    s_mov_b32 s30, {HF_BYTES}
    s_mov_b32 s31, 0x20000
    s_waitcnt lgkmcnt(0)
    """)
    early_w = merged and "lateW" not in exp
    if merged:
        p("s_waitcnt vmcnt(0)")
        if "s2" in exp: p.stamp(12)
        p("s_barrier")
        p(f"""
        s_cmp_lg_u32 s33, 0
        s_cbranch_scc1 L_{name}_s2na
        s_and_b32 s40, s2, 7
        s_lshl_b32 s40, s40, 7
        s_add_u32 s41, s40, {S2A_OFF}
        v_mov_b32 v12, s41
        v_mov_b32 v13, 1
        s_mov_b64 s[56:57], exec
        s_mov_b64 exec, 1
        global_atomic_add v14, v12, v13, s[12:13] sc0 sc1
        s_mov_b64 exec, s[56:57]
        L_{name}_s2na:
        """)
        def early_block():
            for c in range(3):
                p(f"""
                s_add_u32 m0, s42, {c*SLOT + 8192}
                s_nop 0
                buffer_load_dwordx4 v3, s[20:23], 0 offen lds
                s_add_u32 m0, s42, {c*SLOT + 16384}
                s_nop 0
                buffer_load_dwordx4 v3, s[24:27], 0 offen lds
                v_add_u32 v3, s51, v3
                """)
        if early_w:
            p(f"""
            s_mov_b32 s20, s8
            s_mov_b32 s21, s9
            s_mov_b32 s24, s10
            s_mov_b32 s25, s11
            s_cmp_eq_u32 s33, 0
            s_cbranch_scc1 L_{name}_s2ne
            """)
            early_block()
            p(f"L_{name}_s2ne:")
        if "s2" in exp: p.stamp(13)
        p(f"""
        s_cmp_lg_u32 s33, 0
        s_cbranch_scc1 L_{name}_s2w

        s_waitcnt vmcnt(0)
        v_readfirstlane_b32 s41, v14
        s_cmp_lg_u32 s41, 31
        s_cbranch_scc1 L_{name}_s2nl
        v_lshlrev_b32 v12, 7, v1
        v_add_u32 v12, {S2T_OFF}, v12
        s_mov_b64 exec, 0xff
        global_atomic_add v12, v13, s[12:13] sc1
        s_mov_b64 exec, s[56:57]
        L_{name}_s2nl:
        s_add_u32 s41, s40, {S2T_OFF}
        v_mov_b32 v12, s41
        s_mov_b32 s58, 0
        L_{name}_s2p:
        global_load_dword v13, v12, s[12:13] sc1
        s_waitcnt vmcnt(0)
        v_readfirstlane_b32 s41, v13
        s_add_u32 s58, s58, 1
        s_cmp_ge_u32 s41, 8
        s_cbranch_scc1 L_{name}_s2w
        s_cmp_ge_u32 s58, 0x40000
        s_cbranch_scc1 L_{name}_s2w
        s_sleep 1
        s_branch L_{name}_s2p
        L_{name}_s2w:
        s_barrier
        """)
        if early_w:
            p(f"s_cmp_lg_u32 s33, 0\ns_cbranch_scc1 L_{name}_s2nf")
            early_block()
            p(f"L_{name}_s2nf:")
    p.stamp()
    p(f"""
    s_add_u32 s16, s12, {HT_OFF}
    s_addc_u32 s17, s13, 0
    s_mov_b32 s20, s8
    s_mov_b32 s21, s9
    s_mov_b32 s24, s10
    s_mov_b32 s25, s11
    """)
    def dma_parts(base):
        return [
            f"s_mov_b32 m0, {base}\ns_add_u32 s45, {base}, 8192\nbuffer_load_dwordx4 v2, s[16:19], 0 offen {XSC} lds",
            f"s_mov_b32 m0, s45\ns_add_u32 s45, {base}, 16384\nbuffer_load_dwordx4 v3, s[20:23], 0 offen lds\nv_add_u32 v2, s50, v2",
            f"s_mov_b32 m0, s45\ns_nop 0\nbuffer_load_dwordx4 v3, s[24:27], 0 offen lds\nv_add_u32 v3, s51, v3",
        ]
    PRE = NSLOT - 1
    PRE0 = 3
    for c in range(PRE0):
        if early_w:
            p(f"""
            s_add_u32 m0, s42, {c*SLOT}
            s_nop 0
            buffer_load_dwordx4 v2, s[16:19], 0 offen {XSC} lds
            v_add_u32 v2, s50, v2
            """)
        else:
            p(f"s_add_u32 s44, s42, {c*SLOT}")
            for d in dma_parts("s44"): p(d)
        if "pro" in exp and c == 0: p.stamp(13)
    if "pro" in exp: p.stamp(14)
    p(f"""
    s_add_u32 s28, s12, {HF_OFF}
    s_addc_u32 s29, s13, 0
    s_mov_b32 s8, s4
    s_mov_b32 s9, s5
    s_mov_b32 s10, {W_BYTES}
    s_mov_b32 s11, 0x20000
    s_mov_b32 s4, s6
    s_mov_b32 s5, s7
    s_mov_b32 s6, {X_BYTES}
    s_mov_b32 s7, 0x20000
    """)
    def rd(s, nm, h, abase=None):
        if abase is None: abase = 20 + 6*(1 - s)
        if nm[0] == "G": areg, sub = abase + int(nm[1]), 8192
        elif nm[0] == "U": areg, sub = abase + int(nm[1]), 16384
        else: areg, sub = abase + 2 + int(nm[1]), 0
        b = SET(s, nm) + 2*h
        return f"ds_read_b64_tr_b16 {r2(b)}, v{areg} offset:{sub + 1024*h}"
    def mf(s, k, mt, nt, zero=False):
        acc = ACC(k, mt, nt)
        a = SET(s, ("G" if k == "g" else "U") + str(mt)); b = SET(s, f"X{nt}")
        return f"v_mfma_f32_16x16x32_bf16 {r4(acc)}, {r4(a)}, {r4(b)}, " + ("0" if zero else r4(acc))
    RD_ORDER = ["G0", "X0", "U0", "X1", "G1", "U1", "X2", "X3"]
    MF_ORDER = [("g",0,0), ("u",0,0), ("g",0,1), ("u",0,1), ("g",1,0), ("g",1,1), ("u",1,0), ("u",1,1),
                ("g",0,2), ("u",0,2), ("g",1,2), ("u",1,2), ("g",0,3), ("u",0,3), ("g",1,3), ("u",1,3)]
    need_rd = {"G0": 1, "X0": 3, "U0": 5, "X1": 7, "G1": 9, "U1": 11, "X2": 13, "X3": 15}
    if "pro" in exp: p.stamp(15)
    p(f"""
    s_waitcnt vmcnt({(PRE0-1) if early_w else 3*(PRE0-1)})
    """)
    if "pro" in exp: p.stamp(12)
    p("s_barrier")
    p.stamp()
    for nm in RD_ORDER:
        for h in range(2): p(rd(0, nm, h, abase=4))
    def chunk(s, vmw, dp, last=False, static_c=None, hooks={}, zero=False, dpos=(2, 5, 8), va0=10):
        reads = [] if last else [rd(1 - s, nm, h) for nm in RD_ORDER for h in range(2)]
        done = -1
        other = 20 + 6*(1 - s)
        for i in range(16):
            k, mt, nt = MF_ORDER[i]
            need = max(need_rd[("G" if k == "g" else "U") + str(mt)], need_rd[f"X{nt}"])
            if need > done:
                allowed = (15 - need) + (0 if last else i)
                if not ("xnolgkm" in exp and static_c is None): p(f"s_waitcnt lgkmcnt({min(allowed, 15)})")
                done = need
            p(mf(s, k, mt, nt, zero))
            xp = (static_c is None)
            if i == 0:
                if not (xp and "xnodma" in exp): vmw()
                if not (xp and "xnobar" in exp): p("s_barrier")
            if not last and not (xp and "xnoread" in exp): p(reads[i])
            if i in dpos and not (xp and "xnodma" in exp): dp(dpos.index(i))
            if i in hooks: hooks[i]()
            if va0 <= i <= va0 + 5 and not last:
                if static_c is None:
                    if "xnovadd" not in exp: p(f"v_add_u32 v{other + i - va0}, s53, v{4 + i - va0}")
                elif static_c + 2 <= 13: p(f"v_add_u32 v{other + i - va0}, {((static_c + 2) % NSLOT)*SLOT}, v{4 + i - va0}")
            if i == min(15, max(dpos) + 1) and static_c is None:
                p(f"""
                s_add_u32 s54, s54, {SLOT}
                s_sub_u32 s55, s54, s42
                s_cmp_eq_u32 s55, {NSLOT*SLOT}
                s_cselect_b32 s54, s42, s54
                """)
        if static_c is None:
            p(f"""
            s_add_u32 s53, s53, {SLOT}
            s_cmp_eq_u32 s53, {NSLOT*SLOT}
            s_cselect_b32 s53, 0, s53
            """)
    VMS = []; cur_vm = [None]
    def kstep_soff(s): return s * 32 * 896
    def wd_piece(lds_base, s_th0, s_th1, tag):
        a, b = kstep_soff(s_th0), kstep_soff(s_th1)
        p(f"""
        s_mul_i32 s46, s39, {b - a}
        s_add_u32 m0, s42, {lds_base}
        s_add_u32 s46, s46, {a}
        buffer_load_dwordx4 v10, s[8:11], s46 offen lds
        """)
        cur_vm[0].issue(tag)
    stage = [(kq, n) for kq in range(4) for n in range(4)]
    def stage_ks(i): return 14*stage[i][0] + stage[i][1]
    def final_ks(L): return 14*(L // 10) + 4 + (L % 10)
    def g1_main(var):
        early = (var == 0)
        DP3 = (2, 5, 8) if early else (10, 12, 14)
        DP6 = (1, 3, 5, 7, 9, 11) if early else (3, 5, 7, 9, 11, 13)
        VA3 = 10 if early else 2
        VA6 = 10 if early else 10
        HK = 11 if early else 4
        for c in range(2):
            parts = dma_parts("s44")
            def dp(j, c=c, parts=parts):
                n = 3 + 2*c + j // 3
                if j % 3 == 0: p(f"s_add_u32 s44, s42, {(n % NSLOT)*SLOT}")
                p(parts[j % 3])
            chunk(c, (lambda c=c: p(f"s_waitcnt vmcnt({1 if (early_w and c == 0) else 3*(1 + c)})")), dp, static_c=c, zero=(c == 0), dpos=DP6, va0=VA6)
        if "g1st" in exp: p.stamp(12)
        p(f"""
        s_mov_b32 s48, 0                          ; iteration
        s_mov_b32 s53, {4*SLOT}
        s_add_u32 s54, s42, {1*SLOT}
        L_{name}_loop{var}:
        """)
        loop_dp = dma_parts("s54")
        def spread_chunk(s):
            reads = [rd(1 - s, nm, h) for nm in RD_ORDER for h in range(2)]
            other = 20 + 6*(1 - s)
            va = [f"v_add_u32 v{other + i}, s53, v{4 + i}" for i in range(6)]
            extra = {
                1: ["s_mov_b32 m0, s54"],
                2: [f"buffer_load_dwordx4 v2, s[16:19], 0 offen {XSC} lds"],
                3: ["s_add_u32 m0, s54, 8192", "v_add_u32 v2, s50, v2"],
                4: ["buffer_load_dwordx4 v3, s[20:23], 0 offen lds"],
                5: ["s_add_u32 m0, s54, 16384"],
                6: ["buffer_load_dwordx4 v3, s[24:27], 0 offen lds"],
                7: ["v_add_u32 v3, s51, v3", f"s_add_u32 s54, s54, {SLOT}"],
                8: ["s_sub_u32 s55, s54, s42"],
                9: [f"s_cmp_eq_u32 s55, {NSLOT*SLOT}", "s_cselect_b32 s54, s42, s54", va[0]],
                10: [va[1], va[2]],
                11: [va[3], va[4]],
                12: [va[5]],
                13: [f"s_add_u32 s53, s53, {SLOT}"],
                14: [f"s_cmp_eq_u32 s53, {NSLOT*SLOT}", "s_cselect_b32 s53, 0, s53"],
            }
            done = -1
            for i in range(16):
                k, mt, nt = MF_ORDER[i]
                need = max(need_rd[("G" if k == "g" else "U") + str(mt)], need_rd[f"X{nt}"])
                if need > done:
                    p(f"s_waitcnt lgkmcnt({min((15 - need) + i, 15)})")
                    done = need
                p(mf(s, k, mt, nt))
                if i == 0:
                    p(f"s_waitcnt vmcnt({3*(PRE-2)})"); p("s_barrier")
                p(reads[i])
                for x in extra.get(i, []): p(x)
        for s in range(2):
            if "nospread" not in exp: spread_chunk(s)
            else: chunk(s, lambda: p(f"s_waitcnt vmcnt({3*(PRE-2)})"), lambda j: p(loop_dp[j]), dpos=DP3, va0=VA3)
        p(f"""
        s_add_u32 s48, s48, 1
        s_cmp_lt_u32 s48, 3
        s_cbranch_scc1 L_{name}_loop{var}
        """)
        if "g1st" in exp: p.stamp(13)
        vm = VM(p); VMS.append(vm); cur_vm[0] = vm
        for c in range(13): vm.issue(f"c{c}", 3)
        for j in range(2):
            wd_piece(EBASE + 8192*j, stage_ks(2*j), stage_ks(2*j + 1), "E")
        def tail_dp(c):
            if c == 8:
                parts = dma_parts("s44")
                def f(j):
                    if j == 0: p(f"s_add_u32 s44, s42, {(13 % NSLOT)*SLOT}")
                    p(parts[j]); vm.issue("c13")
                return f
            slot = (c - 1) % NSLOT
            def f(j):
                b0 = 2*j
                if c == 9:   ks = (stage_ks(4 + b0), stage_ks(4 + b0 + 1))
                elif c == 10: ks = (stage_ks(10 + b0), stage_ks(10 + b0 + 1))
                else:        ks = (final_ks(6*slot + b0), final_ks(6*slot + b0 + 1))
                wd_piece(slot*SLOT + 8192*j, ks[0], ks[1], f"w{c}")
            return f
        def stats_addr():
            p(f"""
            v_and_b32 v11, 15, v1
            s_lshl_b32 s40, s36, 7
            s_lshl_b32 s41, s39, 6
            s_add_u32 s40, s40, s41
            v_add_u32 v11, s40, v11
            v_lshlrev_b32 v11, 3, v11
            v_add_u32 v11, {ST2_OFF}, v11
            """)
        def cs_loads():
            p(f"""
            global_load_dwordx4 v[160:163], v17, s[12:13] {XSC}
            global_load_dwordx4 v[164:167], v17, s[12:13] offset:64 {XSC}
            global_load_dwordx4 v[168:171], v18, s[12:13] {XSC}
            global_load_dwordx4 v[172:175], v18, s[12:13] offset:64 {XSC}
            """)
            vm.issue("cs", 4)
        def stats_loads():
            for nt in range(4):
                p(f"global_load_dwordx2 {r2(176+2*nt)}, v11, s[12:13] offset:{128*nt} sc1")
            vm.issue("st", 4)
        for c in range(8, 14):
            last = (c == 13)
            vmw = (lambda c=c: vm.wait(f"c{c+1}")) if c < 13 else (lambda: None)
            hooks = {}
            if c == 9: hooks = {HK: cs_loads}
            if c == 11: hooks = {HK: stats_addr}
            if c == 12: hooks = {HK: stats_loads}
            chunk(c & 1, vmw, tail_dp(c), last=last, static_c=c, hooks=hooks, dpos=DP3, va0=VA3)
            if "g1st" in exp and c == 10: p.stamp(14)

    if "stag" not in exp:
        g1_main(0)
    else:
        p(f"s_cmp_lg_u32 s39, 0\ns_cbranch_scc1 L_{name}_g1b")
        g1_main(0)
        p(f"s_branch L_{name}_g1e\nL_{name}_g1b:")
        g1_main(1)
        p(f"L_{name}_g1e:")
    class MVM:
        def issue(self, tag, n=1):
            for v in VMS: v.issue(tag, n)
        def wait(self, *tags, extra=""):
            n = min(v.count_after(set(tags)) for v in VMS)
            p(f"s_waitcnt vmcnt({n}){extra}")
    vm = MVM(); cur_vm[0] = vm
    p.stamp()
    vm.wait("st", "cs")
    p(f"""
    s_mov_b32 s58, 0
    L_{name}_poll:
    v_max_u32 v184, v176, v177
    v_max3_u32 v184, v184, v178, v179
    v_max3_u32 v184, v184, v180, v181
    v_max3_u32 v184, v184, v182, v183
    v_cmp_eq_u32 vcc, -1, v184
    s_add_u32 s58, s58, 1
    s_cmp_ge_u32 s58, 0x40000
    s_cbranch_scc1 L_{name}_got
    s_cbranch_vccz L_{name}_got
    s_sleep 2
    global_load_dwordx2 v[176:177], v11, s[12:13] sc1
    global_load_dwordx2 v[178:179], v11, s[12:13] offset:128 sc1
    global_load_dwordx2 v[180:181], v11, s[12:13] offset:256 sc1
    global_load_dwordx2 v[182:183], v11, s[12:13] offset:384 sc1
    s_waitcnt vmcnt(0)
    s_branch L_{name}_poll
    L_{name}_got:
    s_mov_b32 s40, 0xbfb8aa3b                 ; -log2(e)
    """)
    for nt in range(4):
        m, r = 176 + 2*nt, 177 + 2*nt
        p(f"""
        v_mul_f32 v{184+2*nt}, s40, v{r}
        v_mul_f32 v{192+2*nt}, -v{r}, v{m}
        v_mul_f32 v{185+2*nt}, -v{184+2*nt}, v{m}
        """)
    p(f"""
    s_lshl_b32 s40, s36, 3
    s_lshl_b32 s41, s39, 2
    s_add_u32 s40, s40, s41
    s_mul_i32 s40, s40, 56
    s_lshl_b32 s41, s37, 2
    s_add_u32 s40, s40, s41
    s_add_u32 s40, s40, s38
    s_lshl_b32 s40, s40, 10
    v_lshl_add_u32 v11, v1, 4, s40
    s_mov_b32 s41, 0
    """)
    p.stamp()
    CSG = 160; CSU = 168
    for nt in range(4):
        ab, rb, st = 184 + 2*nt, 192 + 2*nt, 176 + 2*nt
        out = 200 + 4*nt
        for mt in range(2):
            g = ACC("g", mt, nt); u = ACC("u", mt, nt)
            for r in (0, 2):
                p(f"v_pk_mul_f32 {r2(g+r)}, {r2(g+r)}, {r2(ab)} op_sel_hi:[1,0]")
                p(f"v_pk_mul_f32 {r2(u+r)}, {r2(u+r)}, {r2(st)} op_sel:[0,1] op_sel_hi:[1,1]")
        for mt in range(2):
            g = ACC("g", mt, nt); u = ACC("u", mt, nt)
            for r in (0, 2):
                p(f"v_pk_fma_f32 {r2(g+r)}, {r2(CSG+4*mt+r)}, {r2(ab)}, {r2(g+r)} op_sel:[0,1,0] op_sel_hi:[1,1,1]")
                p(f"v_pk_fma_f32 {r2(u+r)}, {r2(CSU+4*mt+r)}, {r2(rb)}, {r2(u+r)} op_sel_hi:[1,0,1]")
        for mt in range(2):
            g = ACC("g", mt, nt)
            for r in range(4): p(f"v_exp_f32 v{g+r}, v{g+r}")
        for mt in range(2):
            g = ACC("g", mt, nt)
            for r in (0, 2): p(f"v_pk_add_f32 {r2(g+r)}, {r2(g+r)}, 1.0 op_sel_hi:[1,0]")
        for mt in range(2):
            g = ACC("g", mt, nt)
            for r in range(4): p(f"v_rcp_f32 v{g+r}, v{g+r}")
        for mt in range(2):
            g = ACC("g", mt, nt); u = ACC("u", mt, nt)
            for r in (0, 2): p(f"v_pk_mul_f32 {r2(u+r)}, {r2(u+r)}, {r2(g+r)}")
        for mt in range(2):
            u = ACC("u", mt, nt)
            p(f"v_cvt_pk_bf16_f32 v{out+2*mt}, v{u}, v{u+1}")
            p(f"v_cvt_pk_bf16_f32 v{out+2*mt+1}, v{u+2}, v{u+3}")
        p(f"buffer_store_dwordx4 {r4(out)}, v11, s[28:31], s41 offen sc1")
        vm.issue("hs")
        p(f"s_add_u32 s41, s41, {56*1024}")
    p.stamp()
    vm.wait("E", "w9", "w10")
    p("s_barrier")
    for j in range(3):
        wd_piece(1*SLOT + 8192*j, final_ks(6 + 2*j), final_ks(6 + 2*j + 1), "wf")
    p(f"""
    v_lshrrev_b32 v14, 4, v1                  ; kg
    v_bfe_u32 v15, v1, 2, 2                   ; rr
    v_lshl_add_u32 v12, v14, 2, v15
    v_lshlrev_b32 v12, 7, v12
    v_and_b32 v13, 3, v1
    v_lshl_add_u32 v12, v13, 3, v12
    v_and_b32 v14, 1, v14
    v_lshrrev_b32 v15, 1, v15
    v_lshl_or_b32 v15, v14, 1, v15            ; g3
    v_xor_b32 v15, s38, v15                   ; g3 ^ kq
    s_lshl_b32 s40, s38, 2
    s_add_u32 s40, s40, 8
    s_lshl_b32 s40, s40, 12                   ; (8 + 4kq)*4096
    s_cmp_eq_u32 s38, 0
    s_cselect_b32 s40, {EBASE}, s40           ; staging base
    s_mul_i32 s41, s38, 40960
    """)
    for j in range(4):
        p(f"""
        v_xor_b32 v13, {j}, v15
        v_lshl_add_u32 v13, v13, 5, v12
        v_add_u32 v{20+j}, s40, v13
        v_add_u32 v{24+j}, s41, v13
        """)
    for n in range(4):
        for j in range(4):
            b = 32 + 16*n + 4*j
            p(f"ds_read_b64_tr_b16 {r2(b)}, v{20+j} offset:{n*4096}")
            p(f"ds_read_b64_tr_b16 {r2(b+2)}, v{20+j} offset:{n*4096 + 2048}")
    p(f"""
    s_lshl_b32 s40, s36, 1
    s_add_u32 s40, s40, s59                   ; rt2
    s_lshl_b32 s41, s40, 2
    s_lshl_b32 s43, s39, 1
    s_add_u32 s41, s41, s43                   ; T16(nt=0)
    s_mul_i32 s43, s41, 56
    s_mul_i32 s44, s38, 14
    s_add_u32 s43, s43, s44
    s_lshl_b32 s43, s43, 10
    v_lshl_add_u32 v2, v1, 4, s43             ; vH0
    v_add_u32 v3, {56*1024}, v2               ; vH1
    v_and_b32 v4, 15, v1
    s_lshl_b32 s41, s41, 4                    ; t0
    v_add_u32 v4, s41, v4                     ; t (nt=0)
    s_lshl_b32 s43, s60, 6
    s_lshl_b32 s44, s38, 4
    s_add_u32 s43, s43, s44
    v_lshrrev_b32 v5, 4, v1                   ; rg
    v_lshlrev_b32 v6, 2, v5
    v_add_u32 v6, s43, v6
    v_lshlrev_b32 v6, 12, v6
    v_lshl_add_u32 v6, v4, 1, v6              ; vRes
    v_and_b32 v7, 1, v5
    v_lshl_add_u32 v4, v7, 4, v4
    s_movk_i32 s44, 896
    v_mul_lo_u32 v4, v4, s44
    v_lshrrev_b32 v5, 1, v5
    v_lshlrev_b32 v5, 4, v5
    s_lshl_b32 s43, s43, 1
    v_add3_u32 v7, v4, v5, s43                ; vOut
    s_lshl_b32 s40, s36, 7
    s_add_u32 s40, s40, {CNT_OFF}
    v_mov_b32 v8, s40
    """)
    sent = merged and "usesent" in exp
    if sent:
        p("s_waitcnt lgkmcnt(0)")
        p("s_barrier")
        p.stamp()
        for j in range(8):
            if j < 6: base, L0 = 12*4096 + 8192*j, 12 + 2*j
            else: base, L0 = EBASE + 8192*(j - 6), 36 + 2*(j - 6)
            wd_piece(base, final_ks(L0), final_ks(L0 + 1), "wr")
        for i in range(8):
            nt, r = i >> 2, i & 3
            p(f"s_mov_b32 s40, {r*4096 + nt*32}")
            p(f"buffer_load_ushort v{12 + i}, v6, s[16:19], s40 offen {XSC}")
        p("s_mov_b32 s58, 0")
        p.stamp()
    else:
        vm.wait("hs", extra=" lgkmcnt(0)")
        p("s_barrier")
        p.stamp()
        p(f"""
        s_cmp_lg_u32 s33, 0
        s_cbranch_scc1 L_{name}_noarr
        v_mov_b32 v9, 1
        s_mov_b64 s[56:57], exec
        s_mov_b64 exec, 1
        global_atomic_add v8, v9, s[12:13] sc1
        s_mov_b64 exec, s[56:57]
        L_{name}_noarr:
        """)
        for j in range(8):
            if j < 6: base, L0 = 12*4096 + 8192*j, 12 + 2*j
            else: base, L0 = EBASE + 8192*(j - 6), 36 + 2*(j - 6)
            wd_piece(base, final_ks(L0), final_ks(L0 + 1), "wr")
        for i in range(8):
            nt, r = i >> 2, i & 3
            p(f"s_mov_b32 s40, {r*4096 + nt*32}")
            p(f"buffer_load_ushort v{12 + i}, v6, s[16:19], s40 offen {XSC}")
        p(f"""
        s_cmp_lg_u32 s33, 0
        s_cbranch_scc1 L_{name}_nopoll
        s_mov_b32 s58, 0
        L_{name}_poll2:
        global_load_dword v9, v8, s[12:13] sc1
        s_waitcnt vmcnt(0)
        v_readfirstlane_b32 s40, v9
        s_add_u32 s58, s58, 1
        s_cmp_ge_u32 s40, 14
        s_cbranch_scc1 L_{name}_nopoll
        s_cmp_ge_u32 s58, 0x40000
        s_cbranch_scc1 L_{name}_nopoll
        s_sleep 1
        s_branch L_{name}_poll2
        L_{name}_nopoll:
        {"" if "b4late" in exp else "s_waitcnt vmcnt(0)"}
        s_barrier                                 ; B4
        """)
        p.stamp()

    HB = 96; A2 = 208; AB = [240, 32, 48]
    def ACC2(j, nt): return A2 + 8*j + 4*nt
    vm2 = VM(p)
    HD = 3
    for tok in exp.split("_"):
        if tok.startswith("hd"): HD = int(tok[2:])
    def h_issue(n):
        p(f"s_mov_b32 s40, {n*1024}")
        p(f"buffer_load_dwordx4 {r4(HB + 8*n)}, v2, s[28:31], s40 offen sc1")
        p(f"buffer_load_dwordx4 {r4(HB + 8*n + 4)}, v3, s[28:31], s40 offen sc1")
        vm2.issue(f"h{n}", 2)
    for n in range(min(HD, 14)): h_issue(n)
    def abuf(n):
        if n < 4: return 32 + 16*n
        if n == 4: return 240
        return 32 + 16*((n - 5) % 2) if n >= 5 else None
    def a_reads(n):
        m = n - 4
        o = []
        for j in range(4):
            b = abuf(n) + 4*j
            o.append(f"ds_read_b64_tr_b16 {r2(b)}, v{24+j} offset:{m*4096}")
            o.append(f"ds_read_b64_tr_b16 {r2(b+2)}, v{24+j} offset:{m*4096 + 2048}")
        return o
    retries = []
    for n in range(14):
        vm2.wait(f"h{n}", extra=(" lgkmcnt(0)" if n >= 4 else ""))
        if sent:
            h = HB + 8*n
            p(f"""
            v_max3_u32 v9, v{h}, v{h+1}, v{h+2}
            v_max3_u32 v8, v{h+3}, v{h+4}, v{h+5}
            v_max3_u32 v9, v9, v{h+6}, v{h+7}
            v_max_u32 v9, v9, v8
            v_cmp_eq_u32 vcc, -1, v9
            s_nop 0
            s_cbranch_vccnz L_{name}_retry{n}
            L_{name}_back{n}:
            """)
            retries.append(n)
        if n == 3 and ("b4late" in exp or sent): p("s_barrier")
        nxt = a_reads(n + 1) if (n + 1 >= 4 and n + 1 < 14) else []
        k = 0
        for nt in range(2):
            for j in range(4):
                c_in = "0" if n == 0 else r4(ACC2(j, nt))
                p(f"v_mfma_f32_16x16x32_bf16 {r4(ACC2(j, nt))}, {r4(abuf(n) + 4*j)}, {r4(HB + 8*n + 4*nt)}, {c_in}")
                if k < len(nxt): p(nxt[k])
                k += 1
                if k == 2 and n + HD < 14: h_issue(n + HD)
    p.stamp()
    p(f"""
    s_barrier
    v_lshlrev_b32 v9, 4, v1
    """)
    for j in range(1, 4):
        p(f"""
        s_xor_b32 s40, s33, {j}
        s_mul_i32 s40, s40, {3*2048}
        s_add_u32 s40, s40, {(j-1)*2048}
        v_add_u32 v10, s40, v9
        ds_write_b128 v10, {r4(ACC2(j, 0))}
        ds_write_b128 v10, {r4(ACC2(j, 1))} offset:1024
        """)
    p(f"""
    s_mul_i32 s40, s33, {3*2048}
    v_add_u32 v10, s40, v9
    s_waitcnt lgkmcnt(0)
    s_barrier
    """)
    for k in range(3):
        p(f"ds_read_b128 {r4(32 + 8*k)}, v10 offset:{k*2048}")
        p(f"ds_read_b128 {r4(36 + 8*k)}, v10 offset:{k*2048 + 1024}")
    for i in range(8): p(f"v_lshlrev_b32 v{12+i}, 16, v{12+i}")
    for k in range(3):
        p(f"s_waitcnt lgkmcnt({4 - 2*k})")
        for q in range(4):
            p(f"v_pk_add_f32 {r2(A2 + 2*q)}, {r2(A2 + 2*q)}, {r2(32 + 8*k + 2*q)}")
    for q in range(4): p(f"v_cvt_pk_bf16_f32 v{56+q}, v{A2 + 2*q}, v{A2 + 2*q + 1}")
    for q in range(4):
        p(f"v_lshlrev_b32 v{A2 + 2*q}, 16, v{56+q}")
        p(f"v_and_b32 v{A2 + 2*q + 1}, 0xffff0000, v{56+q}")
    for q in range(4): p(f"v_pk_add_f32 {r2(A2 + 2*q)}, {r2(A2 + 2*q)}, {r2(12 + 2*q)}")
    for q in range(4): p(f"v_cvt_pk_bf16_f32 v{56+q}, v{A2 + 2*q}, v{A2 + 2*q + 1}")
    p("""
    v_permlane16_swap_b32 v56, v58
    v_permlane16_swap_b32 v57, v59
    buffer_store_dwordx4 v[56:59], v7, s[4:7], 0 offen
    """)
    p.stamp()
    if retries:
        p(f"s_branch L_{name}_done")
        for n in retries:
            h = HB + 8*n
            p(f"""
            L_{name}_retry{n}:
            s_add_u32 s58, s58, 1
            s_cmp_ge_u32 s58, 0x40000
            s_cbranch_scc1 L_{name}_back{n}
            s_sleep 1
            s_mov_b32 s40, {n*1024}
            buffer_load_dwordx4 {r4(h)}, v2, s[28:31], s40 offen sc1
            buffer_load_dwordx4 {r4(h+4)}, v3, s[28:31], s40 offen sc1
            s_waitcnt vmcnt(0)
            v_max3_u32 v9, v{h}, v{h+1}, v{h+2}
            v_max3_u32 v8, v{h+3}, v{h+4}, v{h+5}
            v_max3_u32 v9, v9, v{h+6}, v{h+7}
            v_max_u32 v9, v9, v8
            v_cmp_eq_u32 vcc, -1, v9
            s_nop 0
            s_cbranch_vccnz L_{name}_retry{n}
            s_branch L_{name}_back{n}
            """)
        p(f"L_{name}_done:")

def gen_k23(name="k23_kernel", stamps=False, exp=""):
    p = Prog(); p.stamps_on = stamps
    if 'cyc' in exp: p.stamp_op = 's_memtime'
    if 'wl' in exp: p.stamp_tid = 448
    E = f"L_{name}_end"
    p(f"""
    s_cmp_ge_u32 s2, 256
    s_cbranch_scc1 {E}
    """)
    p.stamp()
    p(f"""
    s_load_dwordx4 s[8:11], s[0:1], 80
    s_load_dwordx2 s[12:13], s[0:1], 120      ; ws
    s_load_dwordx4 s[4:7], s[0:1], 96
    v_lshrrev_b32 v2, 6, v0
    v_and_b32 v1, 63, v0                      ; lane
    v_readfirstlane_b32 s33, v2
    s_cmp_lt_u32 s2, 32
    s_cbranch_scc1 L_{name}_stats
    """)
    gen_gemm(p, name, exp)
    p.stamp_flush(STAMP_OFF + 0x4000)
    p(f"s_branch {E}")
    p(f"L_{name}_stats:")
    gen_k2_stats(p, name, tail=("" if "nowarm" in exp else "warm"))
    p(f"""
    {E}:
    s_endpgm
    """)
    return kernel_text(name, p, vgpr=256, sgpr=96)

K23_LAUNCH = "grid=(256,1,1) block=(512,1,1) lds=163840"
if __name__ == "__main__":
    import sys
    s = f"; @launch kernel=k23_kernel {K23_LAUNCH}\n" + '.amdgcn_target "amdgcn-amd-amdhsa--gfx950"\n.text\n' + gen_k23(stamps=(len(sys.argv) > 2), exp=(sys.argv[2] if len(sys.argv) > 2 else ''))
    open(sys.argv[1], "w").write(s)
```

```python
from asmtool import *
from layout import *
from k1b import gen_conv, gen_spare_stats, gen_spare_cs, r4
from k2 import gen_k2_stats
from k23 import gen_gemm

KNAME = "sequential_preLN__ssm_conv_s4__glu_gated_glu__prompt_kernel"

def gen_kall(name=KNAME, stamps=False, exp=""):
    p = Prog(); p.stamps_on = stamps; p.exp = exp
    if 'cyc' in exp: p.stamp_op = 's_memtime'
    if 'wl' in exp: p.stamp_tid = 448
    lab = "kall"
    E = f"L_{lab}_end"
    p(f"""
    s_cmp_ge_u32 s2, 256
    s_cbranch_scc1 {E}
    """)
    p.stamp()
    p(f"""
    s_load_dwordx16 s[4:19], s[0:1], 0
    s_load_dwordx2 s[20:21], s[0:1], 64
    s_load_dwordx4 s[24:27], s[0:1], 112
    s_load_dwordx4 s[28:31], s[0:1], 80
    v_lshrrev_b32 v2, 6, v0
    v_and_b32 v1, 63, v0
    v_readfirstlane_b32 s33, v2
    s_cmp_lt_u32 s2, 32
    s_cbranch_scc1 L_{lab}_spare
    s_sub_u32 s3, s2, 32
    """)
    p.warm_w = True
    p.sent_h = "usesent" in exp
    coarse = stamps and "k1st" not in exp
    if coarse: p.stamps_on = False
    gen_conv(p, lab, hsc="sc1")
    if coarse: p.stamps_on = True
    p.stamp()
    p(f"""
    s_load_dwordx4 s[8:11], s[0:1], 80
    s_load_dwordx2 s[12:13], s[0:1], 120      ; ws
    s_load_dwordx4 s[4:7], s[0:1], 96
    """)
    if stamps and not coarse: p.stamps_on = False
    gen_gemm(p, lab + "g", exp, merged=True)
    if stamps:
        p.stamps_on = True
        p.stamp_flush(STAMP_OFF + 0x4000)
    p(f"s_branch {E}")
    p(f"L_{lab}_spare:")
    so = p.stamps_on; p.stamps_on = stamps and "spst" in exp
    gen_spare_stats(p, lab)
    p.stamp(5)
    gen_spare_cs(p, lab, sc1="sc1")
    p.stamp(6)
    if p.stamps_on:
        p.nstamp = 7
        p.stamp_flush(STAMP_OFF, ws="s[26:27]", tag="sp")
        p("s_mov_b64 exec, -1\nv_and_b32 v1, 63, v0")
    p.stamps_on = False
    p(f"""
    s_load_dwordx2 s[12:13], s[0:1], 120      ; ws
    s_load_dwordx4 s[4:7], s[0:1], 96
    s_barrier
    s_cmp_lg_u32 s33, 0
    s_cbranch_scc1 L_{lab}_sp2w
    v_mov_b32 v12, 0
    s_mov_b32 s58, 0
    L_{lab}_sp1p:
    global_load_dword v13, v12, s[24:25] offset:{128 if "s1tree" in exp else 0} sc1
    s_waitcnt vmcnt(0)
    v_readfirstlane_b32 s40, v13
    s_add_u32 s58, s58, 1
    s_cmp_ge_u32 s40, {1 if "s1tree" in exp else 32}
    s_cbranch_scc1 L_{lab}_sp1d
    s_cmp_ge_u32 s58, 0x40000
    s_cbranch_scc1 L_{lab}_sp1d
    s_sleep 8
    s_branch L_{lab}_sp1p
    L_{lab}_sp1d:
    s_waitcnt lgkmcnt(0)

        s_and_b32 s40, s2, 7
        s_lshl_b32 s40, s40, 7
        s_add_u32 s41, s40, {S2A_OFF}
        v_mov_b32 v12, s41
        v_mov_b32 v13, 1
        s_mov_b64 s[56:57], exec
        s_mov_b64 exec, 1
        global_atomic_add v14, v12, v13, s[12:13] sc0 sc1
        s_waitcnt vmcnt(0)
        v_readfirstlane_b32 s41, v14
        s_mov_b64 exec, s[56:57]
        s_cmp_lg_u32 s41, 31
        s_cbranch_scc1 L_{lab}_sp2nl
        v_lshlrev_b32 v12, 7, v1
        v_add_u32 v12, {S2T_OFF}, v12
        s_mov_b64 exec, 0xff
        global_atomic_add v12, v13, s[12:13] sc1
        s_mov_b64 exec, s[56:57]
        L_{lab}_sp2nl:
        s_add_u32 s41, s40, {S2T_OFF}
        v_mov_b32 v12, s41
        s_mov_b32 s58, 0
        L_{lab}_sp2p:
        global_load_dword v13, v12, s[12:13] sc1
        s_waitcnt vmcnt(0)
        v_readfirstlane_b32 s41, v13
        s_add_u32 s58, s58, 1
        s_cmp_ge_u32 s41, 8
        s_cbranch_scc1 L_{lab}_sp2w
        s_cmp_ge_u32 s58, 0x40000
        s_cbranch_scc1 L_{lab}_sp2w
        s_sleep 8
        s_branch L_{lab}_sp2p
    L_{lab}_sp2w:
    s_waitcnt lgkmcnt(0)
    s_barrier
    """)
    gen_k2_stats(p, lab, tail=("" if "nowarm_" in exp + "_" else "warm"), sc="sc1")
    p.stamps_on = so
    p(f"""
    {E}:
    s_endpgm
    """)
    return kernel_text(name, p, vgpr=256, sgpr=100)

KALL_LAUNCH = "grid=(256,1,1) block=(512,1,1) lds=163840"
```

```python
from asmtool import *
from layout import *
import struct

def r4(b): return f"v[{b}:{b+3}]"
def r2(b): return f"v[{b}:{b+1}]"
def fbits(x): return "0x%08x" % struct.unpack("<I", struct.pack("<f", x))[0]

WREG = 53 * 528
KCS = 4160
KCC = 2 * WREG
TB = 4 * WREG
UL0 = TB + 12288
XL0 = UL0 + 2 * 4608
LDS_K1 = XL0 + 2 * 4096
EX = 4 * KCS
FL = LDS_K1

def cmul_multi(p, items):
    for d, x, y in items: p(f"v_pk_mul_f32 {r2(d)}, {r2(x)}, {r2(y)} op_sel_hi:[1,0]")
    for d, x, y in items: p(f"v_pk_fma_f32 {r2(d)}, {r2(x)}, {r2(y)}, {r2(d)} op_sel:[1,1,0] op_sel_hi:[0,1,1] neg_lo:[1,0,0]")

def gen_spare_stats(p, name):
    p(f"""
    v_lshrrev_b32 v2, 3, v1                   ; lane>>3
    s_lshl_b32 s34, s2, 6
    s_lshl_b32 s35, s33, 3
    s_add_u32 s34, s34, s35                   ; 64b + 8w
    v_add_u32 v2, s34, v2                     ; row
    s_movk_i32 s35, 896
    v_mul_lo_u32 v3, v2, s35
    v_and_b32 v4, 7, v1
    v_lshl_add_u32 v3, v4, 4, v3
    s_waitcnt lgkmcnt(0)
    """)
    for i in range(7):
        p(f"global_load_dwordx4 {r4(32 + 4*i)}, v3, s[4:5] offset:{128*i}")
    if "notouch" not in getattr(p, "exp", ""):
        p(f"""
        v_mov_b32 v24, {TOUCH_OFF}
        v_mov_b32 v25, 64
        global_load_dword v26, v24, s[26:27]
        global_load_dword v27, v25, s[24:25]
        """)
    p(f"""
    s_mov_b32 s44, 0x3f803f80
    v_mov_b32 v10, 0
    v_mov_b32 v11, 0
    v_mov_b32 v14, 0
    v_mov_b32 v15, 0
    s_lshl_b32 s40, s2, 9
    s_add_u32 s40, s40, {ST2_OFF}
    v_lshl_add_u32 v20, v1, 3, s40
    v_mov_b32 v18, -1
    v_mov_b32 v19, -1
    v_lshlrev_b32 v21, 7, v1
    v_add_u32 v21, {CNT_OFF}, v21
    v_mov_b32 v22, 0
    s_mov_b64 s[46:47], exec
    s_cmp_lg_u32 s33, 1
    s_cbranch_scc1 L_{name}_noinit
    global_store_dwordx2 v20, v[18:19], s[26:27] sc1
    s_cmp_lg_u32 s2, 0
    s_cbranch_scc1 L_{name}_noinit
    s_mov_b32 exec_hi, 0
    global_store_dword v21, v22, s[26:27] sc1
    s_mov_b64 exec, s[46:47]
    L_{name}_noinit:
    """)
    for i in range(7):
        p(f"s_waitcnt vmcnt({6 - i})" if False else "")
    p.stamp(1)
    ntouch = 0 if "notouch" in getattr(p, "exp", "") else 2
    for i in range(7):
        p(f"s_waitcnt vmcnt({6 - i + ntouch})")
        if i == 6: p.stamp(2)
        for j in range(4):
            v = 32 + 4*i + j
            if j & 1:
                p(f"v_dot2_f32_bf16 v14, v{v}, s44, v14")
                p(f"v_dot2_f32_bf16 v15, v{v}, v{v}, v15")
            else:
                p(f"v_dot2_f32_bf16 v10, v{v}, s44, v10")
                p(f"v_dot2_f32_bf16 v11, v{v}, v{v}, v11")
    p("v_add_f32 v10, v10, v14\nv_add_f32 v11, v11, v15")
    for dpp in ("quad_perm:[1,0,3,2]", "quad_perm:[2,3,0,1]", "row_half_mirror"):
        for r in (10, 11):
            p(f"v_add_f32_dpp v{r}, v{r}, v{r} {dpp} row_mask:0xf bank_mask:0xf")
    p(f"""
    s_mov_b32 s40, 0x3b124925                 ; 1/448
    s_mov_b32 s41, 0x3727c5ac                 ; 1e-5
    v_mul_f32 v10, s40, v10
    v_mul_f32 v11, s40, v11
    v_fma_f32 v11, -v10, v10, v11
    v_max_f32 v11, 0, v11
    v_cvt_pk_bf16_f32 v16, v11, v11
    v_lshlrev_b32 v16, 16, v16
    v_add_f32 v16, s41, v16
    v_cvt_pk_bf16_f32 v16, v16, v16
    v_lshlrev_b32 v16, 16, v16
    v_sqrt_f32 v16, v16
    v_cvt_pk_bf16_f32 v16, v10, v16
    v_and_b32 v17, 0xffff0000, v16
    v_lshlrev_b32 v16, 16, v16                ; mean
    v_rcp_f32 v17, v17                        ; 1 / std
    v_lshlrev_b32 v2, 3, v2
    v_add_u32 v2, {STATS_OFF}, v2
    s_mov_b32 s42, 0x01010101
    s_mov_b32 s43, 0x01010101
    s_mov_b64 exec, s[42:43]
    global_store_dwordx2 v2, v[16:17], s[26:27] sc1
    s_mov_b64 exec, s[46:47]
    """)
    p.stamp(3)
    p(f"""
    s_waitcnt vmcnt(0)
    s_barrier
    """)
    p.stamp(4)
    p(f"""
    s_cmp_lg_u32 s33, 0
    s_cbranch_scc1 L_{name}_nosig
    v_mov_b32 v4, 0
    v_mov_b32 v5, 1
    s_mov_b64 exec, 1
    """)
    if "s1tree" in getattr(p, "exp", ""):
        p(f"""
        global_atomic_add v6, v4, v5, s[24:25] sc0 sc1
        s_waitcnt vmcnt(0)
        v_readfirstlane_b32 s40, v6
        s_cmp_lg_u32 s40, 31
        s_cbranch_scc1 L_{name}_notlast
        global_store_dword v4, v5, s[24:25] offset:128 sc1
        L_{name}_notlast:
        """)
    else:
        p("global_atomic_add v4, v5, s[24:25] sc1")
    p(f"""
    s_mov_b64 exec, s[46:47]
    L_{name}_nosig:
    """)

def gen_spare_cs(p, name, sc1=""):
    p(f"""
    s_movk_i32 s35, 4682
    v_mul_u32_u24 v6, s35, v0
    v_lshrrev_b32 v6, 16, v6                  ; rg (0..36)
    v_mul_u32_u24 v7, 14, v6
    v_sub_u32 v7, v0, v7                      ; u
    s_and_b32 s36, s2, 15
    s_mul_i32 s36, s36, 224
    s_movk_i32 s35, {14*3584 // 16}
    v_mul_u32_u24 v8, s35, v6
    v_lshlrev_b32 v8, 4, v8                   ; rg*14*3584
    v_lshl_add_u32 v8, v7, 4, v8
    v_add_u32 v8, s36, v8
    s_cmp_lt_u32 s2, 16
    s_cselect_b32 s36, s28, s30
    s_cselect_b32 s37, s29, s31
    s_mov_b32 s38, {W_BYTES}
    s_mov_b32 s39, 0x20000
    s_mov_b32 s40, 0
    """)
    for i in range(14):
        p(f"buffer_load_dwordx4 {r4(96 + 4*i)}, v8, s[36:39], 0 offen")
        if i < 13: p(f"v_add_u32 v8, 3584, v8")
    for r in range(8): p(f"v_mov_b32 v{32+r}, 0")
    p("s_mov_b32 s44, 0xffff0000")
    for i in range(14):
        p(f"s_waitcnt vmcnt({13 - i})")
        for j in range(4):
            v = 96 + 4*i + j
            t = 40 + 2*(j & 1)
            p(f"v_lshlrev_b32 v{t}, 16, v{v}\nv_and_b32 v{t+1}, s44, v{v}\nv_pk_add_f32 {r2(32+2*j)}, {r2(32+2*j)}, {r2(t)}")
    p(f"""
    s_movk_i32 s35, 448
    v_mul_u32_u24 v9, s35, v6
    v_lshl_add_u32 v9, v7, 5, v9
    v_mov_b32 v10, 448
    v_cmp_gt_u32 vcc, v10, v0
    s_and_saveexec_b64 s[42:43], vcc
    s_cbranch_execz L_{name}_csnw
    ds_write_b128 v9, v[32:35]
    ds_write_b128 v9, v[36:39] offset:16
    L_{name}_csnw:
    s_mov_b64 exec, s[42:43]
    s_waitcnt lgkmcnt(0)
    s_barrier
    v_mov_b32 v10, 112
    v_cmp_gt_u32 vcc, v10, v0
    s_and_saveexec_b64 s[42:43], vcc
    s_cbranch_execz L_{name}_csdone
    v_lshlrev_b32 v9, 2, v0
    """)
    for g in range(32): p(f"ds_read_b32 v{32+g}, v9 offset:{448*g}")
    p("s_waitcnt lgkmcnt(0)")
    for g in range(0, 32, 2): p(f"v_add_f32 v{32+g}, v{32+g}, v{33+g}")
    for g in range(2, 32, 2): p(f"v_add_f32 v32, v32, v{32+g}")
    p(f"""
    s_mul_i32 s40, s2, 448
    s_add_u32 s40, s40, {CS_OFF}
    v_add_u32 v9, s40, v9
    global_store_dword v9, v32, s[26:27] {sc1}
    L_{name}_csdone:
    s_mov_b64 exec, s[42:43]
    s_waitcnt vmcnt(0)
    """)

def gen_conv(p, name, hsc=""):
    exp = getattr(p, "exp", "")
    SLP = 2
    for tok in exp.split("_"):
        if tok.startswith("slp"): SLP = int(tok[3:])
    p(f"""
    s_and_b32 s34, s3, 7
    s_mul_i32 s34, s34, 56
    s_lshr_b32 s35, s3, 3
    s_lshl_b32 s35, s35, 1
    s_add_u32 s34, s34, s35                   ; d0
    s_bfe_u32 s35, s33, 0x10001               ; c  = (w>>1)&1
    s_and_b32 s36, s33, 1                     ; hf
    s_add_u32 s37, s34, s35                   ; d
    s_lshr_b32 s52, s33, 2                    ; role
    s_and_b32 s53, s33, 3                     ; sub
    s_lshl_b32 s38, s37, 9
    s_lshl_b32 s39, s36, 8
    s_add_u32 s38, s38, s39
    v_lshl_add_u32 v24, v1, 2, s38
    s_movk_i32 s39, 7168
    v_and_b32 v23, 255, v0
    v_mul_u32_u24 v25, s39, v23
    s_lshl_b32 s38, s34, 1
    s_add_u32 s39, s38, 3584
    v_add_u32 v25, s39, v25
    s_mul_i32 s42, s53, {WREG}
    v_lshl_add_u32 v26, v1, 3, s42
    s_waitcnt lgkmcnt(0)
    """)
    p.stamp()
    p(f"""
    s_load_dword s40, s[18:19], s38
    s_load_dword s41, s[20:21], s38
    s_cmp_lg_u32 s52, 0
    s_cbranch_scc1 L_{name}_noparam
    global_load_dword v10, v24, s[6:7]
    global_load_dword v11, v24, s[8:9]
    global_load_dword v12, v24, s[10:11]
    global_load_dword v13, v24, s[12:13]
    global_load_dword v14, v24, s[14:15]
    global_load_dword v15, v24, s[16:17]
    s_waitcnt vmcnt(0)
    L_{name}_noparam:
    v_mov_b32 v27, 0
    v_lshlrev_b32 v28, 2, v1
    v_add_u32 v28, {FL}, v28
    s_mov_b64 s[50:51], exec
    s_mov_b64 exec, 0xffff
    ds_write_b32 v28, v27
    s_mov_b64 exec, s[50:51]
    s_waitcnt lgkmcnt(0)
    s_barrier
    s_mov_b32 s46, 0xffff0000
    s_waitcnt lgkmcnt(0)
    s_cmp_eq_u32 s35, 0
    s_cselect_b32 s43, 16, 0
    s_lshl_b32 s41, s41, s43
    s_and_b32 s41, s41, 0xffff0000
    s_cmp_lg_u32 s52, 0
    s_cbranch_scc1 L_{name}_V
    s_lshl_b32 s40, s40, s43
    s_and_b32 s40, s40, 0xffff0000
    s_mov_b32 s44, 0x3fb8aa3b                 ; log2(e)
    s_mov_b32 s45, 0x3e22f983                 ; 1/(2 pi)
    v_mov_b32 v30, s40
    v_mul_f32 v30, s44, v30
    v_exp_f32 v30, v30
    v_cvt_pk_bf16_f32 v30, v30, v30
    v_and_b32 v30, s46, v30
    """)
    def fin_addr(q_add):
        p(f"""
        v_and_b32 v37, 15, v1
        v_lshlrev_b32 v37, 5, v37
        v_lshrrev_b32 v38, 4, v1
        v_lshl_add_u32 v37, v38, 3, v37
        s_lshl_b32 s44, s36, 2
        s_add_u32 s44, s44, {q_add}
        s_lshl_b32 s44, s44, 9                    ; q0 * 512 B
        v_add_u32 v37, s44, v37
        s_mul_i32 s42, s35, 4608
        s_add_u32 s42, s42, {UL0 + 512}
        v_add_u32 v32, s42, v37                   ; u address
        s_lshl_b32 s42, s35, 12
        s_add_u32 s42, s42, {XL0}
        v_add_u32 v33, s42, v37                   ; x address
        s_lshl_b32 s42, s37, 12
        s_add_u32 s42, s42, {HT_OFF}
        v_add_u32 v35, s42, v37
        v_mov_b32 v36, s41                        ; Dskip
        """)
    def fin_reads():
        p(f"""
        ds_read_b64 v[48:49], v32
        ds_read_b64 v[50:51], v32 offset:512
        ds_read_b64 v[52:53], v33
        ds_read_b64 v[54:55], v33 offset:512
        """)
    def fin_base():
        for j in range(2):
            u = 48 + 2*j; x = 52 + 2*j; b = 40 + 4*j
            p(f"""
            v_lshlrev_b32 v56, 16, v{u}
            v_and_b32 v57, s46, v{u}
            v_lshlrev_b32 v58, 16, v{u+1}
            v_and_b32 v59, s46, v{u+1}
            v_lshlrev_b32 v{b}, 16, v{x}
            v_and_b32 v{b+1}, s46, v{x}
            v_lshlrev_b32 v{b+2}, 16, v{x+1}
            v_and_b32 v{b+3}, s46, v{x+1}
            v_pk_fma_f32 {r2(b)}, v[56:57], v[36:37], {r2(b)} op_sel_hi:[1,0,1]
            v_pk_fma_f32 {r2(b+2)}, v[58:59], v[36:37], {r2(b+2)} op_sel_hi:[1,0,1]
            """)
    wr = [0]
    def put(row, src, neg):
        wp = 16 + 2*(wr[0] % 4); wr[0] += 1
        for k in range(2):
            s = src(k)
            p(f"v_cvt_pk_bf16_f32 v{wp+k}, v{s}, {'-' if neg else ''}v{s+1}")
        p(f"ds_write_b64 v26, {r2(wp)} offset:{row*528}")
    def unp(k, d, s):
        return f"v_lshlrev_b32 v{d}, 16, v{s}" if k == 0 else f"v_and_b32 v{d}, s46, v{s}"
    def expz(dst, Z, L, T):
        for k in range(2):
            t = T(k)
            if L == 1.0:
                p(f"v_exp_f32 v{t}, v{Z(k)}")
                p(f"v_fract_f32 v{t+1}, v{Z(k)+1}")
            else:
                p(f"v_pk_mul_f32 {r2(t)}, {r2(Z(k))}, {r2(28)} op_sel_hi:[1,0]")
        if L != 1.0:
            for k in range(2):
                t = T(k)
                p(f"v_exp_f32 v{t}, v{t}")
                p(f"v_fract_f32 v{t+1}, v{t+1}")
        for k in range(2):
            p(f"v_cos_f32 v{dst(k)}, v{T(k)+1}")
            p(f"v_sin_f32 v{dst(k)+1}, v{T(k)+1}")
        for k in range(2):
            p(f"v_pk_mul_f32 {r2(dst(k))}, {r2(dst(k))}, {r2(T(k))} op_sel_hi:[1,0]")
    names = ["Z", "CB", "E1", "E256", "E2", "E4", "Pa", "Pb", "T1", "T2", "T3", "Ta", "Tb", "R4", "Rt", "Tm",
             "E8", "E16", "Oa", "Ob", "Ea", "Eb"]
    def U(nm): return lambda k: 32 + 2*names.index(nm) + 44*k
    p("s_waitcnt vmcnt(0)")
    p.stamp()
    for k in range(2):
        Z, Pa, Pb = U("Z")(k), U("Pa")(k), U("Pb")(k)
        p(unp(k, Z, 10)); p(unp(k, Z+1, 11))
        p(unp(k, Pa, 12)); p(unp(k, Pa+1, 13))
        p(unp(k, Pb, 14)); p(unp(k, Pb+1, 15))
    for k in range(2):
        p(f"v_pk_mul_f32 {r2(U('Z')(k))}, {r2(U('Z')(k))}, v[30:31] op_sel_hi:[1,0]")
        p(f"v_pk_mul_f32 {r2(U('Pa')(k))}, {r2(U('Pa')(k))}, v[30:31] op_sel_hi:[1,0]")
    cmul_multi(p, [(U("CB")(k), U("Pb")(k), U("Pa")(k)) for k in range(2)])
    for k in range(2):
        p(f"v_mul_f32 v{U('Z')(k)}, s44, v{U('Z')(k)}")
        p(f"v_mul_f32 v{U('Z')(k)+1}, s45, v{U('Z')(k)+1}")
    p(f"v_mov_b32 v28, {fbits(8.0)}")
    expz(U("E8"), U("Z"), 8.0, U("Tm"))
    expz(U("E1"), U("Z"), 1.0, U("Tm"))
    p(f"v_mov_b32 v28, {fbits(256.0)}")
    expz(U("E256"), U("Z"), 256.0, U("Tm"))
    if 'fine' in exp: p.stamp(10)
    for k in range(2):
        p(f"v_mov_b32 v{U('Tm')(k)}, 1.0\nv_mov_b32 v{U('Tm')(k)+1}, 0")
    put(21, U("Tm"), False)
    put(22, U("E8"), False)
    put(0, U("CB"), True)
    def rnd(items, puts):
        cmul_multi(p, [(U(d)(k), U(x)(k), U(y)(k)) for (d, x, y) in items for k in range(2)])
        for row, nm in puts: put(row, U(nm), row < 21)
    rnd([("E16", "E8", "E8"), ("Pa", "CB", "E1"), ("T1", "CB", "E256"), ("E2", "E1", "E1")], [(23, "E16"), (1, "Pa"), (8, "T1")])
    urounds = [
        ([("Pb", "Pa", "E1"), ("T2", "T1", "E256"), ("E4", "E2", "E2")], [(2, "Pb"), (9, "T2")]),
        ([("Pa", "Pb", "E1"), ("T3", "T2", "E256"), ("Rt", "T1", "E2")], [(3, "Pa"), (10, "T3"), (16, "Rt")]),
        ([("Pb", "Pa", "E1"), ("Ta", "T3", "E256"), ("R4", "T1", "E4")], [(4, "Pb"), (11, "Ta"), (17, "R4")]),
        ([("Pa", "Pb", "E1"), ("Tb", "Ta", "E256"), ("Rt", "R4", "E2")], [(5, "Pa"), (12, "Tb"), (18, "Rt")]),
        ([("Pb", "Pa", "E1"), ("Ta", "Tb", "E256"), ("Rt", "T2", "E4")], [(6, "Pb"), (13, "Ta"), (19, "Rt")]),
        ([("Pa", "Pb", "E1"), ("Tb", "Ta", "E256"), ("Rt", "T3", "E4")], [(7, "Pa"), (14, "Tb"), (20, "Rt")]),
        ([("Ta", "Tb", "E256")], [(15, "Ta")]),
    ]
    o, e = "E8", "E16"
    no, ne = "Oa", "Ea"
    for n, j in enumerate(range(3, 32, 2)):
        items = [(no, o, "E16")]; puts = [(21 + j, no)]
        if j + 1 < 32: items.append((ne, e, "E16")); puts.append((21 + j + 1, ne))
        if n < len(urounds):
            items = items + urounds[n][0]; puts = puts + urounds[n][1]
        rnd(items, puts)
        o, e = no, ne
        no = "Ob" if no == "Oa" else "Oa"
        ne = "Eb" if ne == "Ea" else "Ea"
    if 'fine' in exp: p.stamp(11)
    p(f"""
    v_and_b32 v27, 31, v1
    v_min_u32 v28, 20, v27
    s_movk_i32 s43, 528
    v_mul_u32_u24 v28, s43, v28
    v_mul_u32_u24 v27, s43, v27
    v_lshrrev_b32 v29, 5, v1
    v_lshlrev_b32 v29, 4, v29                 ; kk*16
    v_add3_u32 v28, v28, v29, s42
    s_add_u32 s43, s42, {21*528}
    v_add3_u32 v27, v27, v29, s43
    s_waitcnt lgkmcnt(0)
    """)
    p.stamp()
    DEPTH = 6
    def kr(ks):
        b = 96 + 8*(ks % 8)
        p(f"ds_read_b128 {r4(b)}, v28 offset:{32*ks}")
        p(f"ds_read_b128 {r4(b+4)}, v27 offset:{32*ks}")
    for ks in range(DEPTH): kr(ks)
    p(f"""
    v_lshrrev_b32 v29, 5, v1
    v_lshlrev_b32 v29, 9, v29                 ; half*4*128
    v_and_b32 v24, 31, v1
    v_lshl_add_u32 v29, v24, 2, v29
    s_mul_i32 s42, s53, 3072
    s_add_u32 s42, s42, {TB}
    v_add_u32 v29, s42, v29
    """)
    for ks in range(16):
        outstanding_after = 2 * (min(ks + DEPTH, 16) - (ks + 1))
        p(f"s_waitcnt lgkmcnt({outstanding_after})")
        b = 96 + 8*(ks % 8)
        p(f"v_mfma_f32_32x32x16_bf16 v[160:175], {r4(b)}, {r4(b+4)}, " + ("0" if ks == 0 else "v[160:175]"))
        if ks + DEPTH < 16: kr(ks + DEPTH)
    for r in range(12):
        p(f"ds_write_b32 v29, v{160+r} offset:{((r & 3) + 8*(r >> 2))*128}")
    p(f"""
    s_mul_i32 s42, s35, 6144
    s_add_u32 s42, s42, {TB}
    v_lshl_add_u32 v26, v1, 2, s42
    s_lshl_b32 s54, s53, 2
    s_add_u32 s54, s54, {FL + 0}
    s_xor_b32 s55, s54, 4
    v_mov_b32 v22, s54
    v_mov_b32 v23, 1
    v_mov_b32 v21, s55
    s_waitcnt lgkmcnt(0)
    ds_write_b32 v22, v23
    s_mov_b32 s56, 0
    L_{name}_psa:
    ds_read_b32 v20, v21
    s_waitcnt lgkmcnt(0)
    v_readfirstlane_b32 s55, v20
    s_add_u32 s56, s56, 1
    s_cmp_lg_u32 s55, 0
    s_cbranch_scc1 L_{name}_pda
    s_cmp_lt_u32 s56, 0x400000
    s_cbranch_scc1 L_{name}_psa
    L_{name}_pda:
    """)
    p.stamp()
    p(f"""
    s_cmp_lg_u32 s36, 0
    s_cbranch_scc1 L_{name}_g1
    """)
    seg1 = [256, 256, 512, 544, 544, 544, 576, 257]
    p("v_cmp_gt_u32 vcc, 32, v1")
    for e in range(8):
        p(f"v_mov_b32 v{40+e}, {(seg1[e]-32)*4}")
        p(f"v_mov_b32 v48, {32*e*4}")
        p(f"v_cndmask_b32 v{40+e}, v{40+e}, v48, vcc")
        p(f"v_add_u32 v{40+e}, v{40+e}, v26")
    for e in range(8):
        p(f"ds_read2st64_b32 {r2(48+2*e)}, v{40+e} offset0:0 offset1:12")
    p(f"v_add_u32 v32, {288*4}, v26\nv_add_u32 v33, {608*4}, v26\nv_add_u32 v34, {289*4}, v26")
    for i in range(3):
        p(f"ds_read2st64_b32 {r2(64+2*i)}, v{32+i} offset0:0 offset1:12")
    p("s_waitcnt lgkmcnt(0)")
    for e in range(8): p(f"v_add_f32 v{48+2*e}, v{48+2*e}, v{49+2*e}")
    for i in range(3): p(f"v_add_f32 v{64+2*i}, v{64+2*i}, v{65+2*i}")
    for j in range(4):
        p(f"v_cvt_pk_bf16_f32 v{96+j}, v{48+2*(7-2*j)}, v{48+2*(6-2*j)}")
    p(f"""
    v_cvt_pk_bf16_f32 v100, v68, v68
    v_cvt_pk_bf16_f32 v101, v66, v66          ; (K5,K4) = (Q,Q)
    v_cvt_pk_bf16_f32 v102, v66, v64          ; (K3,K2) = (Q,G)
    v_cvt_pk_bf16_f32 v103, v64, v64          ; (K1,K0) = (G,G)
    s_branch L_{name}_g2
    L_{name}_g1:
    """)
    for it in range(2):
        p(f"v_add_u32 v{40+it}, {(352+64*it)*4}, v26")
        p(f"v_add_u32 v{42+it}, {(353+64*it)*4}, v26")
    for it in range(2):
        p(f"ds_read2st64_b32 {r2(48+4*it)}, v{40+it} offset0:0 offset1:12")
        p(f"ds_read2st64_b32 {r2(50+4*it)}, v{42+it} offset0:0 offset1:12")
    p(f"""
    v_and_b32 v44, 1, v1
    v_cmp_eq_u32 vcc, 1, v44
    v_lshrrev_b32 v45, 1, v1
    s_movk_i32 s43, {KCS}
    v_mul_u32_u24 v45, s43, v45
    v_lshl_add_u32 v45, v44, 4, v45
    s_mul_i32 s42, s35, {KCC}
    s_add_u32 s42, s42, {256*16}
    v_add_u32 v45, s42, v45
    v_mov_b32 v60, 0
    v_mov_b32 v61, 0
    v_mov_b32 v62, 0
    v_mov_b32 v63, 0
    s_mov_b64 s[50:51], exec
    s_mov_b64 exec, 0xff
    ds_write_b128 v45, v[60:63]
    s_mov_b64 exec, s[50:51]
    s_waitcnt lgkmcnt(0)
    """)
    for it in range(2):
        G, Gn = 48 + 4*it, 50 + 4*it
        p(f"""
        v_add_f32 v{G}, v{G}, v{G+1}
        v_add_f32 v{Gn}, v{Gn}, v{Gn+1}
        v_cndmask_b32 v46, v{G}, v{Gn}, vcc
        v_cvt_pk_bf16_f32 v{96+4*it}, v{Gn}, v{Gn}       ; (K7,K6)
        v_cvt_pk_bf16_f32 v{97+4*it}, v{Gn}, v46         ; (K5,K4)
        v_cvt_pk_bf16_f32 v{98+4*it}, v{G}, v{G}         ; (K3,K2)
        v_cvt_pk_bf16_f32 v{99+4*it}, v{G}, v{G}         ; (K1,K0)
        """)
    p(f"""
    L_{name}_g2:
    s_mul_i32 s42, s35, {KCC}
    s_lshl_b32 s43, s36, 11                   ; 128*hf*16
    s_sub_u32 s42, s42, s43
    s_add_u32 s42, s42, {255*16}
    v_lshlrev_b32 v27, 4, v1
    v_sub_u32 v27, s42, v27                   ; it = 0
    v_subrev_u32 v28, 1024, v27               ; it = 1
    ds_write_b128 v27, v[96:99]
    ds_write_b128 v28, v[100:103]
    s_lshl_b32 s54, s53, 2
    s_add_u32 s54, s54, {FL + 16}
    s_xor_b32 s55, s54, 4
    v_mov_b32 v22, s54
    v_mov_b32 v23, 1
    v_mov_b32 v21, s55
    s_waitcnt lgkmcnt(0)
    ds_write_b32 v22, v23
    s_mov_b32 s56, 0
    L_{name}_psb:
    ds_read_b32 v20, v21
    s_waitcnt lgkmcnt(0)
    v_readfirstlane_b32 s55, v20
    s_add_u32 s56, s56, 1
    s_cmp_lg_u32 s55, 0
    s_cbranch_scc1 L_{name}_pdb
    s_cmp_lt_u32 s56, 0x400000
    s_cbranch_scc1 L_{name}_psb
    L_{name}_pdb:
    ds_read_b64 v[104:105], v27 offset:16
    ds_read_b64 v[108:109], v28 offset:16
    """)
    p.stamp()
    p(f"""
    v_and_b32 v36, 3, v1                      ; rr & 3
    v_bfe_u32 v35, v1, 2, 1                   ; rr >> 2
    v_bfe_u32 v37, v1, 3, 1                   ; qq
    v_lshrrev_b32 v38, 4, v1                  ; kg
    v_sub_u32 v36, 3, v36
    s_movk_i32 s43, {KCS}
    v_mul_u32_u24 v36, s43, v36
    v_sub_u32 v39, v38, v37
    v_lshl_add_u32 v36, v39, 4, v36
    v_sub_u32 v35, 1, v35
    v_lshl_add_u32 v36, v35, 3, v36
    s_mul_i32 s42, s35, {KCC}
    s_add_u32 s42, s42, {16*253 - 3584}
    s_lshl_b32 s43, s36, 8                    ; 64 * 4 hf
    s_sub_u32 s42, s42, s43
    v_add_u32 v24, s42, v36
    v_and_b32 v36, 15, v1                     ; cc
    v_lshlrev_b32 v36, 5, v36
    v_lshl_add_u32 v36, v38, 4, v36
    s_mul_i32 s42, s35, 4608
    s_add_u32 s42, s42, {UL0 + 480}
    s_sub_u32 s42, s42, s43
    v_add_u32 v25, s42, v36
    """)
    for it in range(2):
        own = 96 + 4*it; nb = 104 + 4*it
        adr = 27 + it
        a = [own, own+1, own+2, own+3, nb, nb+1]
        Bb = 112 + 16*it; Ao = 117 + 16*it; Bo = 121 + 16*it
        p(f"s_waitcnt lgkmcnt({1 - it})")
        for i in range(4): p(f"v_alignbit_b32 v{Bb+i}, v{a[i+1]}, v{a[i]}, 16")
        for i in range(1, 5): p(f"v_mov_b32 v{Ao+i}, v{a[i]}")
        for i in range(1, 5): p(f"v_alignbit_b32 v{Bo+i}, v{a[i+1]}, v{a[i]}, 16")
        p(f"ds_write_b128 v{adr}, {r4(Bb)} offset:{1*KCS}")
        p(f"ds_write_b128 v{adr}, {r4(Ao+1)} offset:{2*KCS}")
        p(f"ds_write_b128 v{adr}, {r4(Bo+1)} offset:{3*KCS}")
    fin_addr(0)
    p(f"""
    s_waitcnt lgkmcnt(0)
    s_barrier                                 ; 3
    """)
    p.stamp()
    fin_reads()
    def FA(s, i): return 64 + 64*s + 4*i
    def FB(s, i): return 96 + 64*s + 4*i
    def ACC(q): return 192 + 4*q
    def frag_reads(s, areg, breg):
        o = []
        for i in range(8):
            o.append(f"ds_read_b64 {r2(FA(s, i))}, v{areg} offset:{(7-i)*512}")
            o.append(f"ds_read_b64 {r2(FA(s, i)+2)}, v{areg} offset:{(7-i)*512 + 8}")
            o.append(f"ds_read_b128 {r4(FB(s, i))}, v{breg} offset:{i*512}")
        return o
    pairs = []
    for s in range(8):
        for j in range(s + 1):
            if s + j <= 7:
                pairs.append((s, j))
                if j < s: pairs.append((j, s))
    for x in frag_reads(0, 24, 25): p(x)
    first = [True]*8
    for rho in range(4):
        s = rho & 1
        nxt = []
        if rho < 3:
            p(f"v_subrev_u32 v{28+2*(rho&1)}, {64*(rho+1)}, v24")
            p(f"v_subrev_u32 v{29+2*(rho&1)}, {64*(rho+1)}, v25")
            nxt = frag_reads(1 - s, 28 + 2*(rho & 1), 29 + 2*(rho & 1))
        ni = 0
        shell_done = -1
        pf_start = 12 if rho == 0 else 1
        for n, (i, j) in enumerate(pairs):
            sh = max(i, j)
            if rho == 0:
                if sh > shell_done and sh <= 3:
                    p(f"s_waitcnt lgkmcnt({min(15, 21 - 3*sh) if sh < 3 else 0})"); shell_done = sh
            elif n == 0:
                p("s_waitcnt lgkmcnt(0)")
            q = i + j
            c_in = "0" if first[q] else r4(ACC(q))
            first[q] = False
            p(f"v_mfma_f32_16x16x32_bf16 {r4(ACC(q))}, {r4(FA(s, i))}, {r4(FB(s, j))}, {c_in}")
            if n >= pf_start and ni < len(nxt): p(nxt[ni]); ni += 1
        assert ni == len(nxt), (rho, ni)
    p.stamp()
    fin_base()
    p(f"""
    s_lshl_b32 s42, s53, 13
    s_add_u32 s42, s42, {EX}
    v_lshl_add_u32 v28, v1, 4, s42
    s_cmp_lg_u32 s36, 0
    s_cbranch_scc1 L_{name}_x1
    """)
    for q in range(2, 8): p(f"ds_write_b128 v28, {r4(ACC(q))} offset:{1024*q}")
    for r in range(8): p(f"v_mov_b32 v{64+r}, v{ACC(0)+r}")
    p(f"s_branch L_{name}_x2\nL_{name}_x1:")
    for q in (0, 1, 2, 3, 6, 7): p(f"ds_write_b128 v28, {r4(ACC(q))} offset:{1024*q}")
    for r in range(8): p(f"v_mov_b32 v{64+r}, v{ACC(4)+r}")
    p(f"""
    L_{name}_x2:
    s_xor_b32 s42, s53, 1
    s_lshl_b32 s42, s42, 13
    s_lshl_b32 s43, s36, 12
    s_add_u32 s42, s42, s43
    s_add_u32 s42, s42, {EX}
    v_lshl_add_u32 v29, v1, 4, s42
    s_waitcnt lgkmcnt(0)
    s_barrier                                 ; 4
    ds_read_b128 v[72:75], v29
    ds_read_b128 v[76:79], v29 offset:1024
    s_waitcnt lgkmcnt(0)
    """)
    for q in range(4): p(f"v_pk_add_f32 {r2(64+2*q)}, {r2(64+2*q)}, {r2(72+2*q)}")
    p(f"s_branch L_{name}_fin")
    p(f"L_{name}_V:")
    if "notouch" not in exp:
        p(f"""
        v_mov_b32 v26, {TOUCH_OFF}
        global_load_dword v28, v26, s[26:27]
        """)
    for i in range(8):
        p(f"global_load_dword v{2+i}, v25, s[4:5] offset:{(i-4)*896}" + (" sc1" if "gsc1" in exp else " nt" if "gnt" in exp else ""))
    p.stamp(2)
    p(f"""
    v_mov_b32 v31, 0
    s_mov_b32 s47, 0
    v_mov_b32 v26, {FL + 32}
    v_and_b32 v25, 255, v0
    v_lshlrev_b32 v25, 6, v25
    v_add_u32 v25, {STATS_OFF}, v25
    v_and_b32 v24, 255, v0
    v_lshlrev_b32 v24, 4, v24                 ; tid'*16
    v_add_u32 v24, {UL0 + 512}, v24
    s_waitcnt vmcnt(0)
    s_cmp_lg_u32 s33, 4
    s_cbranch_scc1 L_{name}_lpoll
    L_{name}_poll:
    global_load_dword v27, v31, s[24:25] offset:{128 if "s1tree" in exp else 0} sc1
    s_waitcnt vmcnt(0)
    v_readfirstlane_b32 s48, v27
    s_add_u32 s47, s47, 1
    s_cmp_ge_u32 s48, {1 if "s1tree" in exp else 32}
    s_cbranch_scc1 L_{name}_seen
    s_cmp_ge_u32 s47, 0x40000
    s_cbranch_scc1 L_{name}_seen
    s_sleep {SLP}
    s_branch L_{name}_poll
    L_{name}_seen:
    v_mov_b32 v27, 1
    ds_write_b32 v26, v27
    s_branch L_{name}_go
    L_{name}_lpoll:
    ds_read_b32 v27, v26
    s_waitcnt lgkmcnt(0)
    v_readfirstlane_b32 s48, v27
    s_add_u32 s47, s47, 1
    s_cmp_lg_u32 s48, 0
    s_cbranch_scc1 L_{name}_go
    s_cmp_ge_u32 s47, 0x400000
    s_cbranch_scc1 L_{name}_go
    s_sleep 1
    s_branch L_{name}_lpoll
    L_{name}_go:
    """)
    p.stamp(3)
    p(f"""
    global_load_dwordx4 v[32:35], v25, s[26:27] sc1
    global_load_dwordx4 v[36:39], v25, s[26:27] offset:16 sc1
    global_load_dwordx4 v[40:43], v25, s[26:27] offset:32 sc1
    global_load_dwordx4 v[44:47], v25, s[26:27] offset:48 sc1
    s_mov_b32 s48, 0x05040100
    s_mov_b32 s49, 0x07060302
    """)
    for j in range(4):
        p(f"v_perm_b32 v{72+j}, v{3+2*j}, v{2+2*j}, s48")
        p(f"v_perm_b32 v{76+j}, v{3+2*j}, v{2+2*j}, s49")
    p(f"""
    ds_write_b128 v24, v[72:75] offset:{XL0 - UL0 - 512}
    ds_write_b128 v24, v[76:79] offset:{XL0 + 4096 - UL0 - 512}
    """)
    for i in range(8):
        p(f"v_lshlrev_b32 v{48+2*i}, 16, v{2+i}")
        p(f"v_and_b32 v{49+2*i}, s46, v{2+i}")
    p.stamp(4)
    p.stamp(5)
    p("s_waitcnt vmcnt(0)")
    p.stamp(6)
    for i in range(8):
        p(f"v_pk_add_f32 {r2(48+2*i)}, {r2(48+2*i)}, {r2(32+2*i)} op_sel_hi:[1,0] neg_lo:[0,1] neg_hi:[0,1]")
    for i in range(8):
        p(f"v_cvt_pk_bf16_f32 v{2+i}, v{48+2*i}, v{49+2*i}")
    for i in range(8):
        p(f"v_lshlrev_b32 v{48+2*i}, 16, v{2+i}")
        p(f"v_and_b32 v{49+2*i}, s46, v{2+i}")
    for i in range(8):
        p(f"v_pk_mul_f32 {r2(48+2*i)}, {r2(48+2*i)}, {r2(32+2*i)} op_sel:[0,1] op_sel_hi:[1,1]")
    for j in range(4):
        p(f"v_cvt_pk_bf16_f32 v{64+j}, v{48+4*j}, v{50+4*j}")
        p(f"v_cvt_pk_bf16_f32 v{68+j}, v{49+4*j}, v{51+4*j}")
    p(f"""
    ds_write_b128 v24, v[64:67]
    ds_write_b128 v24, v[68:71] offset:4608
    s_cmp_lg_u32 s33, 4
    s_cbranch_scc1 L_{name}_nopad
    v_mov_b32 v60, 0
    v_mov_b32 v61, 0
    v_mov_b32 v62, 0
    v_mov_b32 v63, 0
    v_lshrrev_b32 v34, 5, v1
    s_movk_i32 s43, 4608
    v_mul_u32_u24 v34, s43, v34
    v_and_b32 v35, 31, v1
    v_lshl_add_u32 v34, v35, 4, v34
    v_add_u32 v34, {UL0}, v34
    ds_write_b128 v34, v[60:63]
    L_{name}_nopad:
    """)
    fin_addr(2)
    p("s_waitcnt lgkmcnt(0)")
    p.stamp(7)
    p(f"""
    s_barrier                                 ; 3
    """)
    p(f"""
    s_lshl_b32 s42, s35, 14                   ; c * 16384
    s_lshl_b32 s43, s36, 12                   ; 4hf * 1024
    s_add_u32 s42, s42, s43
    s_add_u32 s42, s42, {EX + 2048}
    v_lshl_add_u32 v29, v1, 4, s42
    """)
    if getattr(p, "warm_w", False):
        p(f"""
        s_and_b32 s54, s3, 7
        s_lshr_b32 s54, s54, 2
        s_mul_i32 s54, s54, 7
        s_lshr_b32 s55, s3, 5
        s_add_u32 s54, s54, s55                   ; ct
        v_lshrrev_b32 v34, 4, v1
        s_lshl_b32 s55, s53, 2
        v_add_u32 v34, s55, v34
        s_movk_i32 s55, 3584
        v_mul_lo_u32 v34, v34, s55
        v_and_b32 v39, 15, v1
        v_lshl_add_u32 v34, v39, 4, v34
        s_lshl_b32 s54, s54, 8
        v_add_u32 v34, s54, v34
        """)
        NW = 10
        for tok in exp.split("_"):
            if tok.startswith("nw"): NW = int(tok[2:])
        if getattr(p, "sent_h", False):
            p(f"""
            s_and_b32 s55, s3, 3
            s_lshl_b32 s55, s55, 2
            s_bfe_u32 s56, s3, 0x20003
            s_add_u32 s55, s55, s56                   ; rt
            s_mul_i32 s55, s55, {8*56}
            s_lshr_b32 s56, s54, 8                    ; ct
            s_lshl_b32 s56, s56, 2
            s_add_u32 s55, s55, s56
            s_add_u32 s55, s55, s53
            s_lshl_b32 s55, s55, 10
            s_add_u32 s55, s55, {HF_OFF}
            v_lshl_add_u32 v60, v1, 4, s55
            v_mov_b32 v56, -1
            v_mov_b32 v57, -1
            v_mov_b32 v58, -1
            v_mov_b32 v59, -1
            """)
            for j in range(8):
                p("global_store_dwordx4 v60, v[56:59], s[26:27] sc1")
                if j < 7: p(f"v_add_u32 v60, {56*1024}, v60")
        for i in range(NW):
            p(f"global_load_dwordx4 {r4(96 + 8*(i % 4))}, v34, s[28:29]")
            p(f"global_load_dwordx4 {r4(100 + 8*(i % 4))}, v34, s[30:31]")
            p(f"v_add_u32 v34, {16*3584}, v34")
    fin_reads()
    p("s_waitcnt lgkmcnt(0)")
    fin_base()
    p(f"""
    s_barrier                                 ; 4
    ds_read_b128 v[64:67], v29
    ds_read_b128 v[68:71], v29 offset:1024
    ds_read_b128 v[72:75], v29 offset:8192
    ds_read_b128 v[76:79], v29 offset:{8192 + 1024}
    s_waitcnt lgkmcnt(0)
    """)
    for q in range(4): p(f"v_pk_add_f32 {r2(64+2*q)}, {r2(64+2*q)}, {r2(72+2*q)}")
    p(f"L_{name}_fin:")
    for j in range(2):
        y = 64 + 4*j; b = 40 + 4*j
        p(f"""
        v_pk_add_f32 {r2(y)}, {r2(y)}, {r2(b)}
        v_pk_add_f32 {r2(y+2)}, {r2(y+2)}, {r2(b+2)}
        v_cvt_pk_bf16_f32 v{56+2*j}, v{y}, v{y+1}
        v_cvt_pk_bf16_f32 v{57+2*j}, v{y+2}, v{y+3}
        global_store_dwordx2 v35, {r2(56+2*j)}, s[26:27] offset:{512*j} {hsc}
        """)
    p.stamp()

def gen_k1b(name="k1_kernel", stamps=False, exp=""):
    p = Prog(); p.stamps_on = stamps
    if 'cyc' in exp: p.stamp_op = 's_memtime'
    if 'wl' in exp or 'w4' in exp: p.stamp_tid = (256 if "w4" in exp else 448)
    E = f"L_{name}_end"
    p.exp = exp
    p(f"""
    s_cmp_ge_u32 s2, 256
    s_cbranch_scc1 {E}
    """)
    p.stamp()
    p(f"""
    s_load_dwordx16 s[4:19], s[0:1], 0
    s_load_dwordx2 s[20:21], s[0:1], 64
    s_load_dwordx4 s[24:27], s[0:1], 112
    s_load_dwordx4 s[28:31], s[0:1], 80
    v_lshrrev_b32 v2, 6, v0
    v_and_b32 v1, 63, v0
    v_readfirstlane_b32 s33, v2
    s_cmp_lt_u32 s2, 32
    s_cbranch_scc1 L_{name}_spare
    s_sub_u32 s3, s2, 32
    """)
    p.warm_w = "nowarmw" not in exp
    gen_conv(p, name)
    if 'fine' in exp: p.nstamp = 12
    p.stamp_flush(STAMP_OFF, ws="s[26:27]")
    p(f"s_branch {E}")
    p(f"L_{name}_spare:")
    gen_spare_stats(p, name)
    gen_spare_cs(p, name)
    if stamps:
        p.stamp(5)
        p.nstamp = 6
        p.stamp_flush(STAMP_OFF, ws="s[26:27]", tag="b")
    p(f"""
    {E}:
    s_endpgm
    """)
    return kernel_text(name, p, vgpr=224, sgpr=96, denorm=(0 if 'ftz' in exp else 3))

K1B_LAUNCH = f"grid=(256,1,1) block=(512,1,1) lds={LDS_K1 + 64}"
if __name__ == "__main__":
    import sys
    s = f"; @launch kernel=k1_kernel {K1B_LAUNCH}\n" + '.amdgcn_target "amdgcn-amd-amdhsa--gfx950"\n.text\n' + gen_k1b(stamps=(len(sys.argv) > 2), exp=(sys.argv[2] if len(sys.argv) > 2 else ''))
    open(sys.argv[1], "w").write(s)
```

```python
from asmtool import *
from layout import *
from k2 import std_chain, gen_k2_stats, r4, r2

class VM:
    def __init__(self, p): self.p = p; self.ops = []
    def issue(self, tag, n=1): self.ops += [tag] * n
    def count_after(self, tags):
        last = max(i for i, t in enumerate(self.ops) if t in tags)
        return len(self.ops) - 1 - last
    def wait(self, *tags, extra=""):
        n = self.count_after(set(tags))
        assert n <= 63
        self.p(f"s_waitcnt vmcnt({n}){extra}")

def gen_gemm(p, name, exp="", merged=False):
    NSLOT = 6; SLOT = 24576; EBASE = NSLOT * SLOT
    def ACC(k, mt, nt): return 96 + (0 if k == "g" else 32) + 16*mt + 4*nt
    def SET(s, nm): return 32 + 32*s + {"G0": 0, "G1": 4, "U0": 8, "U1": 12, "X0": 16, "X1": 20, "X2": 24, "X3": 28}[nm]
    E = f"L_{name}_end"
    XSC = "sc1" if (merged and "xplain" not in exp) else ""
    S2SLP = next((int(t[len("s2slp"):]) for t in exp.split("_") if t.startswith("s2slp") and t[len("s2slp"):].isdigit()), 1)
    S3SLP = next((int(t[len("s3slp"):]) for t in exp.split("_") if t.startswith("s3slp") and t[len("s3slp"):].isdigit()), 1)
    p(f"""
    s_sub_u32 s3, s2, 32
    s_and_b32 s34, s3, 7                      ; xcd
    s_lshr_b32 s35, s3, 3                     ; j
    s_and_b32 s36, s34, 3
    s_lshl_b32 s36, s36, 2
    s_and_b32 s37, s35, 3
    s_add_u32 s36, s36, s37                   ; rt
    s_lshr_b32 s59, s34, 2                    ; ch
    s_mul_i32 s37, s59, 7
    s_lshr_b32 s60, s35, 2                    ; dc (0..6)
    s_add_u32 s37, s37, s60                   ; ct
    s_and_b32 s38, s33, 3
    s_lshr_b32 s39, s33, 2                    ; th
    v_lshrrev_b32 v4, 4, v1                   ; l>>4
    s_lshr_b32 s40, s33, 1
    s_and_b32 s40, s40, 1
    s_lshl_b32 s40, s40, 2
    v_or_b32 v5, s40, v4
    v_lshlrev_b32 v5, 1, v5
    v_and_b32 v6, 15, v1
    v_xor_b32 v5, v5, v6                      ; usrc
    v_lshlrev_b32 v5, 4, v5                   ; usrc*16
    s_lshl_b32 s40, s33, 2
    v_add_u32 v4, s40, v4                     ; row_local
    v_lshlrev_b32 v2, 12, v4                  ; *4096
    s_lshl_b32 s40, s36, 8
    v_add3_u32 v2, v2, v5, s40                ; vX
    s_movk_i32 s41, 3584
    v_mul_lo_u32 v3, v4, s41
    s_lshl_b32 s40, s37, 8
    v_add3_u32 v3, v3, v5, s40                ; vW
    s_lshl_b32 s42, s33, 10
    s_mov_b32 s50, {32*4096}
    s_mov_b32 s51, {32*3584}
    s_mov_b32 s18, {HT_BYTES}
    s_mov_b32 s19, 0x20000
    s_mov_b32 s22, {W_BYTES}
    s_mov_b32 s23, 0x20000
    s_mov_b32 s26, {W_BYTES}
    s_mov_b32 s27, 0x20000
    v_lshrrev_b32 v17, 4, v1
    v_lshlrev_b32 v17, 4, v17
    s_lshl_b32 s40, s37, 9
    s_lshl_b32 s41, s38, 7
    s_add_u32 s40, s40, s41
    s_add_u32 s40, s40, {CS_OFF}
    v_add_u32 v17, s40, v17
    v_add_u32 v18, {1792*4}, v17
    v_lshrrev_b32 v10, 3, v1
    s_lshl_b32 s40, s38, 3
    v_add_u32 v10, s40, v10
    s_movk_i32 s41, 896
    v_mul_lo_u32 v10, v10, s41
    v_lshrrev_b32 v11, 4, v1
    v_lshlrev_b32 v11, 1, v11
    v_and_b32 v12, 7, v1
    v_xor_b32 v11, v11, v12
    v_lshlrev_b32 v11, 4, v11
    s_lshl_b32 s40, s60, 7
    v_add3_u32 v10, v10, v11, s40             ; vWd
    v_lshrrev_b32 v14, 4, v1                  ; kg
    v_bfe_u32 v11, v1, 2, 2                   ; rr
    v_lshl_add_u32 v12, v14, 3, v11
    v_lshlrev_b32 v12, 8, v12                 ; (8kg+rr)*256
    v_and_b32 v13, 3, v1
    v_lshl_add_u32 v12, v13, 3, v12           ; + 8cc
    v_and_b32 v14, 1, v14
    v_lshl_or_b32 v11, v14, 2, v11            ; f
    """)
    for i in range(2):
        p(f"""
        s_lshl_b32 s40, s38, 1
        s_add_u32 s40, s40, {i}
        v_xor_b32 v13, s40, v11
        v_lshl_add_u32 v{4+i}, v13, 5, v12
        """)
    for i in range(4):
        p(f"""
        s_lshl_b32 s40, s39, 2
        s_add_u32 s40, s40, {i}
        v_xor_b32 v13, s40, v11
        v_lshl_add_u32 v{6+i}, v13, 5, v12
        """)
    for i in range(6): p(f"v_add_u32 v{20+i}, {SLOT}, v{4+i}")
    p(f"""
    s_mov_b32 s30, {HF_BYTES}
    s_mov_b32 s31, 0x20000
    s_waitcnt lgkmcnt(0)
    """)
    early_w = merged and "lateW" not in exp
    if merged:
        p("s_waitcnt vmcnt(0)")
        if "s2" in exp: p.stamp(12)
        p("s_barrier")
        p(f"""
        s_cmp_lg_u32 s33, 0
        s_cbranch_scc1 L_{name}_s2na
        s_and_b32 s40, s2, 7
        s_lshl_b32 s40, s40, 7
        s_add_u32 s41, s40, {S2A_OFF}
        v_mov_b32 v12, s41
        v_mov_b32 v13, 1
        s_mov_b64 s[56:57], exec
        s_mov_b64 exec, 1
        global_atomic_add v14, v12, v13, s[12:13] sc0 sc1
        s_mov_b64 exec, s[56:57]
        L_{name}_s2na:
        """)
        def early_block():
            for c in range(3):
                p(f"""
                s_add_u32 m0, s42, {c*SLOT + 8192}
                s_nop 0
                buffer_load_dwordx4 v3, s[20:23], 0 offen lds
                s_add_u32 m0, s42, {c*SLOT + 16384}
                s_nop 0
                buffer_load_dwordx4 v3, s[24:27], 0 offen lds
                v_add_u32 v3, s51, v3
                """)
        if early_w:
            p(f"""
            s_mov_b32 s20, s8
            s_mov_b32 s21, s9
            s_mov_b32 s24, s10
            s_mov_b32 s25, s11
            s_cmp_eq_u32 s33, 0
            s_cbranch_scc1 L_{name}_s2ne
            """)
            early_block()
            p(f"L_{name}_s2ne:")
        if "s2" in exp: p.stamp(13)
        p(f"""
        s_cmp_lg_u32 s33, 0
        s_cbranch_scc1 L_{name}_s2w

        s_waitcnt vmcnt(0)
        v_readfirstlane_b32 s41, v14
        s_cmp_lg_u32 s41, 31
        s_cbranch_scc1 L_{name}_s2nl
        v_lshlrev_b32 v12, 7, v1
        v_add_u32 v12, {S2T_OFF}, v12
        s_mov_b64 exec, 0xff
        global_atomic_add v12, v13, s[12:13] sc1
        s_mov_b64 exec, s[56:57]
        L_{name}_s2nl:
        s_add_u32 s41, s40, {S2T_OFF}
        v_mov_b32 v12, s41
        s_mov_b32 s58, 0
        L_{name}_s2p:
        global_load_dword v13, v12, s[12:13] sc1
        s_waitcnt vmcnt(0)
        v_readfirstlane_b32 s41, v13
        s_add_u32 s58, s58, 1
        s_cmp_ge_u32 s41, 8
        s_cbranch_scc1 L_{name}_s2w
        s_cmp_ge_u32 s58, 0x40000
        s_cbranch_scc1 L_{name}_s2w
        {f"s_sleep {S2SLP}" if S2SLP else ""}
        s_branch L_{name}_s2p
        L_{name}_s2w:
        s_barrier
        """)
        if early_w:
            p(f"s_cmp_lg_u32 s33, 0\ns_cbranch_scc1 L_{name}_s2nf")
            early_block()
            p(f"L_{name}_s2nf:")
    p.stamp()
    p(f"""
    s_add_u32 s16, s12, {HT_OFF}
    s_addc_u32 s17, s13, 0
    s_mov_b32 s20, s8
    s_mov_b32 s21, s9
    s_mov_b32 s24, s10
    s_mov_b32 s25, s11
    """)
    def dma_parts(base):
        return [
            f"s_mov_b32 m0, {base}\ns_add_u32 s45, {base}, 8192\nbuffer_load_dwordx4 v2, s[16:19], 0 offen {XSC} lds",
            f"s_mov_b32 m0, s45\ns_add_u32 s45, {base}, 16384\nbuffer_load_dwordx4 v3, s[20:23], 0 offen lds\nv_add_u32 v2, s50, v2",
            f"s_mov_b32 m0, s45\ns_nop 0\nbuffer_load_dwordx4 v3, s[24:27], 0 offen lds\nv_add_u32 v3, s51, v3",
        ]
    PRE = NSLOT - 1
    PRE0 = 3
    for c in range(PRE0):
        if early_w:
            p(f"""
            s_add_u32 m0, s42, {c*SLOT}
            s_nop 0
            buffer_load_dwordx4 v2, s[16:19], 0 offen {XSC} lds
            v_add_u32 v2, s50, v2
            """)
        else:
            p(f"s_add_u32 s44, s42, {c*SLOT}")
            for d in dma_parts("s44"): p(d)
        if "pro" in exp and c == 0: p.stamp(13)
    if "pro" in exp: p.stamp(14)
    p(f"""
    s_add_u32 s28, s12, {HF_OFF}
    s_addc_u32 s29, s13, 0
    s_mov_b32 s8, s4
    s_mov_b32 s9, s5
    s_mov_b32 s10, {W_BYTES}
    s_mov_b32 s11, 0x20000
    s_mov_b32 s4, s6
    s_mov_b32 s5, s7
    s_mov_b32 s6, {X_BYTES}
    s_mov_b32 s7, 0x20000
    """)
    def rd(s, nm, h, abase=None):
        if abase is None: abase = 20 + 6*(1 - s)
        if nm[0] == "G": areg, sub = abase + int(nm[1]), 8192
        elif nm[0] == "U": areg, sub = abase + int(nm[1]), 16384
        else: areg, sub = abase + 2 + int(nm[1]), 0
        b = SET(s, nm) + 2*h
        return f"ds_read_b64_tr_b16 {r2(b)}, v{areg} offset:{sub + 1024*h}"
    def mf(s, k, mt, nt, zero=False):
        acc = ACC(k, mt, nt)
        a = SET(s, ("G" if k == "g" else "U") + str(mt)); b = SET(s, f"X{nt}")
        return f"v_mfma_f32_16x16x32_bf16 {r4(acc)}, {r4(a)}, {r4(b)}, " + ("0" if zero else r4(acc))
    RD_ORDER = ["G0", "X0", "U0", "X1", "G1", "U1", "X2", "X3"]
    MF_ORDER = [("g",0,0), ("u",0,0), ("g",0,1), ("u",0,1), ("g",1,0), ("g",1,1), ("u",1,0), ("u",1,1),
                ("g",0,2), ("u",0,2), ("g",1,2), ("u",1,2), ("g",0,3), ("u",0,3), ("g",1,3), ("u",1,3)]
    need_rd = {"G0": 1, "X0": 3, "U0": 5, "X1": 7, "G1": 9, "U1": 11, "X2": 13, "X3": 15}
    if "pro" in exp: p.stamp(15)
    p(f"""
    s_waitcnt vmcnt({(PRE0-1) if early_w else 3*(PRE0-1)})
    """)
    if "pro" in exp: p.stamp(12)
    p("s_barrier")
    p.stamp()
    for nm in RD_ORDER:
        for h in range(2): p(rd(0, nm, h, abase=4))
    def chunk(s, vmw, dp, last=False, static_c=None, hooks={}, zero=False, dpos=(2, 5, 8), va0=10):
        reads = [] if last else [rd(1 - s, nm, h) for nm in RD_ORDER for h in range(2)]
        done = -1
        other = 20 + 6*(1 - s)
        for i in range(16):
            k, mt, nt = MF_ORDER[i]
            need = max(need_rd[("G" if k == "g" else "U") + str(mt)], need_rd[f"X{nt}"])
            if need > done:
                allowed = (15 - need) + (0 if last else i)
                if not ("xnolgkm" in exp and static_c is None): p(f"s_waitcnt lgkmcnt({min(allowed, 15)})")
                done = need
            p(mf(s, k, mt, nt, zero))
            xp = (static_c is None)
            if i == 0:
                if not (xp and "xnodma" in exp): vmw()
                if not (xp and "xnobar" in exp): p("s_barrier")
            if not last and not (xp and "xnoread" in exp): p(reads[i])
            if i in dpos and not (xp and "xnodma" in exp): dp(dpos.index(i))
            if i in hooks: hooks[i]()
            if va0 <= i <= va0 + 5 and not last:
                if static_c is None:
                    if "xnovadd" not in exp: p(f"v_add_u32 v{other + i - va0}, s53, v{4 + i - va0}")
                elif static_c + 2 <= 13: p(f"v_add_u32 v{other + i - va0}, {((static_c + 2) % NSLOT)*SLOT}, v{4 + i - va0}")
            if i == min(15, max(dpos) + 1) and static_c is None:
                p(f"""
                s_add_u32 s54, s54, {SLOT}
                s_sub_u32 s55, s54, s42
                s_cmp_eq_u32 s55, {NSLOT*SLOT}
                s_cselect_b32 s54, s42, s54
                """)
        if static_c is None:
            p(f"""
            s_add_u32 s53, s53, {SLOT}
            s_cmp_eq_u32 s53, {NSLOT*SLOT}
            s_cselect_b32 s53, 0, s53
            """)
    VMS = []; cur_vm = [None]
    def kstep_soff(s): return s * 32 * 896
    def wd_piece(lds_base, s_th0, s_th1, tag):
        a, b = kstep_soff(s_th0), kstep_soff(s_th1)
        p(f"""
        s_mul_i32 s46, s39, {b - a}
        s_add_u32 m0, s42, {lds_base}
        s_add_u32 s46, s46, {a}
        buffer_load_dwordx4 v10, s[8:11], s46 offen lds
        """)
        cur_vm[0].issue(tag)
    stage = [(kq, n) for kq in range(4) for n in range(4)]
    def stage_ks(i): return 14*stage[i][0] + stage[i][1]
    def final_ks(L): return 14*(L // 10) + 4 + (L % 10)
    def g1_main(var):
        early = (var == 0)
        DP3 = (2, 5, 8) if early else (10, 12, 14)
        DP6 = (1, 3, 5, 7, 9, 11) if early else (3, 5, 7, 9, 11, 13)
        VA3 = 10 if early else 2
        VA6 = 10 if early else 10
        HK = 11 if early else 4
        for c in range(2):
            parts = dma_parts("s44")
            def dp(j, c=c, parts=parts):
                n = 3 + 2*c + j // 3
                if j % 3 == 0: p(f"s_add_u32 s44, s42, {(n % NSLOT)*SLOT}")
                p(parts[j % 3])
            chunk(c, (lambda c=c: p(f"s_waitcnt vmcnt({1 if (early_w and c == 0) else 3*(1 + c)})")), dp, static_c=c, zero=(c == 0), dpos=DP6, va0=VA6)
        if "g1st" in exp: p.stamp(12)
        p(f"""
        s_mov_b32 s48, 0                          ; iteration
        s_mov_b32 s53, {4*SLOT}
        s_add_u32 s54, s42, {1*SLOT}
        L_{name}_loop{var}:
        """)
        loop_dp = dma_parts("s54")
        def spread_chunk(s):
            reads = [rd(1 - s, nm, h) for nm in RD_ORDER for h in range(2)]
            other = 20 + 6*(1 - s)
            va = [f"v_add_u32 v{other + i}, s53, v{4 + i}" for i in range(6)]
            extra = {
                1: ["s_mov_b32 m0, s54"],
                2: [f"buffer_load_dwordx4 v2, s[16:19], 0 offen {XSC} lds"],
                3: ["s_add_u32 m0, s54, 8192", "v_add_u32 v2, s50, v2"],
                4: ["buffer_load_dwordx4 v3, s[20:23], 0 offen lds"],
                5: ["s_add_u32 m0, s54, 16384"],
                6: ["buffer_load_dwordx4 v3, s[24:27], 0 offen lds"],
                7: ["v_add_u32 v3, s51, v3", f"s_add_u32 s54, s54, {SLOT}"],
                8: ["s_sub_u32 s55, s54, s42"],
                9: [f"s_cmp_eq_u32 s55, {NSLOT*SLOT}", "s_cselect_b32 s54, s42, s54", va[0]],
                10: [va[1], va[2]],
                11: [va[3], va[4]],
                12: [va[5]],
                13: [f"s_add_u32 s53, s53, {SLOT}"],
                14: [f"s_cmp_eq_u32 s53, {NSLOT*SLOT}", "s_cselect_b32 s53, 0, s53"],
            }
            done = -1
            for i in range(16):
                k, mt, nt = MF_ORDER[i]
                need = max(need_rd[("G" if k == "g" else "U") + str(mt)], need_rd[f"X{nt}"])
                if need > done:
                    p(f"s_waitcnt lgkmcnt({min((15 - need) + i, 15)})")
                    done = need
                p(mf(s, k, mt, nt))
                if i == 0:
                    p(f"s_waitcnt vmcnt({3*(PRE-2)})"); p("s_barrier")
                p(reads[i])
                for x in extra.get(i, []): p(x)
        for s in range(2):
            if "nospread" not in exp: spread_chunk(s)
            else: chunk(s, lambda: p(f"s_waitcnt vmcnt({3*(PRE-2)})"), lambda j: p(loop_dp[j]), dpos=DP3, va0=VA3)
        p(f"""
        s_add_u32 s48, s48, 1
        s_cmp_lt_u32 s48, 3
        s_cbranch_scc1 L_{name}_loop{var}
        """)
        if "g1st" in exp: p.stamp(13)
        vm = VM(p); VMS.append(vm); cur_vm[0] = vm
        for c in range(13): vm.issue(f"c{c}", 3)
        for j in range(2):
            wd_piece(EBASE + 8192*j, stage_ks(2*j), stage_ks(2*j + 1), "E")
        def tail_dp(c):
            if c == 8:
                parts = dma_parts("s44")
                def f(j):
                    if j == 0: p(f"s_add_u32 s44, s42, {(13 % NSLOT)*SLOT}")
                    p(parts[j]); vm.issue("c13")
                return f
            slot = (c - 1) % NSLOT
            def f(j):
                b0 = 2*j
                if c == 9:   ks = (stage_ks(4 + b0), stage_ks(4 + b0 + 1))
                elif c == 10: ks = (stage_ks(10 + b0), stage_ks(10 + b0 + 1))
                else:        ks = (final_ks(6*slot + b0), final_ks(6*slot + b0 + 1))
                wd_piece(slot*SLOT + 8192*j, ks[0], ks[1], f"w{c}")
            return f
        def stats_addr():
            p(f"""
            v_and_b32 v11, 15, v1
            s_lshl_b32 s40, s36, 7
            s_lshl_b32 s41, s39, 6
            s_add_u32 s40, s40, s41
            v_add_u32 v11, s40, v11
            v_lshlrev_b32 v11, 3, v11
            v_add_u32 v11, {ST2_OFF}, v11
            """)
        def cs_loads():
            p(f"""
            global_load_dwordx4 v[160:163], v17, s[12:13] {XSC}
            global_load_dwordx4 v[164:167], v17, s[12:13] offset:64 {XSC}
            global_load_dwordx4 v[168:171], v18, s[12:13] {XSC}
            global_load_dwordx4 v[172:175], v18, s[12:13] offset:64 {XSC}
            """)
            vm.issue("cs", 4)
        def stats_loads():
            for nt in range(4):
                p(f"global_load_dwordx2 {r2(176+2*nt)}, v11, s[12:13] offset:{128*nt} sc1")
            vm.issue("st", 4)
        for c in range(8, 14):
            last = (c == 13)
            vmw = (lambda c=c: vm.wait(f"c{c+1}")) if c < 13 else (lambda: None)
            hooks = {}
            if c == 9: hooks = {HK: cs_loads}
            if c == 11: hooks = {HK: stats_addr}
            if c == 12: hooks = {HK: stats_loads}
            chunk(c & 1, vmw, tail_dp(c), last=last, static_c=c, hooks=hooks, dpos=DP3, va0=VA3)
            if "g1st" in exp and c == 10: p.stamp(14)

    if "noprio" not in exp:
        p(f"s_cmp_eq_u32 s39, {0 if 'prioL' in exp else 1}\ns_cbranch_scc0 L_{name}_np\ns_setprio 1\nL_{name}_np:")
    if "stag" not in exp:
        g1_main(0)
    else:
        p(f"s_cmp_lg_u32 s39, 0\ns_cbranch_scc1 L_{name}_g1b")
        g1_main(0)
        p(f"s_branch L_{name}_g1e\nL_{name}_g1b:")
        g1_main(1)
        p(f"L_{name}_g1e:")
    class MVM:
        def issue(self, tag, n=1):
            for v in VMS: v.issue(tag, n)
        def wait(self, *tags, extra=""):
            n = min(v.count_after(set(tags)) for v in VMS)
            p(f"s_waitcnt vmcnt({n}){extra}")
    vm = MVM(); cur_vm[0] = vm
    p.stamp()
    vm.wait("st", "cs")
    p(f"""
    s_mov_b32 s58, 0
    L_{name}_poll:
    v_max_u32 v184, v176, v177
    v_max3_u32 v184, v184, v178, v179
    v_max3_u32 v184, v184, v180, v181
    v_max3_u32 v184, v184, v182, v183
    v_cmp_eq_u32 vcc, -1, v184
    s_add_u32 s58, s58, 1
    s_cmp_ge_u32 s58, 0x40000
    s_cbranch_scc1 L_{name}_got
    s_cbranch_vccz L_{name}_got
    s_sleep 2
    global_load_dwordx2 v[176:177], v11, s[12:13] sc1
    global_load_dwordx2 v[178:179], v11, s[12:13] offset:128 sc1
    global_load_dwordx2 v[180:181], v11, s[12:13] offset:256 sc1
    global_load_dwordx2 v[182:183], v11, s[12:13] offset:384 sc1
    s_waitcnt vmcnt(0)
    s_branch L_{name}_poll
    L_{name}_got:
    s_mov_b32 s40, 0xbfb8aa3b                 ; -log2(e)
    """)
    for nt in range(4):
        m, r = 176 + 2*nt, 177 + 2*nt
        p(f"""
        v_mul_f32 v{184+2*nt}, s40, v{r}
        v_mul_f32 v{192+2*nt}, -v{r}, v{m}
        v_mul_f32 v{185+2*nt}, -v{184+2*nt}, v{m}
        """)
    p(f"""
    s_lshl_b32 s40, s36, 3
    s_lshl_b32 s41, s39, 2
    s_add_u32 s40, s40, s41
    s_mul_i32 s40, s40, 56
    s_lshl_b32 s41, s37, 2
    s_add_u32 s40, s40, s41
    s_add_u32 s40, s40, s38
    s_lshl_b32 s40, s40, 10
    v_lshl_add_u32 v11, v1, 4, s40
    s_mov_b32 s41, 0
    """)
    p.stamp()
    CSG = 160; CSU = 168
    for nt in range(4):
        ab, rb, st = 184 + 2*nt, 192 + 2*nt, 176 + 2*nt
        out = 200 + 4*nt
        for mt in range(2):
            g = ACC("g", mt, nt); u = ACC("u", mt, nt)
            for r in (0, 2):
                p(f"v_pk_mul_f32 {r2(g+r)}, {r2(g+r)}, {r2(ab)} op_sel_hi:[1,0]")
                p(f"v_pk_mul_f32 {r2(u+r)}, {r2(u+r)}, {r2(st)} op_sel:[0,1] op_sel_hi:[1,1]")
        for mt in range(2):
            g = ACC("g", mt, nt); u = ACC("u", mt, nt)
            for r in (0, 2):
                p(f"v_pk_fma_f32 {r2(g+r)}, {r2(CSG+4*mt+r)}, {r2(ab)}, {r2(g+r)} op_sel:[0,1,0] op_sel_hi:[1,1,1]")
                p(f"v_pk_fma_f32 {r2(u+r)}, {r2(CSU+4*mt+r)}, {r2(rb)}, {r2(u+r)} op_sel_hi:[1,0,1]")
        for mt in range(2):
            g = ACC("g", mt, nt)
            for r in range(4): p(f"v_exp_f32 v{g+r}, v{g+r}")
        for mt in range(2):
            g = ACC("g", mt, nt)
            for r in (0, 2): p(f"v_pk_add_f32 {r2(g+r)}, {r2(g+r)}, 1.0 op_sel_hi:[1,0]")
        for mt in range(2):
            g = ACC("g", mt, nt)
            for r in range(4): p(f"v_rcp_f32 v{g+r}, v{g+r}")
        for mt in range(2):
            g = ACC("g", mt, nt); u = ACC("u", mt, nt)
            for r in (0, 2): p(f"v_pk_mul_f32 {r2(u+r)}, {r2(u+r)}, {r2(g+r)}")
        for mt in range(2):
            u = ACC("u", mt, nt)
            p(f"v_cvt_pk_bf16_f32 v{out+2*mt}, v{u}, v{u+1}")
            p(f"v_cvt_pk_bf16_f32 v{out+2*mt+1}, v{u+2}, v{u+3}")
        p(f"buffer_store_dwordx4 {r4(out)}, v11, s[28:31], s41 offen sc1")
        vm.issue("hs")
        p(f"s_add_u32 s41, s41, {56*1024}")
    p.stamp()
    vm.wait("E", "w9", "w10")
    p("s_barrier")
    for j in range(3):
        wd_piece(1*SLOT + 8192*j, final_ks(6 + 2*j), final_ks(6 + 2*j + 1), "wf")
    p(f"""
    v_lshrrev_b32 v14, 4, v1                  ; kg
    v_bfe_u32 v15, v1, 2, 2                   ; rr
    v_lshl_add_u32 v12, v14, 2, v15
    v_lshlrev_b32 v12, 7, v12
    v_and_b32 v13, 3, v1
    v_lshl_add_u32 v12, v13, 3, v12
    v_and_b32 v14, 1, v14
    v_lshrrev_b32 v15, 1, v15
    v_lshl_or_b32 v15, v14, 1, v15            ; g3
    v_xor_b32 v15, s38, v15                   ; g3 ^ kq
    s_lshl_b32 s40, s38, 2
    s_add_u32 s40, s40, 8
    s_lshl_b32 s40, s40, 12                   ; (8 + 4kq)*4096
    s_cmp_eq_u32 s38, 0
    s_cselect_b32 s40, {EBASE}, s40           ; staging base
    s_mul_i32 s41, s38, 40960
    """)
    for j in range(4):
        p(f"""
        v_xor_b32 v13, {j}, v15
        v_lshl_add_u32 v13, v13, 5, v12
        v_add_u32 v{20+j}, s40, v13
        v_add_u32 v{24+j}, s41, v13
        """)
    for n in range(4):
        for j in range(4):
            b = 32 + 16*n + 4*j
            p(f"ds_read_b64_tr_b16 {r2(b)}, v{20+j} offset:{n*4096}")
            p(f"ds_read_b64_tr_b16 {r2(b+2)}, v{20+j} offset:{n*4096 + 2048}")
    p(f"""
    s_lshl_b32 s40, s36, 1
    s_add_u32 s40, s40, s59                   ; rt2
    s_lshl_b32 s41, s40, 2
    s_lshl_b32 s43, s39, 1
    s_add_u32 s41, s41, s43                   ; T16(nt=0)
    s_mul_i32 s43, s41, 56
    s_mul_i32 s44, s38, 14
    s_add_u32 s43, s43, s44
    s_lshl_b32 s43, s43, 10
    v_lshl_add_u32 v2, v1, 4, s43             ; vH0
    v_add_u32 v3, {56*1024}, v2               ; vH1
    v_and_b32 v4, 15, v1
    s_lshl_b32 s41, s41, 4                    ; t0
    v_add_u32 v4, s41, v4                     ; t (nt=0)
    s_lshl_b32 s43, s60, 6
    s_lshl_b32 s44, s38, 4
    s_add_u32 s43, s43, s44
    v_lshrrev_b32 v5, 4, v1                   ; rg
    v_lshlrev_b32 v6, 2, v5
    v_add_u32 v6, s43, v6
    v_lshlrev_b32 v6, 12, v6
    v_lshl_add_u32 v6, v4, 1, v6              ; vRes
    v_and_b32 v7, 1, v5
    v_lshl_add_u32 v4, v7, 4, v4
    s_movk_i32 s44, 896
    v_mul_lo_u32 v4, v4, s44
    v_lshrrev_b32 v5, 1, v5
    v_lshlrev_b32 v5, 4, v5
    s_lshl_b32 s43, s43, 1
    v_add3_u32 v7, v4, v5, s43                ; vOut
    s_lshl_b32 s40, s36, 7
    s_add_u32 s40, s40, {CNT_OFF}
    v_mov_b32 v8, s40
    """)
    sent = merged and "usesent" in exp
    if sent:
        p("s_waitcnt lgkmcnt(0)")
        p("s_barrier")
        p.stamp()
        for j in range(8):
            if j < 6: base, L0 = 12*4096 + 8192*j, 12 + 2*j
            else: base, L0 = EBASE + 8192*(j - 6), 36 + 2*(j - 6)
            wd_piece(base, final_ks(L0), final_ks(L0 + 1), "wr")
        for i in range(8):
            nt, r = i >> 2, i & 3
            p(f"s_mov_b32 s40, {r*4096 + nt*32}")
            p(f"buffer_load_ushort v{12 + i}, v6, s[16:19], s40 offen {XSC}")
        p("s_mov_b32 s58, 0")
        p.stamp()
    else:
        vm.wait("hs", extra=" lgkmcnt(0)")
        p("s_barrier")
        p.stamp()
        p(f"""
        s_cmp_lg_u32 s33, 0
        s_cbranch_scc1 L_{name}_noarr
        v_mov_b32 v9, 1
        s_mov_b64 s[56:57], exec
        s_mov_b64 exec, 1
        global_atomic_add v8, v9, s[12:13] sc1
        s_mov_b64 exec, s[56:57]
        L_{name}_noarr:
        """)
        for j in range(8):
            if j < 6: base, L0 = 12*4096 + 8192*j, 12 + 2*j
            else: base, L0 = EBASE + 8192*(j - 6), 36 + 2*(j - 6)
            wd_piece(base, final_ks(L0), final_ks(L0 + 1), "wr")
        for i in range(8):
            nt, r = i >> 2, i & 3
            p(f"s_mov_b32 s40, {r*4096 + nt*32}")
            p(f"buffer_load_ushort v{12 + i}, v6, s[16:19], s40 offen {XSC}")
        p(f"""
        s_cmp_lg_u32 s33, 0
        s_cbranch_scc1 L_{name}_nopoll
        s_mov_b32 s58, 0
        L_{name}_poll2:
        global_load_dword v9, v8, s[12:13] sc1
        s_waitcnt vmcnt(0)
        v_readfirstlane_b32 s40, v9
        s_add_u32 s58, s58, 1
        s_cmp_ge_u32 s40, 14
        s_cbranch_scc1 L_{name}_nopoll
        s_cmp_ge_u32 s58, 0x40000
        s_cbranch_scc1 L_{name}_nopoll
        {f"s_sleep {S3SLP}" if S3SLP else ""}
        s_branch L_{name}_poll2
        L_{name}_nopoll:
        {"" if "b4late" in exp else "s_waitcnt vmcnt(0)"}
        s_barrier                                 ; B4
        """)
        p.stamp()

    if "g2prio0" in exp: p("s_setprio 0")
    HB = 96; A2 = 208; AB = [240, 32, 48]
    def ACC2(j, nt): return A2 + 8*j + 4*nt
    vm2 = VM(p)
    HD = 3
    for tok in exp.split("_"):
        if tok.startswith("hd"): HD = int(tok[2:])
    def h_issue(n):
        p(f"s_mov_b32 s40, {n*1024}")
        p(f"buffer_load_dwordx4 {r4(HB + 8*n)}, v2, s[28:31], s40 offen sc1")
        p(f"buffer_load_dwordx4 {r4(HB + 8*n + 4)}, v3, s[28:31], s40 offen sc1")
        vm2.issue(f"h{n}", 2)
    for n in range(min(HD, 14)): h_issue(n)
    def abuf(n):
        if n < 4: return 32 + 16*n
        if n == 4: return 240
        return 32 + 16*((n - 5) % 2) if n >= 5 else None
    def a_reads(n):
        m = n - 4
        o = []
        for j in range(4):
            b = abuf(n) + 4*j
            o.append(f"ds_read_b64_tr_b16 {r2(b)}, v{24+j} offset:{m*4096}")
            o.append(f"ds_read_b64_tr_b16 {r2(b+2)}, v{24+j} offset:{m*4096 + 2048}")
        return o
    retries = []
    for n in range(14):
        vm2.wait(f"h{n}", extra=(" lgkmcnt(0)" if n >= 4 else ""))
        if sent:
            h = HB + 8*n
            p(f"""
            v_max3_u32 v9, v{h}, v{h+1}, v{h+2}
            v_max3_u32 v8, v{h+3}, v{h+4}, v{h+5}
            v_max3_u32 v9, v9, v{h+6}, v{h+7}
            v_max_u32 v9, v9, v8
            v_cmp_eq_u32 vcc, -1, v9
            s_nop 0
            s_cbranch_vccnz L_{name}_retry{n}
            L_{name}_back{n}:
            """)
            retries.append(n)
        if n == 3 and ("b4late" in exp or sent): p("s_barrier")
        nxt = a_reads(n + 1) if (n + 1 >= 4 and n + 1 < 14) else []
        k = 0
        for nt in range(2):
            for j in range(4):
                c_in = "0" if n == 0 else r4(ACC2(j, nt))
                p(f"v_mfma_f32_16x16x32_bf16 {r4(ACC2(j, nt))}, {r4(abuf(n) + 4*j)}, {r4(HB + 8*n + 4*nt)}, {c_in}")
                if k < len(nxt): p(nxt[k])
                k += 1
                if k == 2 and n + HD < 14: h_issue(n + HD)
    p.stamp()
    p(f"""
    s_barrier
    v_lshlrev_b32 v9, 4, v1
    """)
    for j in range(1, 4):
        p(f"""
        s_xor_b32 s40, s33, {j}
        s_mul_i32 s40, s40, {3*2048}
        s_add_u32 s40, s40, {(j-1)*2048}
        v_add_u32 v10, s40, v9
        ds_write_b128 v10, {r4(ACC2(j, 0))}
        ds_write_b128 v10, {r4(ACC2(j, 1))} offset:1024
        """)
    p(f"""
    s_mul_i32 s40, s33, {3*2048}
    v_add_u32 v10, s40, v9
    s_waitcnt lgkmcnt(0)
    s_barrier
    """)
    for k in range(3):
        p(f"ds_read_b128 {r4(32 + 8*k)}, v10 offset:{k*2048}")
        p(f"ds_read_b128 {r4(36 + 8*k)}, v10 offset:{k*2048 + 1024}")
    for i in range(8): p(f"v_lshlrev_b32 v{12+i}, 16, v{12+i}")
    for k in range(3):
        p(f"s_waitcnt lgkmcnt({4 - 2*k})")
        for q in range(4):
            p(f"v_pk_add_f32 {r2(A2 + 2*q)}, {r2(A2 + 2*q)}, {r2(32 + 8*k + 2*q)}")
    for q in range(4): p(f"v_cvt_pk_bf16_f32 v{56+q}, v{A2 + 2*q}, v{A2 + 2*q + 1}")
    for q in range(4):
        p(f"v_lshlrev_b32 v{A2 + 2*q}, 16, v{56+q}")
        p(f"v_and_b32 v{A2 + 2*q + 1}, 0xffff0000, v{56+q}")
    for q in range(4): p(f"v_pk_add_f32 {r2(A2 + 2*q)}, {r2(A2 + 2*q)}, {r2(12 + 2*q)}")
    for q in range(4): p(f"v_cvt_pk_bf16_f32 v{56+q}, v{A2 + 2*q}, v{A2 + 2*q + 1}")
    osc = "sc1" if "osc1" in exp else "nt" if "ont" in exp else "sc0 sc1" if "osys" in exp else ""
    p(f"""
    v_permlane16_swap_b32 v56, v58
    v_permlane16_swap_b32 v57, v59
    buffer_store_dwordx4 v[56:59], v7, s[4:7], 0 offen {osc}
    """)
    p.stamp()
    if retries:
        p(f"s_branch L_{name}_done")
        for n in retries:
            h = HB + 8*n
            p(f"""
            L_{name}_retry{n}:
            s_add_u32 s58, s58, 1
            s_cmp_ge_u32 s58, 0x40000
            s_cbranch_scc1 L_{name}_back{n}
            s_sleep 1
            s_mov_b32 s40, {n*1024}
            buffer_load_dwordx4 {r4(h)}, v2, s[28:31], s40 offen sc1
            buffer_load_dwordx4 {r4(h+4)}, v3, s[28:31], s40 offen sc1
            s_waitcnt vmcnt(0)
            v_max3_u32 v9, v{h}, v{h+1}, v{h+2}
            v_max3_u32 v8, v{h+3}, v{h+4}, v{h+5}
            v_max3_u32 v9, v9, v{h+6}, v{h+7}
            v_max_u32 v9, v9, v8
            v_cmp_eq_u32 vcc, -1, v9
            s_nop 0
            s_cbranch_vccnz L_{name}_retry{n}
            s_branch L_{name}_back{n}
            """)
        p(f"L_{name}_done:")

def gen_k23(name="k23_kernel", stamps=False, exp=""):
    p = Prog(); p.stamps_on = stamps
    if 'cyc' in exp: p.stamp_op = 's_memtime'
    if 'wl' in exp: p.stamp_tid = 448
    E = f"L_{name}_end"
    p(f"""
    s_cmp_ge_u32 s2, 256
    s_cbranch_scc1 {E}
    """)
    p.stamp()
    p(f"""
    s_load_dwordx4 s[8:11], s[0:1], 80
    s_load_dwordx2 s[12:13], s[0:1], 120      ; ws
    s_load_dwordx4 s[4:7], s[0:1], 96
    v_lshrrev_b32 v2, 6, v0
    v_and_b32 v1, 63, v0                      ; lane
    v_readfirstlane_b32 s33, v2
    s_cmp_lt_u32 s2, 32
    s_cbranch_scc1 L_{name}_stats
    """)
    gen_gemm(p, name, exp)
    p.stamp_flush(STAMP_OFF + 0x4000)
    p(f"s_branch {E}")
    p(f"L_{name}_stats:")
    gen_k2_stats(p, name, tail=("" if "nowarm" in exp else "warm"))
    p(f"""
    {E}:
    s_endpgm
    """)
    return kernel_text(name, p, vgpr=256, sgpr=96)

K23_LAUNCH = "grid=(256,1,1) block=(512,1,1) lds=163840"
if __name__ == "__main__":
    import sys
    s = f"; @launch kernel=k23_kernel {K23_LAUNCH}\n" + '.amdgcn_target "amdgcn-amd-amdhsa--gfx950"\n.text\n' + gen_k23(stamps=(len(sys.argv) > 2), exp=(sys.argv[2] if len(sys.argv) > 2 else ''))
    open(sys.argv[1], "w").write(s)
```

```python
from asmtool import *
from layout import *
import struct

def r4(b): return f"v[{b}:{b+3}]"
def r2(b): return f"v[{b}:{b+1}]"
def fbits(x): return "0x%08x" % struct.unpack("<I", struct.pack("<f", x))[0]

WREG = 53 * 528
KCS = 4160
KCC = 2 * WREG
TB = 4 * WREG
UL0 = TB + 12288
XL0 = UL0 + 2 * 4608
LDS_K1 = XL0 + 2 * 4096
EX = 4 * KCS
FL = LDS_K1

def cmul_multi(p, items):
    for d, x, y in items: p(f"v_pk_mul_f32 {r2(d)}, {r2(x)}, {r2(y)} op_sel_hi:[1,0]")
    for d, x, y in items: p(f"v_pk_fma_f32 {r2(d)}, {r2(x)}, {r2(y)}, {r2(d)} op_sel:[1,1,0] op_sel_hi:[0,1,1] neg_lo:[1,0,0]")

def gen_spare_stats(p, name):
    p(f"""
    v_lshrrev_b32 v2, 3, v1                   ; lane>>3
    s_lshl_b32 s34, s2, 6
    s_lshl_b32 s35, s33, 3
    s_add_u32 s34, s34, s35                   ; 64b + 8w
    v_add_u32 v2, s34, v2                     ; row
    s_movk_i32 s35, 896
    v_mul_lo_u32 v3, v2, s35
    v_and_b32 v4, 7, v1
    v_lshl_add_u32 v3, v4, 4, v3
    s_waitcnt lgkmcnt(0)
    """)
    for i in range(7):
        p(f"global_load_dwordx4 {r4(32 + 4*i)}, v3, s[4:5] offset:{128*i}")
    if "notouch" not in getattr(p, "exp", ""):
        p(f"""
        v_mov_b32 v24, {TOUCH_OFF}
        v_mov_b32 v25, 64
        global_load_dword v26, v24, s[26:27]
        global_load_dword v27, v25, s[24:25]
        """)
    p(f"""
    s_mov_b32 s44, 0x3f803f80
    v_mov_b32 v10, 0
    v_mov_b32 v11, 0
    v_mov_b32 v14, 0
    v_mov_b32 v15, 0
    s_lshl_b32 s40, s2, 9
    s_add_u32 s40, s40, {ST2_OFF}
    v_lshl_add_u32 v20, v1, 3, s40
    v_mov_b32 v18, -1
    v_mov_b32 v19, -1
    v_lshlrev_b32 v21, 7, v1
    v_add_u32 v21, {CNT_OFF}, v21
    v_mov_b32 v22, 0
    s_mov_b64 s[46:47], exec
    s_cmp_lg_u32 s33, 2
    s_cbranch_scc1 L_{name}_nocsi
    s_mul_i32 s40, s2, 448
    s_add_u32 s40, s40, {CS_OFF}
    v_lshl_add_u32 v23, v1, 3, s40
    s_mov_b32 exec_lo, -1
    s_mov_b32 exec_hi, 0x00ffffff
    global_store_dwordx2 v23, v[18:19], s[26:27] sc1
    s_mov_b64 exec, s[46:47]
    L_{name}_nocsi:
    s_cmp_lg_u32 s33, 1
    s_cbranch_scc1 L_{name}_noinit
    global_store_dwordx2 v20, v[18:19], s[26:27] sc1
    s_cmp_lg_u32 s2, 0
    s_cbranch_scc1 L_{name}_noinit
    s_mov_b32 exec_hi, 0
    global_store_dword v21, v22, s[26:27] sc1
    s_mov_b64 exec, s[46:47]
    L_{name}_noinit:
    """)
    for i in range(7):
        p(f"s_waitcnt vmcnt({6 - i})" if False else "")
    p.stamp(1)
    ntouch = 0 if "notouch" in getattr(p, "exp", "") else 2
    for i in range(7):
        p(f"s_waitcnt vmcnt({6 - i + ntouch})")
        if i == 6: p.stamp(2)
        for j in range(4):
            v = 32 + 4*i + j
            if j & 1:
                p(f"v_dot2_f32_bf16 v14, v{v}, s44, v14")
                p(f"v_dot2_f32_bf16 v15, v{v}, v{v}, v15")
            else:
                p(f"v_dot2_f32_bf16 v10, v{v}, s44, v10")
                p(f"v_dot2_f32_bf16 v11, v{v}, v{v}, v11")
    p("v_add_f32 v10, v10, v14\nv_add_f32 v11, v11, v15")
    for dpp in ("quad_perm:[1,0,3,2]", "quad_perm:[2,3,0,1]", "row_half_mirror"):
        for r in (10, 11):
            p(f"v_add_f32_dpp v{r}, v{r}, v{r} {dpp} row_mask:0xf bank_mask:0xf")
    p(f"""
    s_mov_b32 s40, 0x3b124925                 ; 1/448
    s_mov_b32 s41, 0x3727c5ac                 ; 1e-5
    v_mul_f32 v10, s40, v10
    v_mul_f32 v11, s40, v11
    v_fma_f32 v11, -v10, v10, v11
    v_max_f32 v11, 0, v11
    v_cvt_pk_bf16_f32 v16, v11, v11
    v_lshlrev_b32 v16, 16, v16
    v_add_f32 v16, s41, v16
    v_cvt_pk_bf16_f32 v16, v16, v16
    v_lshlrev_b32 v16, 16, v16
    v_sqrt_f32 v16, v16
    v_cvt_pk_bf16_f32 v16, v10, v16
    v_and_b32 v17, 0xffff0000, v16
    v_lshlrev_b32 v16, 16, v16                ; mean
    v_rcp_f32 v17, v17                        ; 1 / std
    v_lshlrev_b32 v2, 3, v2
    v_add_u32 v2, {STATS_OFF}, v2
    s_mov_b32 s42, 0x01010101
    s_mov_b32 s43, 0x01010101
    s_mov_b64 exec, s[42:43]
    global_store_dwordx2 v2, v[16:17], s[26:27] sc1
    s_mov_b64 exec, s[46:47]
    """)
    p.stamp(3)
    p(f"""
    s_waitcnt vmcnt(0)
    s_barrier
    """)
    p.stamp(4)
    p(f"""
    s_cmp_lg_u32 s33, 0
    s_cbranch_scc1 L_{name}_nosig
    v_mov_b32 v4, 0
    v_mov_b32 v5, 1
    s_mov_b64 exec, 1
    """)
    if "s1tree" in getattr(p, "exp", ""):
        p(f"""
        global_atomic_add v6, v4, v5, s[24:25] sc0 sc1
        s_waitcnt vmcnt(0)
        v_readfirstlane_b32 s40, v6
        s_cmp_lg_u32 s40, 31
        s_cbranch_scc1 L_{name}_notlast
        global_store_dword v4, v5, s[24:25] offset:128 sc1
        L_{name}_notlast:
        """)
    else:
        p("global_atomic_add v4, v5, s[24:25] sc1")
    p(f"""
    s_mov_b64 exec, s[46:47]
    L_{name}_nosig:
    """)

def gen_spare_cs(p, name, sc1=""):
    p(f"""
    s_movk_i32 s35, 4682
    v_mul_u32_u24 v6, s35, v0
    v_lshrrev_b32 v6, 16, v6                  ; rg (0..36)
    v_mul_u32_u24 v7, 14, v6
    v_sub_u32 v7, v0, v7                      ; u
    s_and_b32 s36, s2, 15
    s_mul_i32 s36, s36, 224
    s_movk_i32 s35, {14*3584 // 16}
    v_mul_u32_u24 v8, s35, v6
    v_lshlrev_b32 v8, 4, v8                   ; rg*14*3584
    v_lshl_add_u32 v8, v7, 4, v8
    v_add_u32 v8, s36, v8
    s_cmp_lt_u32 s2, 16
    s_cselect_b32 s36, s28, s30
    s_cselect_b32 s37, s29, s31
    s_mov_b32 s38, {W_BYTES}
    s_mov_b32 s39, 0x20000
    s_mov_b32 s40, 0
    """)
    for i in range(14):
        p(f"buffer_load_dwordx4 {r4(96 + 4*i)}, v8, s[36:39], 0 offen")
        if i < 13: p(f"v_add_u32 v8, 3584, v8")
    extra = 0
    if getattr(p, "early_wd", False):
        p(f"""
        s_mov_b32 s56, s52
        s_mov_b32 s57, s53
        s_mov_b32 s58, {W_BYTES}
        s_mov_b32 s59, 0x20000
        s_mul_i32 s40, s2, {W_BYTES // 32}
        v_lshl_add_u32 v11, v0, 4, s40
        """)
        for i in range(7):
            p(f"buffer_load_dwordx4 {r4(152 + 4*i)}, v11, s[56:59], 0 offen")
            if i < 6: p(f"v_add_u32 v11, 8192, v11")
        extra = 7
        if "notlb" not in getattr(p, "exp", ""):
            touches = [("s[26:27]", HF_OFF + 2*k*(1 << 20) + 0xF80) for k in range(4)] + [("s[26:27]", HF_OFF + HF_BYTES - 64),
                       ("s[54:55]", 0), ("s[54:55]", X_BYTES - 64), ("s[52:53]", 0), ("s[52:53]", W_BYTES - 64),
                       ("s[28:29]", 0), ("s[28:29]", W_BYTES - 64), ("s[30:31]", 0), ("s[30:31]", W_BYTES - 64)]
            for i, (b, off) in enumerate(touches):
                p(f"v_mov_b32 v12, {off}")
                p(f"global_load_dword v{180 + i}, v12, {b}")
            extra += len(touches)
    for r in range(8): p(f"v_mov_b32 v{32+r}, 0")
    p("s_mov_b32 s44, 0xffff0000")
    for i in range(14):
        p(f"s_waitcnt vmcnt({13 - i + extra})")
        for j in range(4):
            v = 96 + 4*i + j
            t = 40 + 2*(j & 1)
            p(f"v_lshlrev_b32 v{t}, 16, v{v}\nv_and_b32 v{t+1}, s44, v{v}\nv_pk_add_f32 {r2(32+2*j)}, {r2(32+2*j)}, {r2(t)}")
    p(f"""
    s_movk_i32 s35, 448
    v_mul_u32_u24 v9, s35, v6
    v_lshl_add_u32 v9, v7, 5, v9
    v_mov_b32 v10, 448
    v_cmp_gt_u32 vcc, v10, v0
    s_and_saveexec_b64 s[42:43], vcc
    s_cbranch_execz L_{name}_csnw
    ds_write_b128 v9, v[32:35]
    ds_write_b128 v9, v[36:39] offset:16
    L_{name}_csnw:
    s_mov_b64 exec, s[42:43]
    s_waitcnt lgkmcnt(0)
    s_barrier
    v_mov_b32 v10, 112
    v_cmp_gt_u32 vcc, v10, v0
    s_and_saveexec_b64 s[42:43], vcc
    s_cbranch_execz L_{name}_csdone
    v_lshlrev_b32 v9, 2, v0
    """)
    for g in range(32): p(f"ds_read_b32 v{32+g}, v9 offset:{448*g}")
    p("s_waitcnt lgkmcnt(0)")
    for g in range(0, 32, 2): p(f"v_add_f32 v{32+g}, v{32+g}, v{33+g}")
    for g in range(2, 32, 2): p(f"v_add_f32 v32, v32, v{32+g}")
    p(f"""
    s_mul_i32 s40, s2, 448
    s_add_u32 s40, s40, {CS_OFF}
    v_add_u32 v9, s40, v9
    global_store_dword v9, v32, s[26:27] {sc1}
    L_{name}_csdone:
    s_mov_b64 exec, s[42:43]
    s_waitcnt vmcnt(0)
    """)

def gen_conv(p, name, hsc=""):
    exp = getattr(p, "exp", "")
    SLP = 2
    for tok in exp.split("_"):
        if tok.startswith("slp"): SLP = int(tok[3:])
    p(f"""
    s_and_b32 s34, s3, 7
    s_mul_i32 s34, s34, 56
    s_lshr_b32 s35, s3, 3
    s_lshl_b32 s35, s35, 1
    s_add_u32 s34, s34, s35                   ; d0
    s_bfe_u32 s35, s33, 0x10001               ; c  = (w>>1)&1
    s_and_b32 s36, s33, 1                     ; hf
    s_add_u32 s37, s34, s35                   ; d
    s_lshr_b32 s52, s33, 2                    ; role
    s_and_b32 s53, s33, 3                     ; sub
    s_lshl_b32 s38, s37, 9
    s_lshl_b32 s39, s36, 8
    s_add_u32 s38, s38, s39
    v_lshl_add_u32 v24, v1, 2, s38
    s_movk_i32 s39, 7168
    v_and_b32 v23, 255, v0
    v_mul_u32_u24 v25, s39, v23
    s_lshl_b32 s38, s34, 1
    s_add_u32 s39, s38, 3584
    v_add_u32 v25, s39, v25
    s_mul_i32 s42, s53, {WREG}
    v_lshl_add_u32 v26, v1, 3, s42
    s_waitcnt lgkmcnt(0)
    """)
    p.stamp()
    p(f"""
    s_load_dword s40, s[18:19], s38
    s_load_dword s41, s[20:21], s38
    s_cmp_lg_u32 s52, 0
    s_cbranch_scc1 L_{name}_noparam
    global_load_dword v10, v24, s[6:7]
    global_load_dword v11, v24, s[8:9]
    global_load_dword v12, v24, s[10:11]
    global_load_dword v13, v24, s[12:13]
    global_load_dword v14, v24, s[14:15]
    global_load_dword v15, v24, s[16:17]
    s_waitcnt vmcnt(0)
    L_{name}_noparam:
    v_mov_b32 v27, 0
    v_lshlrev_b32 v28, 2, v1
    v_add_u32 v28, {FL}, v28
    s_mov_b64 s[50:51], exec
    s_mov_b64 exec, 0xffff
    ds_write_b32 v28, v27
    s_mov_b64 exec, s[50:51]
    s_waitcnt lgkmcnt(0)
    s_barrier
    s_mov_b32 s46, 0xffff0000
    s_waitcnt lgkmcnt(0)
    s_cmp_eq_u32 s35, 0
    s_cselect_b32 s43, 16, 0
    s_lshl_b32 s41, s41, s43
    s_and_b32 s41, s41, 0xffff0000
    s_cmp_lg_u32 s52, 0
    s_cbranch_scc1 L_{name}_V
    s_lshl_b32 s40, s40, s43
    s_and_b32 s40, s40, 0xffff0000
    s_mov_b32 s44, 0x3fb8aa3b                 ; log2(e)
    s_mov_b32 s45, 0x3e22f983                 ; 1/(2 pi)
    v_mov_b32 v30, s40
    v_mul_f32 v30, s44, v30
    v_exp_f32 v30, v30
    v_cvt_pk_bf16_f32 v30, v30, v30
    v_and_b32 v30, s46, v30
    """)
    def fin_addr(q_add):
        p(f"""
        v_and_b32 v37, 15, v1
        v_lshlrev_b32 v37, 5, v37
        v_lshrrev_b32 v38, 4, v1
        v_lshl_add_u32 v37, v38, 3, v37
        s_lshl_b32 s44, s36, 2
        s_add_u32 s44, s44, {q_add}
        s_lshl_b32 s44, s44, 9                    ; q0 * 512 B
        v_add_u32 v37, s44, v37
        s_mul_i32 s42, s35, 4608
        s_add_u32 s42, s42, {UL0 + 512}
        v_add_u32 v32, s42, v37                   ; u address
        s_lshl_b32 s42, s35, 12
        s_add_u32 s42, s42, {XL0}
        v_add_u32 v33, s42, v37                   ; x address
        s_lshl_b32 s42, s37, 12
        s_add_u32 s42, s42, {HT_OFF}
        v_add_u32 v35, s42, v37
        v_mov_b32 v36, s41                        ; Dskip
        """)
    def fin_reads():
        p(f"""
        ds_read_b64 v[48:49], v32
        ds_read_b64 v[50:51], v32 offset:512
        ds_read_b64 v[52:53], v33
        ds_read_b64 v[54:55], v33 offset:512
        """)
    def fin_base():
        for j in range(2):
            u = 48 + 2*j; x = 52 + 2*j; b = 40 + 4*j
            p(f"""
            v_lshlrev_b32 v56, 16, v{u}
            v_and_b32 v57, s46, v{u}
            v_lshlrev_b32 v58, 16, v{u+1}
            v_and_b32 v59, s46, v{u+1}
            v_lshlrev_b32 v{b}, 16, v{x}
            v_and_b32 v{b+1}, s46, v{x}
            v_lshlrev_b32 v{b+2}, 16, v{x+1}
            v_and_b32 v{b+3}, s46, v{x+1}
            v_pk_fma_f32 {r2(b)}, v[56:57], v[36:37], {r2(b)} op_sel_hi:[1,0,1]
            v_pk_fma_f32 {r2(b+2)}, v[58:59], v[36:37], {r2(b+2)} op_sel_hi:[1,0,1]
            """)
    wr = [0]
    def put(row, src, neg):
        wp = 16 + 2*(wr[0] % 4); wr[0] += 1
        for k in range(2):
            s = src(k)
            p(f"v_cvt_pk_bf16_f32 v{wp+k}, v{s}, {'-' if neg else ''}v{s+1}")
        p(f"ds_write_b64 v26, {r2(wp)} offset:{row*528}")
    def unp(k, d, s):
        return f"v_lshlrev_b32 v{d}, 16, v{s}" if k == 0 else f"v_and_b32 v{d}, s46, v{s}"
    def expz(dst, Z, L, T):
        for k in range(2):
            t = T(k)
            if L == 1.0:
                p(f"v_exp_f32 v{t}, v{Z(k)}")
                p(f"v_fract_f32 v{t+1}, v{Z(k)+1}")
            else:
                p(f"v_pk_mul_f32 {r2(t)}, {r2(Z(k))}, {r2(28)} op_sel_hi:[1,0]")
        if L != 1.0:
            for k in range(2):
                t = T(k)
                p(f"v_exp_f32 v{t}, v{t}")
                p(f"v_fract_f32 v{t+1}, v{t+1}")
        for k in range(2):
            p(f"v_cos_f32 v{dst(k)}, v{T(k)+1}")
            p(f"v_sin_f32 v{dst(k)+1}, v{T(k)+1}")
        for k in range(2):
            p(f"v_pk_mul_f32 {r2(dst(k))}, {r2(dst(k))}, {r2(T(k))} op_sel_hi:[1,0]")
    names = ["Z", "CB", "E1", "E256", "E2", "E4", "Pa", "Pb", "T1", "T2", "T3", "Ta", "Tb", "R4", "Rt", "Tm",
             "E8", "E16", "Oa", "Ob", "Ea", "Eb"]
    def U(nm): return lambda k: 32 + 2*names.index(nm) + 44*k
    p("s_waitcnt vmcnt(0)")
    p.stamp()
    for k in range(2):
        Z, Pa, Pb = U("Z")(k), U("Pa")(k), U("Pb")(k)
        p(unp(k, Z, 10)); p(unp(k, Z+1, 11))
        p(unp(k, Pa, 12)); p(unp(k, Pa+1, 13))
        p(unp(k, Pb, 14)); p(unp(k, Pb+1, 15))
    for k in range(2):
        p(f"v_pk_mul_f32 {r2(U('Z')(k))}, {r2(U('Z')(k))}, v[30:31] op_sel_hi:[1,0]")
        p(f"v_pk_mul_f32 {r2(U('Pa')(k))}, {r2(U('Pa')(k))}, v[30:31] op_sel_hi:[1,0]")
    cmul_multi(p, [(U("CB")(k), U("Pb")(k), U("Pa")(k)) for k in range(2)])
    for k in range(2):
        p(f"v_mul_f32 v{U('Z')(k)}, s44, v{U('Z')(k)}")
        p(f"v_mul_f32 v{U('Z')(k)+1}, s45, v{U('Z')(k)+1}")
    p(f"v_mov_b32 v28, {fbits(8.0)}")
    expz(U("E8"), U("Z"), 8.0, U("Tm"))
    expz(U("E1"), U("Z"), 1.0, U("Tm"))
    p(f"v_mov_b32 v28, {fbits(256.0)}")
    expz(U("E256"), U("Z"), 256.0, U("Tm"))
    if 'fine' in exp: p.stamp(10)
    for k in range(2):
        p(f"v_mov_b32 v{U('Tm')(k)}, 1.0\nv_mov_b32 v{U('Tm')(k)+1}, 0")
    put(21, U("Tm"), False)
    put(22, U("E8"), False)
    put(0, U("CB"), True)
    def rnd(items, puts):
        cmul_multi(p, [(U(d)(k), U(x)(k), U(y)(k)) for (d, x, y) in items for k in range(2)])
        for row, nm in puts: put(row, U(nm), row < 21)
    rnd([("E16", "E8", "E8"), ("Pa", "CB", "E1"), ("T1", "CB", "E256"), ("E2", "E1", "E1")], [(23, "E16"), (1, "Pa"), (8, "T1")])
    urounds = [
        ([("Pb", "Pa", "E1"), ("T2", "T1", "E256"), ("E4", "E2", "E2")], [(2, "Pb"), (9, "T2")]),
        ([("Pa", "Pb", "E1"), ("T3", "T2", "E256"), ("Rt", "T1", "E2")], [(3, "Pa"), (10, "T3"), (16, "Rt")]),
        ([("Pb", "Pa", "E1"), ("Ta", "T3", "E256"), ("R4", "T1", "E4")], [(4, "Pb"), (11, "Ta"), (17, "R4")]),
        ([("Pa", "Pb", "E1"), ("Tb", "Ta", "E256"), ("Rt", "R4", "E2")], [(5, "Pa"), (12, "Tb"), (18, "Rt")]),
        ([("Pb", "Pa", "E1"), ("Ta", "Tb", "E256"), ("Rt", "T2", "E4")], [(6, "Pb"), (13, "Ta"), (19, "Rt")]),
        ([("Pa", "Pb", "E1"), ("Tb", "Ta", "E256"), ("Rt", "T3", "E4")], [(7, "Pa"), (14, "Tb"), (20, "Rt")]),
        ([("Ta", "Tb", "E256")], [(15, "Ta")]),
    ]
    o, e = "E8", "E16"
    no, ne = "Oa", "Ea"
    for n, j in enumerate(range(3, 32, 2)):
        items = [(no, o, "E16")]; puts = [(21 + j, no)]
        if j + 1 < 32: items.append((ne, e, "E16")); puts.append((21 + j + 1, ne))
        if n < len(urounds):
            items = items + urounds[n][0]; puts = puts + urounds[n][1]
        rnd(items, puts)
        o, e = no, ne
        no = "Ob" if no == "Oa" else "Oa"
        ne = "Eb" if ne == "Ea" else "Ea"
    if 'fine' in exp: p.stamp(11)
    p(f"""
    v_and_b32 v27, 31, v1
    v_min_u32 v28, 20, v27
    s_movk_i32 s43, 528
    v_mul_u32_u24 v28, s43, v28
    v_mul_u32_u24 v27, s43, v27
    v_lshrrev_b32 v29, 5, v1
    v_lshlrev_b32 v29, 4, v29                 ; kk*16
    v_add3_u32 v28, v28, v29, s42
    s_add_u32 s43, s42, {21*528}
    v_add3_u32 v27, v27, v29, s43
    s_waitcnt lgkmcnt(0)
    """)
    p.stamp()
    DEPTH = 6
    def kr(ks):
        b = 96 + 8*(ks % 8)
        p(f"ds_read_b128 {r4(b)}, v28 offset:{32*ks}")
        p(f"ds_read_b128 {r4(b+4)}, v27 offset:{32*ks}")
    for ks in range(DEPTH): kr(ks)
    p(f"""
    v_lshrrev_b32 v29, 5, v1
    v_lshlrev_b32 v29, 9, v29                 ; half*4*128
    v_and_b32 v24, 31, v1
    v_lshl_add_u32 v29, v24, 2, v29
    s_mul_i32 s42, s53, 3072
    s_add_u32 s42, s42, {TB}
    v_add_u32 v29, s42, v29
    """)
    for ks in range(16):
        outstanding_after = 2 * (min(ks + DEPTH, 16) - (ks + 1))
        p(f"s_waitcnt lgkmcnt({outstanding_after})")
        b = 96 + 8*(ks % 8)
        p(f"v_mfma_f32_32x32x16_bf16 v[160:175], {r4(b)}, {r4(b+4)}, " + ("0" if ks == 0 else "v[160:175]"))
        if ks + DEPTH < 16: kr(ks + DEPTH)
    for r in range(12):
        p(f"ds_write_b32 v29, v{160+r} offset:{((r & 3) + 8*(r >> 2))*128}")
    p(f"""
    s_mul_i32 s42, s35, 6144
    s_add_u32 s42, s42, {TB}
    v_lshl_add_u32 v26, v1, 2, s42
    s_lshl_b32 s54, s53, 2
    s_add_u32 s54, s54, {FL + 0}
    s_xor_b32 s55, s54, 4
    v_mov_b32 v22, s54
    v_mov_b32 v23, 1
    v_mov_b32 v21, s55
    s_waitcnt lgkmcnt(0)
    ds_write_b32 v22, v23
    s_mov_b32 s56, 0
    L_{name}_psa:
    ds_read_b32 v20, v21
    s_waitcnt lgkmcnt(0)
    v_readfirstlane_b32 s55, v20
    s_add_u32 s56, s56, 1
    s_cmp_lg_u32 s55, 0
    s_cbranch_scc1 L_{name}_pda
    s_cmp_lt_u32 s56, 0x400000
    s_cbranch_scc1 L_{name}_psa
    L_{name}_pda:
    """)
    p.stamp()
    p(f"""
    s_cmp_lg_u32 s36, 0
    s_cbranch_scc1 L_{name}_g1
    """)
    seg1 = [256, 256, 512, 544, 544, 544, 576, 257]
    p("v_cmp_gt_u32 vcc, 32, v1")
    for e in range(8):
        p(f"v_mov_b32 v{40+e}, {(seg1[e]-32)*4}")
        p(f"v_mov_b32 v48, {32*e*4}")
        p(f"v_cndmask_b32 v{40+e}, v{40+e}, v48, vcc")
        p(f"v_add_u32 v{40+e}, v{40+e}, v26")
    for e in range(8):
        p(f"ds_read2st64_b32 {r2(48+2*e)}, v{40+e} offset0:0 offset1:12")
    p(f"v_add_u32 v32, {288*4}, v26\nv_add_u32 v33, {608*4}, v26\nv_add_u32 v34, {289*4}, v26")
    for i in range(3):
        p(f"ds_read2st64_b32 {r2(64+2*i)}, v{32+i} offset0:0 offset1:12")
    p("s_waitcnt lgkmcnt(0)")
    for e in range(8): p(f"v_add_f32 v{48+2*e}, v{48+2*e}, v{49+2*e}")
    for i in range(3): p(f"v_add_f32 v{64+2*i}, v{64+2*i}, v{65+2*i}")
    for j in range(4):
        p(f"v_cvt_pk_bf16_f32 v{96+j}, v{48+2*(7-2*j)}, v{48+2*(6-2*j)}")
    p(f"""
    v_cvt_pk_bf16_f32 v100, v68, v68
    v_cvt_pk_bf16_f32 v101, v66, v66          ; (K5,K4) = (Q,Q)
    v_cvt_pk_bf16_f32 v102, v66, v64          ; (K3,K2) = (Q,G)
    v_cvt_pk_bf16_f32 v103, v64, v64          ; (K1,K0) = (G,G)
    s_branch L_{name}_g2
    L_{name}_g1:
    """)
    for it in range(2):
        p(f"v_add_u32 v{40+it}, {(352+64*it)*4}, v26")
        p(f"v_add_u32 v{42+it}, {(353+64*it)*4}, v26")
    for it in range(2):
        p(f"ds_read2st64_b32 {r2(48+4*it)}, v{40+it} offset0:0 offset1:12")
        p(f"ds_read2st64_b32 {r2(50+4*it)}, v{42+it} offset0:0 offset1:12")
    p(f"""
    v_and_b32 v44, 1, v1
    v_cmp_eq_u32 vcc, 1, v44
    v_lshrrev_b32 v45, 1, v1
    s_movk_i32 s43, {KCS}
    v_mul_u32_u24 v45, s43, v45
    v_lshl_add_u32 v45, v44, 4, v45
    s_mul_i32 s42, s35, {KCC}
    s_add_u32 s42, s42, {256*16}
    v_add_u32 v45, s42, v45
    v_mov_b32 v60, 0
    v_mov_b32 v61, 0
    v_mov_b32 v62, 0
    v_mov_b32 v63, 0
    s_mov_b64 s[50:51], exec
    s_mov_b64 exec, 0xff
    ds_write_b128 v45, v[60:63]
    s_mov_b64 exec, s[50:51]
    s_waitcnt lgkmcnt(0)
    """)
    for it in range(2):
        G, Gn = 48 + 4*it, 50 + 4*it
        p(f"""
        v_add_f32 v{G}, v{G}, v{G+1}
        v_add_f32 v{Gn}, v{Gn}, v{Gn+1}
        v_cndmask_b32 v46, v{G}, v{Gn}, vcc
        v_cvt_pk_bf16_f32 v{96+4*it}, v{Gn}, v{Gn}       ; (K7,K6)
        v_cvt_pk_bf16_f32 v{97+4*it}, v{Gn}, v46         ; (K5,K4)
        v_cvt_pk_bf16_f32 v{98+4*it}, v{G}, v{G}         ; (K3,K2)
        v_cvt_pk_bf16_f32 v{99+4*it}, v{G}, v{G}         ; (K1,K0)
        """)
    p(f"""
    L_{name}_g2:
    s_mul_i32 s42, s35, {KCC}
    s_lshl_b32 s43, s36, 11                   ; 128*hf*16
    s_sub_u32 s42, s42, s43
    s_add_u32 s42, s42, {255*16}
    v_lshlrev_b32 v27, 4, v1
    v_sub_u32 v27, s42, v27                   ; it = 0
    v_subrev_u32 v28, 1024, v27               ; it = 1
    ds_write_b128 v27, v[96:99]
    ds_write_b128 v28, v[100:103]
    s_lshl_b32 s54, s53, 2
    s_add_u32 s54, s54, {FL + 16}
    s_xor_b32 s55, s54, 4
    v_mov_b32 v22, s54
    v_mov_b32 v23, 1
    v_mov_b32 v21, s55
    s_waitcnt lgkmcnt(0)
    ds_write_b32 v22, v23
    s_mov_b32 s56, 0
    L_{name}_psb:
    ds_read_b32 v20, v21
    s_waitcnt lgkmcnt(0)
    v_readfirstlane_b32 s55, v20
    s_add_u32 s56, s56, 1
    s_cmp_lg_u32 s55, 0
    s_cbranch_scc1 L_{name}_pdb
    s_cmp_lt_u32 s56, 0x400000
    s_cbranch_scc1 L_{name}_psb
    L_{name}_pdb:
    ds_read_b64 v[104:105], v27 offset:16
    ds_read_b64 v[108:109], v28 offset:16
    """)
    p.stamp()
    p(f"""
    v_and_b32 v36, 3, v1                      ; rr & 3
    v_bfe_u32 v35, v1, 2, 1                   ; rr >> 2
    v_bfe_u32 v37, v1, 3, 1                   ; qq
    v_lshrrev_b32 v38, 4, v1                  ; kg
    v_sub_u32 v36, 3, v36
    s_movk_i32 s43, {KCS}
    v_mul_u32_u24 v36, s43, v36
    v_sub_u32 v39, v38, v37
    v_lshl_add_u32 v36, v39, 4, v36
    v_sub_u32 v35, 1, v35
    v_lshl_add_u32 v36, v35, 3, v36
    s_mul_i32 s42, s35, {KCC}
    s_add_u32 s42, s42, {16*253 - 3584}
    s_lshl_b32 s43, s36, 8                    ; 64 * 4 hf
    s_sub_u32 s42, s42, s43
    v_add_u32 v24, s42, v36
    v_and_b32 v36, 15, v1                     ; cc
    v_lshlrev_b32 v36, 5, v36
    v_lshl_add_u32 v36, v38, 4, v36
    s_mul_i32 s42, s35, 4608
    s_add_u32 s42, s42, {UL0 + 480}
    s_sub_u32 s42, s42, s43
    v_add_u32 v25, s42, v36
    """)
    for it in range(2):
        own = 96 + 4*it; nb = 104 + 4*it
        adr = 27 + it
        a = [own, own+1, own+2, own+3, nb, nb+1]
        Bb = 112 + 16*it; Ao = 117 + 16*it; Bo = 121 + 16*it
        p(f"s_waitcnt lgkmcnt({1 - it})")
        for i in range(4): p(f"v_alignbit_b32 v{Bb+i}, v{a[i+1]}, v{a[i]}, 16")
        for i in range(1, 5): p(f"v_mov_b32 v{Ao+i}, v{a[i]}")
        for i in range(1, 5): p(f"v_alignbit_b32 v{Bo+i}, v{a[i+1]}, v{a[i]}, 16")
        p(f"ds_write_b128 v{adr}, {r4(Bb)} offset:{1*KCS}")
        p(f"ds_write_b128 v{adr}, {r4(Ao+1)} offset:{2*KCS}")
        p(f"ds_write_b128 v{adr}, {r4(Bo+1)} offset:{3*KCS}")
    fin_addr(0)
    p(f"""
    s_waitcnt lgkmcnt(0)
    s_barrier                                 ; 3
    """)
    p.stamp()
    fin_reads()
    def FA(s, i): return 64 + 64*s + 4*i
    def FB(s, i): return 96 + 64*s + 4*i
    def ACC(q): return 192 + 4*q
    def frag_reads(s, areg, breg):
        o = []
        for i in range(8):
            o.append(f"ds_read_b64 {r2(FA(s, i))}, v{areg} offset:{(7-i)*512}")
            o.append(f"ds_read_b64 {r2(FA(s, i)+2)}, v{areg} offset:{(7-i)*512 + 8}")
            o.append(f"ds_read_b128 {r4(FB(s, i))}, v{breg} offset:{i*512}")
        return o
    pairs = []
    for s in range(8):
        for j in range(s + 1):
            if s + j <= 7:
                pairs.append((s, j))
                if j < s: pairs.append((j, s))
    for x in frag_reads(0, 24, 25): p(x)
    first = [True]*8
    for rho in range(4):
        s = rho & 1
        nxt = []
        if rho < 3:
            p(f"v_subrev_u32 v{28+2*(rho&1)}, {64*(rho+1)}, v24")
            p(f"v_subrev_u32 v{29+2*(rho&1)}, {64*(rho+1)}, v25")
            nxt = frag_reads(1 - s, 28 + 2*(rho & 1), 29 + 2*(rho & 1))
        ni = 0
        shell_done = -1
        pf_start = 12 if rho == 0 else 1
        for n, (i, j) in enumerate(pairs):
            sh = max(i, j)
            if rho == 0:
                if sh > shell_done and sh <= 3:
                    p(f"s_waitcnt lgkmcnt({min(15, 21 - 3*sh) if sh < 3 else 0})"); shell_done = sh
            elif n == 0:
                p("s_waitcnt lgkmcnt(0)")
            q = i + j
            c_in = "0" if first[q] else r4(ACC(q))
            first[q] = False
            p(f"v_mfma_f32_16x16x32_bf16 {r4(ACC(q))}, {r4(FA(s, i))}, {r4(FB(s, j))}, {c_in}")
            if n >= pf_start and ni < len(nxt): p(nxt[ni]); ni += 1
        assert ni == len(nxt), (rho, ni)
    p.stamp()
    fin_base()
    p(f"""
    s_lshl_b32 s42, s53, 13
    s_add_u32 s42, s42, {EX}
    v_lshl_add_u32 v28, v1, 4, s42
    s_cmp_lg_u32 s36, 0
    s_cbranch_scc1 L_{name}_x1
    """)
    for q in range(2, 8): p(f"ds_write_b128 v28, {r4(ACC(q))} offset:{1024*q}")
    for r in range(8): p(f"v_mov_b32 v{64+r}, v{ACC(0)+r}")
    p(f"s_branch L_{name}_x2\nL_{name}_x1:")
    for q in (0, 1, 2, 3, 6, 7): p(f"ds_write_b128 v28, {r4(ACC(q))} offset:{1024*q}")
    for r in range(8): p(f"v_mov_b32 v{64+r}, v{ACC(4)+r}")
    p(f"""
    L_{name}_x2:
    s_xor_b32 s42, s53, 1
    s_lshl_b32 s42, s42, 13
    s_lshl_b32 s43, s36, 12
    s_add_u32 s42, s42, s43
    s_add_u32 s42, s42, {EX}
    v_lshl_add_u32 v29, v1, 4, s42
    s_waitcnt lgkmcnt(0)
    s_barrier                                 ; 4
    ds_read_b128 v[72:75], v29
    ds_read_b128 v[76:79], v29 offset:1024
    s_waitcnt lgkmcnt(0)
    """)
    for q in range(4): p(f"v_pk_add_f32 {r2(64+2*q)}, {r2(64+2*q)}, {r2(72+2*q)}")
    p(f"s_branch L_{name}_fin")
    p(f"L_{name}_V:")
    if "notouch" not in exp:
        p(f"""
        v_mov_b32 v26, {TOUCH_OFF}
        global_load_dword v28, v26, s[26:27]
        """)
    for i in range(8):
        p(f"global_load_dword v{2+i}, v25, s[4:5] offset:{(i-4)*896}" + (" sc1" if "gsc1" in exp else " nt" if "gnt" in exp else ""))
    p.stamp(2)
    p(f"""
    v_mov_b32 v31, 0
    s_mov_b32 s47, 0
    v_mov_b32 v26, {FL + 32}
    v_and_b32 v25, 255, v0
    v_lshlrev_b32 v25, 6, v25
    v_add_u32 v25, {STATS_OFF}, v25
    v_and_b32 v24, 255, v0
    v_lshlrev_b32 v24, 4, v24                 ; tid'*16
    v_add_u32 v24, {UL0 + 512}, v24
    s_waitcnt vmcnt(0)
    s_cmp_lg_u32 s33, 4
    s_cbranch_scc1 L_{name}_lpoll
    L_{name}_poll:
    global_load_dword v27, v31, s[24:25] offset:{128 if "s1tree" in exp else 0} sc1
    s_waitcnt vmcnt(0)
    v_readfirstlane_b32 s48, v27
    s_add_u32 s47, s47, 1
    s_cmp_ge_u32 s48, {1 if "s1tree" in exp else 32}
    s_cbranch_scc1 L_{name}_seen
    s_cmp_ge_u32 s47, 0x40000
    s_cbranch_scc1 L_{name}_seen
    s_sleep {SLP}
    s_branch L_{name}_poll
    L_{name}_seen:
    v_mov_b32 v27, 1
    ds_write_b32 v26, v27
    s_branch L_{name}_go
    L_{name}_lpoll:
    ds_read_b32 v27, v26
    s_waitcnt lgkmcnt(0)
    v_readfirstlane_b32 s48, v27
    s_add_u32 s47, s47, 1
    s_cmp_lg_u32 s48, 0
    s_cbranch_scc1 L_{name}_go
    s_cmp_ge_u32 s47, 0x400000
    s_cbranch_scc1 L_{name}_go
    s_sleep 1
    s_branch L_{name}_lpoll
    L_{name}_go:
    """)
    p.stamp(3)
    p(f"""
    global_load_dwordx4 v[32:35], v25, s[26:27] sc1
    global_load_dwordx4 v[36:39], v25, s[26:27] offset:16 sc1
    global_load_dwordx4 v[40:43], v25, s[26:27] offset:32 sc1
    global_load_dwordx4 v[44:47], v25, s[26:27] offset:48 sc1
    s_mov_b32 s48, 0x05040100
    s_mov_b32 s49, 0x07060302
    """)
    for j in range(4):
        p(f"v_perm_b32 v{72+j}, v{3+2*j}, v{2+2*j}, s48")
        p(f"v_perm_b32 v{76+j}, v{3+2*j}, v{2+2*j}, s49")
    p(f"""
    ds_write_b128 v24, v[72:75] offset:{XL0 - UL0 - 512}
    ds_write_b128 v24, v[76:79] offset:{XL0 + 4096 - UL0 - 512}
    """)
    for i in range(8):
        p(f"v_lshlrev_b32 v{48+2*i}, 16, v{2+i}")
        p(f"v_and_b32 v{49+2*i}, s46, v{2+i}")
    p.stamp(4)
    p.stamp(5)
    p("s_waitcnt vmcnt(0)")
    p.stamp(6)
    for i in range(8):
        p(f"v_pk_add_f32 {r2(48+2*i)}, {r2(48+2*i)}, {r2(32+2*i)} op_sel_hi:[1,0] neg_lo:[0,1] neg_hi:[0,1]")
    for i in range(8):
        p(f"v_cvt_pk_bf16_f32 v{2+i}, v{48+2*i}, v{49+2*i}")
    for i in range(8):
        p(f"v_lshlrev_b32 v{48+2*i}, 16, v{2+i}")
        p(f"v_and_b32 v{49+2*i}, s46, v{2+i}")
    for i in range(8):
        p(f"v_pk_mul_f32 {r2(48+2*i)}, {r2(48+2*i)}, {r2(32+2*i)} op_sel:[0,1] op_sel_hi:[1,1]")
    for j in range(4):
        p(f"v_cvt_pk_bf16_f32 v{64+j}, v{48+4*j}, v{50+4*j}")
        p(f"v_cvt_pk_bf16_f32 v{68+j}, v{49+4*j}, v{51+4*j}")
    p(f"""
    ds_write_b128 v24, v[64:67]
    ds_write_b128 v24, v[68:71] offset:4608
    s_cmp_lg_u32 s33, 4
    s_cbranch_scc1 L_{name}_nopad
    v_mov_b32 v60, 0
    v_mov_b32 v61, 0
    v_mov_b32 v62, 0
    v_mov_b32 v63, 0
    v_lshrrev_b32 v34, 5, v1
    s_movk_i32 s43, 4608
    v_mul_u32_u24 v34, s43, v34
    v_and_b32 v35, 31, v1
    v_lshl_add_u32 v34, v35, 4, v34
    v_add_u32 v34, {UL0}, v34
    ds_write_b128 v34, v[60:63]
    L_{name}_nopad:
    """)
    fin_addr(2)
    p("s_waitcnt lgkmcnt(0)")
    p.stamp(7)
    p(f"""
    s_barrier                                 ; 3
    """)
    p(f"""
    s_lshl_b32 s42, s35, 14                   ; c * 16384
    s_lshl_b32 s43, s36, 12                   ; 4hf * 1024
    s_add_u32 s42, s42, s43
    s_add_u32 s42, s42, {EX + 2048}
    v_lshl_add_u32 v29, v1, 4, s42
    """)
    if getattr(p, "warm_w", False):
        p(f"""
        s_and_b32 s54, s3, 7
        s_lshr_b32 s54, s54, 2
        s_mul_i32 s54, s54, 7
        s_lshr_b32 s55, s3, 5
        s_add_u32 s54, s54, s55                   ; ct
        v_lshrrev_b32 v34, 4, v1
        s_lshl_b32 s55, s53, 2
        v_add_u32 v34, s55, v34
        s_movk_i32 s55, 3584
        v_mul_lo_u32 v34, v34, s55
        v_and_b32 v39, 15, v1
        v_lshl_add_u32 v34, v39, 4, v34
        s_lshl_b32 s54, s54, 8
        v_add_u32 v34, s54, v34
        """)
        NW = 10
        for tok in exp.split("_"):
            if tok.startswith("nw"): NW = int(tok[2:])
        if getattr(p, "sent_h", False):
            p(f"""
            s_and_b32 s55, s3, 3
            s_lshl_b32 s55, s55, 2
            s_bfe_u32 s56, s3, 0x20003
            s_add_u32 s55, s55, s56                   ; rt
            s_mul_i32 s55, s55, {8*56}
            s_lshr_b32 s56, s54, 8                    ; ct
            s_lshl_b32 s56, s56, 2
            s_add_u32 s55, s55, s56
            s_add_u32 s55, s55, s53
            s_lshl_b32 s55, s55, 10
            s_add_u32 s55, s55, {HF_OFF}
            v_lshl_add_u32 v60, v1, 4, s55
            v_mov_b32 v56, -1
            v_mov_b32 v57, -1
            v_mov_b32 v58, -1
            v_mov_b32 v59, -1
            """)
            for j in range(8):
                p("global_store_dwordx4 v60, v[56:59], s[26:27] sc1")
                if j < 7: p(f"v_add_u32 v60, {56*1024}, v60")
        for i in range(NW):
            p(f"global_load_dwordx4 {r4(96 + 8*(i % 4))}, v34, s[28:29]")
            p(f"global_load_dwordx4 {r4(100 + 8*(i % 4))}, v34, s[30:31]")
            p(f"v_add_u32 v34, {16*3584}, v34")
    fin_reads()
    p("s_waitcnt lgkmcnt(0)")
    fin_base()
    p(f"""
    s_barrier                                 ; 4
    ds_read_b128 v[64:67], v29
    ds_read_b128 v[68:71], v29 offset:1024
    ds_read_b128 v[72:75], v29 offset:8192
    ds_read_b128 v[76:79], v29 offset:{8192 + 1024}
    s_waitcnt lgkmcnt(0)
    """)
    for q in range(4): p(f"v_pk_add_f32 {r2(64+2*q)}, {r2(64+2*q)}, {r2(72+2*q)}")
    p(f"L_{name}_fin:")
    for j in range(2):
        y = 64 + 4*j; b = 40 + 4*j
        p(f"""
        v_pk_add_f32 {r2(y)}, {r2(y)}, {r2(b)}
        v_pk_add_f32 {r2(y+2)}, {r2(y+2)}, {r2(b+2)}
        v_cvt_pk_bf16_f32 v{56+2*j}, v{y}, v{y+1}
        v_cvt_pk_bf16_f32 v{57+2*j}, v{y+2}, v{y+3}
        global_store_dwordx2 v35, {r2(56+2*j)}, s[26:27] offset:{512*j} {hsc}
        """)
    p.stamp()

def gen_k1b(name="k1_kernel", stamps=False, exp=""):
    p = Prog(); p.stamps_on = stamps
    if 'cyc' in exp: p.stamp_op = 's_memtime'
    if 'wl' in exp or 'w4' in exp: p.stamp_tid = (256 if "w4" in exp else 448)
    E = f"L_{name}_end"
    p.exp = exp
    p(f"""
    s_cmp_ge_u32 s2, 256
    s_cbranch_scc1 {E}
    """)
    p.stamp()
    p(f"""
    s_load_dwordx16 s[4:19], s[0:1], 0
    s_load_dwordx2 s[20:21], s[0:1], 64
    s_load_dwordx4 s[24:27], s[0:1], 112
    s_load_dwordx4 s[28:31], s[0:1], 80
    v_lshrrev_b32 v2, 6, v0
    v_and_b32 v1, 63, v0
    v_readfirstlane_b32 s33, v2
    s_cmp_lt_u32 s2, 32
    s_cbranch_scc1 L_{name}_spare
    s_sub_u32 s3, s2, 32
    """)
    p.warm_w = "nowarmw" not in exp
    gen_conv(p, name)
    if 'fine' in exp: p.nstamp = 12
    p.stamp_flush(STAMP_OFF, ws="s[26:27]")
    p(f"s_branch {E}")
    p(f"L_{name}_spare:")
    gen_spare_stats(p, name)
    gen_spare_cs(p, name)
    if stamps:
        p.stamp(5)
        p.nstamp = 6
        p.stamp_flush(STAMP_OFF, ws="s[26:27]", tag="b")
    p(f"""
    {E}:
    s_endpgm
    """)
    return kernel_text(name, p, vgpr=224, sgpr=96, denorm=(0 if 'ftz' in exp else 3))

K1B_LAUNCH = f"grid=(256,1,1) block=(512,1,1) lds={LDS_K1 + 64}"
if __name__ == "__main__":
    import sys
    s = f"; @launch kernel=k1_kernel {K1B_LAUNCH}\n" + '.amdgcn_target "amdgcn-amd-amdhsa--gfx950"\n.text\n' + gen_k1b(stamps=(len(sys.argv) > 2), exp=(sys.argv[2] if len(sys.argv) > 2 else ''))
    open(sys.argv[1], "w").write(s)
```

```python
from asmtool import *
from layout import *
from k2 import std_chain, gen_k2_stats, r4, r2

class VM:
    def __init__(self, p): self.p = p; self.ops = []
    def issue(self, tag, n=1): self.ops += [tag] * n
    def count_after(self, tags):
        last = max(i for i, t in enumerate(self.ops) if t in tags)
        return len(self.ops) - 1 - last
    def wait(self, *tags, extra=""):
        n = self.count_after(set(tags))
        assert n <= 63
        self.p(f"s_waitcnt vmcnt({n}){extra}")

def gen_gemm(p, name, exp="", merged=False):
    NSLOT = 6; SLOT = 24576; EBASE = NSLOT * SLOT
    def ACC(k, mt, nt): return 96 + (0 if k == "g" else 32) + 16*mt + 4*nt
    def SET(s, nm): return 32 + 32*s + {"G0": 0, "G1": 4, "U0": 8, "U1": 12, "X0": 16, "X1": 20, "X2": 24, "X3": 28}[nm]
    E = f"L_{name}_end"
    XSC = "sc1" if (merged and "xplain" not in exp) else ""
    S2SLP = next((int(t[len("s2slp"):]) for t in exp.split("_") if t.startswith("s2slp") and t[len("s2slp"):].isdigit()), 1)
    S3SLP = next((int(t[len("s3slp"):]) for t in exp.split("_") if t.startswith("s3slp") and t[len("s3slp"):].isdigit()), 1)
    p(f"""
    s_sub_u32 s3, s2, 32
    s_and_b32 s34, s3, 7                      ; xcd
    s_lshr_b32 s35, s3, 3                     ; j
    s_and_b32 s36, s34, 3
    s_lshl_b32 s36, s36, 2
    s_and_b32 s37, s35, 3
    s_add_u32 s36, s36, s37                   ; rt
    s_lshr_b32 s59, s34, 2                    ; ch
    s_mul_i32 s37, s59, 7
    s_lshr_b32 s60, s35, 2                    ; dc (0..6)
    s_add_u32 s37, s37, s60                   ; ct
    s_and_b32 s38, s33, 3
    s_lshr_b32 s39, s33, 2                    ; th
    v_lshrrev_b32 v4, 4, v1                   ; l>>4
    s_lshr_b32 s40, s33, 1
    s_and_b32 s40, s40, 1
    s_lshl_b32 s40, s40, 2
    v_or_b32 v5, s40, v4
    v_lshlrev_b32 v5, 1, v5
    v_and_b32 v6, 15, v1
    v_xor_b32 v5, v5, v6                      ; usrc
    v_lshlrev_b32 v5, 4, v5                   ; usrc*16
    s_lshl_b32 s40, s33, 2
    v_add_u32 v4, s40, v4                     ; row_local
    v_lshlrev_b32 v2, 12, v4                  ; *4096
    s_lshl_b32 s40, s36, 8
    v_add3_u32 v2, v2, v5, s40                ; vX
    s_movk_i32 s41, 3584
    v_mul_lo_u32 v3, v4, s41
    s_lshl_b32 s40, s37, 8
    v_add3_u32 v3, v3, v5, s40                ; vW
    s_lshl_b32 s42, s33, 10
    s_mov_b32 s50, {32*4096}
    s_mov_b32 s51, {32*3584}
    s_mov_b32 s18, {HT_BYTES}
    s_mov_b32 s19, 0x20000
    s_mov_b32 s22, {W_BYTES}
    s_mov_b32 s23, 0x20000
    s_mov_b32 s26, {W_BYTES}
    s_mov_b32 s27, 0x20000
    v_lshrrev_b32 v17, 4, v1
    v_lshlrev_b32 v17, 4, v17
    s_lshl_b32 s40, s37, 9
    s_lshl_b32 s41, s38, 7
    s_add_u32 s40, s40, s41
    s_add_u32 s40, s40, {CS_OFF}
    v_add_u32 v17, s40, v17
    v_add_u32 v18, {1792*4}, v17
    v_lshrrev_b32 v10, 3, v1
    s_lshl_b32 s40, s38, 3
    v_add_u32 v10, s40, v10
    s_movk_i32 s41, 896
    v_mul_lo_u32 v10, v10, s41
    v_lshrrev_b32 v11, 4, v1
    v_lshlrev_b32 v11, 1, v11
    v_and_b32 v12, 7, v1
    v_xor_b32 v11, v11, v12
    v_lshlrev_b32 v11, 4, v11
    s_lshl_b32 s40, s60, 7
    v_add3_u32 v10, v10, v11, s40             ; vWd
    v_lshrrev_b32 v14, 4, v1                  ; kg
    v_bfe_u32 v11, v1, 2, 2                   ; rr
    v_lshl_add_u32 v12, v14, 3, v11
    v_lshlrev_b32 v12, 8, v12                 ; (8kg+rr)*256
    v_and_b32 v13, 3, v1
    v_lshl_add_u32 v12, v13, 3, v12           ; + 8cc
    v_and_b32 v14, 1, v14
    v_lshl_or_b32 v11, v14, 2, v11            ; f
    """)
    for i in range(2):
        p(f"""
        s_lshl_b32 s40, s38, 1
        s_add_u32 s40, s40, {i}
        v_xor_b32 v13, s40, v11
        v_lshl_add_u32 v{4+i}, v13, 5, v12
        """)
    for i in range(4):
        p(f"""
        s_lshl_b32 s40, s39, 2
        s_add_u32 s40, s40, {i}
        v_xor_b32 v13, s40, v11
        v_lshl_add_u32 v{6+i}, v13, 5, v12
        """)
    for i in range(6): p(f"v_add_u32 v{20+i}, {SLOT}, v{4+i}")
    p(f"""
    s_mov_b32 s30, {HF_BYTES}
    s_mov_b32 s31, 0x20000
    s_waitcnt lgkmcnt(0)
    """)
    early_w = merged and "lateW" not in exp
    if merged:
        p("s_waitcnt vmcnt(0)")
        if "s2" in exp: p.stamp(12)
        p("s_barrier")
        p(f"""
        s_cmp_lg_u32 s33, 0
        s_cbranch_scc1 L_{name}_s2na
        s_and_b32 s40, s2, 7
        s_lshl_b32 s40, s40, 7
        s_add_u32 s41, s40, {S2A_OFF}
        v_mov_b32 v12, s41
        v_mov_b32 v13, 1
        s_mov_b64 s[56:57], exec
        s_mov_b64 exec, 1
        global_atomic_add v14, v12, v13, s[12:13] sc0 sc1
        s_mov_b64 exec, s[56:57]
        L_{name}_s2na:
        """)
        def early_block():
            for c in range(3):
                p(f"""
                s_add_u32 m0, s42, {c*SLOT + 8192}
                s_nop 0
                buffer_load_dwordx4 v3, s[20:23], 0 offen lds
                s_add_u32 m0, s42, {c*SLOT + 16384}
                s_nop 0
                buffer_load_dwordx4 v3, s[24:27], 0 offen lds
                v_add_u32 v3, s51, v3
                """)
        if early_w:
            p(f"""
            s_mov_b32 s20, s8
            s_mov_b32 s21, s9
            s_mov_b32 s24, s10
            s_mov_b32 s25, s11
            s_cmp_eq_u32 s33, 0
            s_cbranch_scc1 L_{name}_s2ne
            """)
            early_block()
            p(f"L_{name}_s2ne:")
        if "s2" in exp: p.stamp(13)
        p(f"""
        s_cmp_lg_u32 s33, 0
        s_cbranch_scc1 L_{name}_s2w

        s_waitcnt vmcnt(0)
        v_readfirstlane_b32 s41, v14
        s_cmp_lg_u32 s41, 27
        s_cbranch_scc1 L_{name}_s2nl
        v_lshlrev_b32 v12, 7, v1
        v_add_u32 v12, {S2T_OFF}, v12
        s_mov_b64 exec, 0xff
        global_atomic_add v12, v13, s[12:13] sc1
        s_mov_b64 exec, s[56:57]
        L_{name}_s2nl:
        s_add_u32 s41, s40, {S2T_OFF}
        v_mov_b32 v12, s41
        s_mov_b32 s58, 0
        L_{name}_s2p:
        global_load_dword v13, v12, s[12:13] sc1
        s_waitcnt vmcnt(0)
        v_readfirstlane_b32 s41, v13
        s_add_u32 s58, s58, 1
        s_cmp_ge_u32 s41, 8
        s_cbranch_scc1 L_{name}_s2w
        s_cmp_ge_u32 s58, 0x40000
        s_cbranch_scc1 L_{name}_s2w
        {f"s_sleep {S2SLP}" if S2SLP else ""}
        s_branch L_{name}_s2p
        L_{name}_s2w:
        s_barrier
        """)
        if early_w:
            p(f"s_cmp_lg_u32 s33, 0\ns_cbranch_scc1 L_{name}_s2nf")
            early_block()
            p(f"L_{name}_s2nf:")
    p.stamp()
    p(f"""
    s_add_u32 s16, s12, {HT_OFF}
    s_addc_u32 s17, s13, 0
    s_mov_b32 s20, s8
    s_mov_b32 s21, s9
    s_mov_b32 s24, s10
    s_mov_b32 s25, s11
    """)
    def dma_parts(base):
        return [
            f"s_mov_b32 m0, {base}\ns_add_u32 s45, {base}, 8192\nbuffer_load_dwordx4 v2, s[16:19], 0 offen {XSC} lds",
            f"s_mov_b32 m0, s45\ns_add_u32 s45, {base}, 16384\nbuffer_load_dwordx4 v3, s[20:23], 0 offen lds\nv_add_u32 v2, s50, v2",
            f"s_mov_b32 m0, s45\ns_nop 0\nbuffer_load_dwordx4 v3, s[24:27], 0 offen lds\nv_add_u32 v3, s51, v3",
        ]
    PRE = NSLOT - 1
    PRE0 = 3
    for c in range(PRE0):
        if early_w:
            p(f"""
            s_add_u32 m0, s42, {c*SLOT}
            s_nop 0
            buffer_load_dwordx4 v2, s[16:19], 0 offen {XSC} lds
            v_add_u32 v2, s50, v2
            """)
        else:
            p(f"s_add_u32 s44, s42, {c*SLOT}")
            for d in dma_parts("s44"): p(d)
        if "pro" in exp and c == 0: p.stamp(13)
    if "pro" in exp: p.stamp(14)
    p(f"""
    s_add_u32 s28, s12, {HF_OFF}
    s_addc_u32 s29, s13, 0
    s_mov_b32 s8, s4
    s_mov_b32 s9, s5
    s_mov_b32 s10, {W_BYTES}
    s_mov_b32 s11, 0x20000
    s_mov_b32 s4, s6
    s_mov_b32 s5, s7
    s_mov_b32 s6, {X_BYTES}
    s_mov_b32 s7, 0x20000
    """)
    def rd(s, nm, h, abase=None):
        if abase is None: abase = 20 + 6*(1 - s)
        if nm[0] == "G": areg, sub = abase + int(nm[1]), 8192
        elif nm[0] == "U": areg, sub = abase + int(nm[1]), 16384
        else: areg, sub = abase + 2 + int(nm[1]), 0
        b = SET(s, nm) + 2*h
        return f"ds_read_b64_tr_b16 {r2(b)}, v{areg} offset:{sub + 1024*h}"
    def mf(s, k, mt, nt, zero=False):
        acc = ACC(k, mt, nt)
        a = SET(s, ("G" if k == "g" else "U") + str(mt)); b = SET(s, f"X{nt}")
        return f"v_mfma_f32_16x16x32_bf16 {r4(acc)}, {r4(a)}, {r4(b)}, " + ("0" if zero else r4(acc))
    RD_ORDER = ["G0", "X0", "U0", "X1", "G1", "U1", "X2", "X3"]
    MF_ORDER = [("g",0,0), ("u",0,0), ("g",0,1), ("u",0,1), ("g",1,0), ("g",1,1), ("u",1,0), ("u",1,1),
                ("g",0,2), ("u",0,2), ("g",1,2), ("u",1,2), ("g",0,3), ("u",0,3), ("g",1,3), ("u",1,3)]
    need_rd = {"G0": 1, "X0": 3, "U0": 5, "X1": 7, "G1": 9, "U1": 11, "X2": 13, "X3": 15}
    if "pro" in exp: p.stamp(15)
    p(f"""
    s_waitcnt vmcnt({(PRE0-1) if early_w else 3*(PRE0-1)})
    """)
    if "pro" in exp: p.stamp(12)
    p("s_barrier")
    p.stamp()
    for nm in RD_ORDER:
        for h in range(2): p(rd(0, nm, h, abase=4))
    def chunk(s, vmw, dp, last=False, static_c=None, hooks={}, zero=False, dpos=(2, 5, 8), va0=10):
        reads = [] if last else [rd(1 - s, nm, h) for nm in RD_ORDER for h in range(2)]
        done = -1
        other = 20 + 6*(1 - s)
        for i in range(16):
            k, mt, nt = MF_ORDER[i]
            need = max(need_rd[("G" if k == "g" else "U") + str(mt)], need_rd[f"X{nt}"])
            if need > done:
                allowed = (15 - need) + (0 if last else i)
                if not ("xnolgkm" in exp and static_c is None): p(f"s_waitcnt lgkmcnt({min(allowed, 15)})")
                done = need
            p(mf(s, k, mt, nt, zero))
            xp = (static_c is None)
            if i == 0:
                if not (xp and "xnodma" in exp): vmw()
                if not (xp and "xnobar" in exp): p("s_barrier")
            if not last and not (xp and "xnoread" in exp): p(reads[i])
            if i in dpos and not (xp and "xnodma" in exp): dp(dpos.index(i))
            if i in hooks: hooks[i]()
            if va0 <= i <= va0 + 5 and not last:
                if static_c is None:
                    if "xnovadd" not in exp: p(f"v_add_u32 v{other + i - va0}, s53, v{4 + i - va0}")
                elif static_c + 2 <= 13: p(f"v_add_u32 v{other + i - va0}, {((static_c + 2) % NSLOT)*SLOT}, v{4 + i - va0}")
            if i == min(15, max(dpos) + 1) and static_c is None:
                p(f"""
                s_add_u32 s54, s54, {SLOT}
                s_sub_u32 s55, s54, s42
                s_cmp_eq_u32 s55, {NSLOT*SLOT}
                s_cselect_b32 s54, s42, s54
                """)
        if static_c is None:
            p(f"""
            s_add_u32 s53, s53, {SLOT}
            s_cmp_eq_u32 s53, {NSLOT*SLOT}
            s_cselect_b32 s53, 0, s53
            """)
    VMS = []; cur_vm = [None]
    def kstep_soff(s): return s * 32 * 896
    def wd_piece(lds_base, s_th0, s_th1, tag):
        a, b = kstep_soff(s_th0), kstep_soff(s_th1)
        p(f"""
        s_mul_i32 s46, s39, {b - a}
        s_add_u32 m0, s42, {lds_base}
        s_add_u32 s46, s46, {a}
        buffer_load_dwordx4 v10, s[8:11], s46 offen lds
        """)
        cur_vm[0].issue(tag)
    stage = [(kq, n) for kq in range(4) for n in range(4)]
    def stage_ks(i): return 14*stage[i][0] + stage[i][1]
    def final_ks(L): return 14*(L // 10) + 4 + (L % 10)
    def g1_main(var):
        early = (var == 0)
        DP3 = (2, 5, 8) if early else (10, 12, 14)
        DP6 = (1, 3, 5, 7, 9, 11) if early else (3, 5, 7, 9, 11, 13)
        VA3 = 10 if early else 2
        VA6 = 10 if early else 10
        HK = 11 if early else 4
        for c in range(2):
            parts = dma_parts("s44")
            def dp(j, c=c, parts=parts):
                n = 3 + 2*c + j // 3
                if j % 3 == 0: p(f"s_add_u32 s44, s42, {(n % NSLOT)*SLOT}")
                p(parts[j % 3])
            chunk(c, (lambda c=c: p(f"s_waitcnt vmcnt({1 if (early_w and c == 0) else 3*(1 + c)})")), dp, static_c=c, zero=(c == 0), dpos=DP6, va0=VA6)
        if "g1st" in exp: p.stamp(12)
        p(f"""
        s_mov_b32 s48, 0                          ; iteration
        s_mov_b32 s53, {4*SLOT}
        s_add_u32 s54, s42, {1*SLOT}
        L_{name}_loop{var}:
        """)
        loop_dp = dma_parts("s54")
        def spread_chunk(s):
            reads = [rd(1 - s, nm, h) for nm in RD_ORDER for h in range(2)]
            other = 20 + 6*(1 - s)
            va = [f"v_add_u32 v{other + i}, s53, v{4 + i}" for i in range(6)]
            extra = {
                1: ["s_mov_b32 m0, s54"],
                2: [f"buffer_load_dwordx4 v2, s[16:19], 0 offen {XSC} lds"],
                3: ["s_add_u32 m0, s54, 8192", "v_add_u32 v2, s50, v2"],
                4: ["buffer_load_dwordx4 v3, s[20:23], 0 offen lds"],
                5: ["s_add_u32 m0, s54, 16384"],
                6: ["buffer_load_dwordx4 v3, s[24:27], 0 offen lds"],
                7: ["v_add_u32 v3, s51, v3", f"s_add_u32 s54, s54, {SLOT}"],
                8: ["s_sub_u32 s55, s54, s42"],
                9: [f"s_cmp_eq_u32 s55, {NSLOT*SLOT}", "s_cselect_b32 s54, s42, s54", va[0]],
                10: [va[1], va[2]],
                11: [va[3], va[4]],
                12: [va[5]],
                13: [f"s_add_u32 s53, s53, {SLOT}"],
                14: [f"s_cmp_eq_u32 s53, {NSLOT*SLOT}", "s_cselect_b32 s53, 0, s53"],
            }
            done = -1
            for i in range(16):
                k, mt, nt = MF_ORDER[i]
                need = max(need_rd[("G" if k == "g" else "U") + str(mt)], need_rd[f"X{nt}"])
                if need > done:
                    p(f"s_waitcnt lgkmcnt({min((15 - need) + i, 15)})")
                    done = need
                p(mf(s, k, mt, nt))
                if i == 0:
                    p(f"s_waitcnt vmcnt({3*(PRE-2)})"); p("s_barrier")
                p(reads[i])
                for x in extra.get(i, []): p(x)
        for s in range(2):
            if "nospread" not in exp: spread_chunk(s)
            else: chunk(s, lambda: p(f"s_waitcnt vmcnt({3*(PRE-2)})"), lambda j: p(loop_dp[j]), dpos=DP3, va0=VA3)
        p(f"""
        s_add_u32 s48, s48, 1
        s_cmp_lt_u32 s48, 3
        s_cbranch_scc1 L_{name}_loop{var}
        """)
        if "g1st" in exp: p.stamp(13)
        vm = VM(p); VMS.append(vm); cur_vm[0] = vm
        for c in range(13): vm.issue(f"c{c}", 3)
        for j in range(2):
            wd_piece(EBASE + 8192*j, stage_ks(2*j), stage_ks(2*j + 1), "E")
        def tail_dp(c):
            if c == 8:
                parts = dma_parts("s44")
                def f(j):
                    if j == 0: p(f"s_add_u32 s44, s42, {(13 % NSLOT)*SLOT}")
                    p(parts[j]); vm.issue("c13")
                return f
            slot = (c - 1) % NSLOT
            def f(j):
                b0 = 2*j
                if c == 9:   ks = (stage_ks(4 + b0), stage_ks(4 + b0 + 1))
                elif c == 10: ks = (stage_ks(10 + b0), stage_ks(10 + b0 + 1))
                else:        ks = (final_ks(6*slot + b0), final_ks(6*slot + b0 + 1))
                wd_piece(slot*SLOT + 8192*j, ks[0], ks[1], f"w{c}")
            return f
        def stats_addr():
            p(f"""
            v_and_b32 v11, 15, v1
            s_lshl_b32 s40, s36, 7
            s_lshl_b32 s41, s39, 6
            s_add_u32 s40, s40, s41
            v_add_u32 v11, s40, v11
            v_lshlrev_b32 v11, 3, v11
            v_add_u32 v11, {ST2_OFF}, v11
            """)
        def cs_loads():
            p(f"""
            global_load_dwordx4 v[160:163], v17, s[12:13] {XSC}
            global_load_dwordx4 v[164:167], v17, s[12:13] offset:64 {XSC}
            global_load_dwordx4 v[168:171], v18, s[12:13] {XSC}
            global_load_dwordx4 v[172:175], v18, s[12:13] offset:64 {XSC}
            """)
            vm.issue("cs", 4)
        def stats_loads():
            for nt in range(4):
                p(f"global_load_dwordx2 {r2(176+2*nt)}, v11, s[12:13] offset:{128*nt} sc1")
            vm.issue("st", 4)
        for c in range(8, 14):
            last = (c == 13)
            vmw = (lambda c=c: vm.wait(f"c{c+1}")) if c < 13 else (lambda: None)
            hooks = {}
            if c == 9: hooks = {HK: cs_loads}
            if c == 11: hooks = {HK: stats_addr}
            if c == 12: hooks = {HK: stats_loads}
            chunk(c & 1, vmw, tail_dp(c), last=last, static_c=c, hooks=hooks, dpos=DP3, va0=VA3)
            if "g1st" in exp and c == 10: p.stamp(14)

    if "noprio" not in exp:
        p(f"s_cmp_eq_u32 s39, {0 if 'prioL' in exp else 1}\ns_cbranch_scc0 L_{name}_np\ns_setprio 1\nL_{name}_np:")
    if "stag" not in exp:
        g1_main(0)
    else:
        p(f"s_cmp_lg_u32 s39, 0\ns_cbranch_scc1 L_{name}_g1b")
        g1_main(0)
        p(f"s_branch L_{name}_g1e\nL_{name}_g1b:")
        g1_main(1)
        p(f"L_{name}_g1e:")
    class MVM:
        def issue(self, tag, n=1):
            for v in VMS: v.issue(tag, n)
        def wait(self, *tags, extra=""):
            n = min(v.count_after(set(tags)) for v in VMS)
            p(f"s_waitcnt vmcnt({n}){extra}")
    vm = MVM(); cur_vm[0] = vm
    p.stamp()
    vm.wait("st", "cs")
    p(f"""
    s_mov_b32 s58, 0
    L_{name}_poll:
    v_max_u32 v184, v176, v177
    v_max3_u32 v184, v184, v178, v179
    v_max3_u32 v184, v184, v180, v181
    v_max3_u32 v184, v184, v182, v183
    """)
    if merged:
        for r in range(160, 176, 2): p(f"v_max3_u32 v184, v184, v{r}, v{r+1}")
    p(f"""
    v_cmp_eq_u32 vcc, -1, v184
    s_add_u32 s58, s58, 1
    s_cmp_ge_u32 s58, 0x40000
    s_cbranch_scc1 L_{name}_got
    s_cbranch_vccz L_{name}_got
    s_sleep 2
    global_load_dwordx2 v[176:177], v11, s[12:13] sc1
    global_load_dwordx2 v[178:179], v11, s[12:13] offset:128 sc1
    global_load_dwordx2 v[180:181], v11, s[12:13] offset:256 sc1
    global_load_dwordx2 v[182:183], v11, s[12:13] offset:384 sc1
    global_load_dwordx4 v[160:163], v17, s[12:13] {XSC}
    global_load_dwordx4 v[164:167], v17, s[12:13] offset:64 {XSC}
    global_load_dwordx4 v[168:171], v18, s[12:13] {XSC}
    global_load_dwordx4 v[172:175], v18, s[12:13] offset:64 {XSC}
    s_waitcnt vmcnt(0)
    s_branch L_{name}_poll
    L_{name}_got:
    s_mov_b32 s40, 0xbfb8aa3b                 ; -log2(e)
    """)
    for nt in range(4):
        m, r = 176 + 2*nt, 177 + 2*nt
        p(f"""
        v_mul_f32 v{184+2*nt}, s40, v{r}
        v_mul_f32 v{192+2*nt}, -v{r}, v{m}
        v_mul_f32 v{185+2*nt}, -v{184+2*nt}, v{m}
        """)
    p(f"""
    s_lshl_b32 s40, s36, 3
    s_lshl_b32 s41, s39, 2
    s_add_u32 s40, s40, s41
    s_mul_i32 s40, s40, 56
    s_lshl_b32 s41, s37, 2
    s_add_u32 s40, s40, s41
    s_add_u32 s40, s40, s38
    s_lshl_b32 s40, s40, 10
    v_lshl_add_u32 v11, v1, 4, s40
    s_mov_b32 s41, 0
    """)
    p.stamp()
    CSG = 160; CSU = 168
    for nt in range(4):
        ab, rb, st = 184 + 2*nt, 192 + 2*nt, 176 + 2*nt
        out = 200 + 4*nt
        for mt in range(2):
            g = ACC("g", mt, nt); u = ACC("u", mt, nt)
            for r in (0, 2):
                p(f"v_pk_mul_f32 {r2(g+r)}, {r2(g+r)}, {r2(ab)} op_sel_hi:[1,0]")
                p(f"v_pk_mul_f32 {r2(u+r)}, {r2(u+r)}, {r2(st)} op_sel:[0,1] op_sel_hi:[1,1]")
        for mt in range(2):
            g = ACC("g", mt, nt); u = ACC("u", mt, nt)
            for r in (0, 2):
                p(f"v_pk_fma_f32 {r2(g+r)}, {r2(CSG+4*mt+r)}, {r2(ab)}, {r2(g+r)} op_sel:[0,1,0] op_sel_hi:[1,1,1]")
                p(f"v_pk_fma_f32 {r2(u+r)}, {r2(CSU+4*mt+r)}, {r2(rb)}, {r2(u+r)} op_sel_hi:[1,0,1]")
        for mt in range(2):
            g = ACC("g", mt, nt)
            for r in range(4): p(f"v_exp_f32 v{g+r}, v{g+r}")
        for mt in range(2):
            g = ACC("g", mt, nt)
            for r in (0, 2): p(f"v_pk_add_f32 {r2(g+r)}, {r2(g+r)}, 1.0 op_sel_hi:[1,0]")
        for mt in range(2):
            g = ACC("g", mt, nt)
            for r in range(4): p(f"v_rcp_f32 v{g+r}, v{g+r}")
        for mt in range(2):
            g = ACC("g", mt, nt); u = ACC("u", mt, nt)
            for r in (0, 2): p(f"v_pk_mul_f32 {r2(u+r)}, {r2(u+r)}, {r2(g+r)}")
        for mt in range(2):
            u = ACC("u", mt, nt)
            p(f"v_cvt_pk_bf16_f32 v{out+2*mt}, v{u}, v{u+1}")
            p(f"v_cvt_pk_bf16_f32 v{out+2*mt+1}, v{u+2}, v{u+3}")
        p(f"buffer_store_dwordx4 {r4(out)}, v11, s[28:31], s41 offen sc1")
        vm.issue("hs")
        p(f"s_add_u32 s41, s41, {56*1024}")
    p.stamp()
    vm.wait("E", "w9", "w10")
    p("s_barrier")
    for j in range(3):
        wd_piece(1*SLOT + 8192*j, final_ks(6 + 2*j), final_ks(6 + 2*j + 1), "wf")
    p(f"""
    v_lshrrev_b32 v14, 4, v1                  ; kg
    v_bfe_u32 v15, v1, 2, 2                   ; rr
    v_lshl_add_u32 v12, v14, 2, v15
    v_lshlrev_b32 v12, 7, v12
    v_and_b32 v13, 3, v1
    v_lshl_add_u32 v12, v13, 3, v12
    v_and_b32 v14, 1, v14
    v_lshrrev_b32 v15, 1, v15
    v_lshl_or_b32 v15, v14, 1, v15            ; g3
    v_xor_b32 v15, s38, v15                   ; g3 ^ kq
    s_lshl_b32 s40, s38, 2
    s_add_u32 s40, s40, 8
    s_lshl_b32 s40, s40, 12                   ; (8 + 4kq)*4096
    s_cmp_eq_u32 s38, 0
    s_cselect_b32 s40, {EBASE}, s40           ; staging base
    s_mul_i32 s41, s38, 40960
    """)
    for j in range(4):
        p(f"""
        v_xor_b32 v13, {j}, v15
        v_lshl_add_u32 v13, v13, 5, v12
        v_add_u32 v{20+j}, s40, v13
        v_add_u32 v{24+j}, s41, v13
        """)
    for n in range(4):
        for j in range(4):
            b = 32 + 16*n + 4*j
            p(f"ds_read_b64_tr_b16 {r2(b)}, v{20+j} offset:{n*4096}")
            p(f"ds_read_b64_tr_b16 {r2(b+2)}, v{20+j} offset:{n*4096 + 2048}")
    p(f"""
    s_lshl_b32 s40, s36, 1
    s_add_u32 s40, s40, s59                   ; rt2
    s_lshl_b32 s41, s40, 2
    s_lshl_b32 s43, s39, 1
    s_add_u32 s41, s41, s43                   ; T16(nt=0)
    s_mul_i32 s43, s41, 56
    s_mul_i32 s44, s38, 14
    s_add_u32 s43, s43, s44
    s_lshl_b32 s43, s43, 10
    v_lshl_add_u32 v2, v1, 4, s43             ; vH0
    v_add_u32 v3, {56*1024}, v2               ; vH1
    v_and_b32 v4, 15, v1
    s_lshl_b32 s41, s41, 4                    ; t0
    v_add_u32 v4, s41, v4                     ; t (nt=0)
    s_lshl_b32 s43, s60, 6
    s_lshl_b32 s44, s38, 4
    s_add_u32 s43, s43, s44
    v_lshrrev_b32 v5, 4, v1                   ; rg
    v_lshlrev_b32 v6, 2, v5
    v_add_u32 v6, s43, v6
    v_lshlrev_b32 v6, 12, v6
    v_lshl_add_u32 v6, v4, 1, v6              ; vRes
    v_and_b32 v7, 1, v5
    v_lshl_add_u32 v4, v7, 4, v4
    s_movk_i32 s44, 896
    v_mul_lo_u32 v4, v4, s44
    v_lshrrev_b32 v5, 1, v5
    v_lshlrev_b32 v5, 4, v5
    s_lshl_b32 s43, s43, 1
    v_add3_u32 v7, v4, v5, s43                ; vOut
    s_lshl_b32 s40, s36, 7
    s_add_u32 s40, s40, {CNT_OFF}
    v_mov_b32 v8, s40
    """)
    sent = merged and "usesent" in exp
    if sent:
        p("s_waitcnt lgkmcnt(0)")
        p("s_barrier")
        p.stamp()
        for j in range(8):
            if j < 6: base, L0 = 12*4096 + 8192*j, 12 + 2*j
            else: base, L0 = EBASE + 8192*(j - 6), 36 + 2*(j - 6)
            wd_piece(base, final_ks(L0), final_ks(L0 + 1), "wr")
        for i in range(8):
            nt, r = i >> 2, i & 3
            p(f"s_mov_b32 s40, {r*4096 + nt*32}")
            p(f"buffer_load_ushort v{12 + i}, v6, s[16:19], s40 offen {XSC}")
        p("s_mov_b32 s58, 0")
        p.stamp()
    else:
        vm.wait("hs", extra=" lgkmcnt(0)")
        p("s_barrier")
        p.stamp()
        p(f"""
        s_cmp_lg_u32 s33, 0
        s_cbranch_scc1 L_{name}_noarr
        v_mov_b32 v9, 1
        s_mov_b64 s[56:57], exec
        s_mov_b64 exec, 1
        global_atomic_add v8, v9, s[12:13] sc1
        s_mov_b64 exec, s[56:57]
        L_{name}_noarr:
        """)
        for j in range(8):
            if j < 6: base, L0 = 12*4096 + 8192*j, 12 + 2*j
            else: base, L0 = EBASE + 8192*(j - 6), 36 + 2*(j - 6)
            wd_piece(base, final_ks(L0), final_ks(L0 + 1), "wr")
        for i in range(8):
            nt, r = i >> 2, i & 3
            p(f"s_mov_b32 s40, {r*4096 + nt*32}")
            p(f"buffer_load_ushort v{12 + i}, v6, s[16:19], s40 offen {XSC}")
        p(f"""
        s_cmp_lg_u32 s33, 0
        s_cbranch_scc1 L_{name}_nopoll
        s_mov_b32 s58, 0
        L_{name}_poll2:
        global_load_dword v9, v8, s[12:13] sc1
        s_waitcnt vmcnt(0)
        v_readfirstlane_b32 s40, v9
        s_add_u32 s58, s58, 1
        s_cmp_ge_u32 s40, 14
        s_cbranch_scc1 L_{name}_nopoll
        s_cmp_ge_u32 s58, 0x40000
        s_cbranch_scc1 L_{name}_nopoll
        {f"s_sleep {S3SLP}" if S3SLP else ""}
        s_branch L_{name}_poll2
        L_{name}_nopoll:
        {"" if "b4late" in exp else "s_waitcnt vmcnt(0)"}
        s_barrier                                 ; B4
        """)
        p.stamp()

    if "g2prio0" in exp: p("s_setprio 0")
    HB = 96; A2 = 208; AB = [240, 32, 48]
    def ACC2(j, nt): return A2 + 8*j + 4*nt
    vm2 = VM(p)
    HD = 3
    for tok in exp.split("_"):
        if tok.startswith("hd"): HD = int(tok[2:])
    def h_issue(n):
        p(f"s_mov_b32 s40, {n*1024}")
        p(f"buffer_load_dwordx4 {r4(HB + 8*n)}, v2, s[28:31], s40 offen sc1")
        p(f"buffer_load_dwordx4 {r4(HB + 8*n + 4)}, v3, s[28:31], s40 offen sc1")
        vm2.issue(f"h{n}", 2)
    for n in range(min(HD, 14)): h_issue(n)
    def abuf(n):
        if n < 4: return 32 + 16*n
        if n == 4: return 240
        return 32 + 16*((n - 5) % 2) if n >= 5 else None
    def a_reads(n):
        m = n - 4
        o = []
        for j in range(4):
            b = abuf(n) + 4*j
            o.append(f"ds_read_b64_tr_b16 {r2(b)}, v{24+j} offset:{m*4096}")
            o.append(f"ds_read_b64_tr_b16 {r2(b+2)}, v{24+j} offset:{m*4096 + 2048}")
        return o
    retries = []
    for n in range(14):
        vm2.wait(f"h{n}", extra=(" lgkmcnt(0)" if n >= 4 else ""))
        if sent:
            h = HB + 8*n
            p(f"""
            v_max3_u32 v9, v{h}, v{h+1}, v{h+2}
            v_max3_u32 v8, v{h+3}, v{h+4}, v{h+5}
            v_max3_u32 v9, v9, v{h+6}, v{h+7}
            v_max_u32 v9, v9, v8
            v_cmp_eq_u32 vcc, -1, v9
            s_nop 0
            s_cbranch_vccnz L_{name}_retry{n}
            L_{name}_back{n}:
            """)
            retries.append(n)
        if n == 3 and ("b4late" in exp or sent): p("s_barrier")
        nxt = a_reads(n + 1) if (n + 1 >= 4 and n + 1 < 14) else []
        k = 0
        for nt in range(2):
            for j in range(4):
                c_in = "0" if n == 0 else r4(ACC2(j, nt))
                p(f"v_mfma_f32_16x16x32_bf16 {r4(ACC2(j, nt))}, {r4(abuf(n) + 4*j)}, {r4(HB + 8*n + 4*nt)}, {c_in}")
                if k < len(nxt): p(nxt[k])
                k += 1
                if k == 2 and n + HD < 14: h_issue(n + HD)
    p.stamp()
    p(f"""
    s_barrier
    v_lshlrev_b32 v9, 4, v1
    """)
    for j in range(1, 4):
        p(f"""
        s_xor_b32 s40, s33, {j}
        s_mul_i32 s40, s40, {3*2048}
        s_add_u32 s40, s40, {(j-1)*2048}
        v_add_u32 v10, s40, v9
        ds_write_b128 v10, {r4(ACC2(j, 0))}
        ds_write_b128 v10, {r4(ACC2(j, 1))} offset:1024
        """)
    p(f"""
    s_mul_i32 s40, s33, {3*2048}
    v_add_u32 v10, s40, v9
    s_waitcnt lgkmcnt(0)
    s_barrier
    """)
    for k in range(3):
        p(f"ds_read_b128 {r4(32 + 8*k)}, v10 offset:{k*2048}")
        p(f"ds_read_b128 {r4(36 + 8*k)}, v10 offset:{k*2048 + 1024}")
    for i in range(8): p(f"v_lshlrev_b32 v{12+i}, 16, v{12+i}")
    for k in range(3):
        p(f"s_waitcnt lgkmcnt({4 - 2*k})")
        for q in range(4):
            p(f"v_pk_add_f32 {r2(A2 + 2*q)}, {r2(A2 + 2*q)}, {r2(32 + 8*k + 2*q)}")
    for q in range(4): p(f"v_cvt_pk_bf16_f32 v{56+q}, v{A2 + 2*q}, v{A2 + 2*q + 1}")
    for q in range(4):
        p(f"v_lshlrev_b32 v{A2 + 2*q}, 16, v{56+q}")
        p(f"v_and_b32 v{A2 + 2*q + 1}, 0xffff0000, v{56+q}")
    for q in range(4): p(f"v_pk_add_f32 {r2(A2 + 2*q)}, {r2(A2 + 2*q)}, {r2(12 + 2*q)}")
    for q in range(4): p(f"v_cvt_pk_bf16_f32 v{56+q}, v{A2 + 2*q}, v{A2 + 2*q + 1}")
    osc = "sc1" if "osc1" in exp else "nt" if "ont" in exp else "sc0 sc1" if "osys" in exp else ""
    p(f"""
    v_permlane16_swap_b32 v56, v58
    v_permlane16_swap_b32 v57, v59
    buffer_store_dwordx4 v[56:59], v7, s[4:7], 0 offen {osc}
    """)
    p.stamp()
    if retries:
        p(f"s_branch L_{name}_done")
        for n in retries:
            h = HB + 8*n
            p(f"""
            L_{name}_retry{n}:
            s_add_u32 s58, s58, 1
            s_cmp_ge_u32 s58, 0x40000
            s_cbranch_scc1 L_{name}_back{n}
            s_sleep 1
            s_mov_b32 s40, {n*1024}
            buffer_load_dwordx4 {r4(h)}, v2, s[28:31], s40 offen sc1
            buffer_load_dwordx4 {r4(h+4)}, v3, s[28:31], s40 offen sc1
            s_waitcnt vmcnt(0)
            v_max3_u32 v9, v{h}, v{h+1}, v{h+2}
            v_max3_u32 v8, v{h+3}, v{h+4}, v{h+5}
            v_max3_u32 v9, v9, v{h+6}, v{h+7}
            v_max_u32 v9, v9, v8
            v_cmp_eq_u32 vcc, -1, v9
            s_nop 0
            s_cbranch_vccnz L_{name}_retry{n}
            s_branch L_{name}_back{n}
            """)
        p(f"L_{name}_done:")

def gen_k23(name="k23_kernel", stamps=False, exp=""):
    p = Prog(); p.stamps_on = stamps
    if 'cyc' in exp: p.stamp_op = 's_memtime'
    if 'wl' in exp: p.stamp_tid = 448
    E = f"L_{name}_end"
    p(f"""
    s_cmp_ge_u32 s2, 256
    s_cbranch_scc1 {E}
    """)
    p.stamp()
    p(f"""
    s_load_dwordx4 s[8:11], s[0:1], 80
    s_load_dwordx2 s[12:13], s[0:1], 120      ; ws
    s_load_dwordx4 s[4:7], s[0:1], 96
    v_lshrrev_b32 v2, 6, v0
    v_and_b32 v1, 63, v0                      ; lane
    v_readfirstlane_b32 s33, v2
    s_cmp_lt_u32 s2, 32
    s_cbranch_scc1 L_{name}_stats
    """)
    gen_gemm(p, name, exp)
    p.stamp_flush(STAMP_OFF + 0x4000)
    p(f"s_branch {E}")
    p(f"L_{name}_stats:")
    gen_k2_stats(p, name, tail=("" if "nowarm" in exp else "warm"))
    p(f"""
    {E}:
    s_endpgm
    """)
    return kernel_text(name, p, vgpr=256, sgpr=96)

K23_LAUNCH = "grid=(256,1,1) block=(512,1,1) lds=163840"
if __name__ == "__main__":
    import sys
    s = f"; @launch kernel=k23_kernel {K23_LAUNCH}\n" + '.amdgcn_target "amdgcn-amd-amdhsa--gfx950"\n.text\n' + gen_k23(stamps=(len(sys.argv) > 2), exp=(sys.argv[2] if len(sys.argv) > 2 else ''))
    open(sys.argv[1], "w").write(s)
```

```python
from asmtool import *
from layout import *
from k1b import gen_conv, gen_spare_stats, gen_spare_cs, r4
from k2 import gen_k2_stats
from k23 import gen_gemm

KNAME = "sequential_preLN__ssm_conv_s4__glu_gated_glu__prompt_kernel"

def gen_kall(name=KNAME, stamps=False, exp=""):
    p = Prog(); p.stamps_on = stamps; p.exp = exp
    if 'cyc' in exp: p.stamp_op = 's_memtime'
    if 'wl' in exp: p.stamp_tid = 448
    lab = "kall"
    E = f"L_{lab}_end"
    p(f"""
    s_cmp_ge_u32 s2, 256
    s_cbranch_scc1 {E}
    """)
    p.stamp()
    p(f"""
    s_load_dwordx16 s[4:19], s[0:1], 0
    s_load_dwordx2 s[20:21], s[0:1], 64
    s_load_dwordx4 s[24:27], s[0:1], 112
    s_load_dwordx4 s[28:31], s[0:1], 80
    v_lshrrev_b32 v2, 6, v0
    v_and_b32 v1, 63, v0
    v_readfirstlane_b32 s33, v2
    s_cmp_lt_u32 s2, 32
    s_cbranch_scc1 L_{lab}_spare
    s_sub_u32 s3, s2, 32
    """)
    p.warm_w = True
    p.sent_h = "usesent" in exp
    coarse = stamps and "k1st" not in exp
    if coarse: p.stamps_on = False
    gen_conv(p, lab, hsc="sc1")
    if coarse: p.stamps_on = True
    p.stamp()
    p(f"""
    s_load_dwordx4 s[8:11], s[0:1], 80
    s_load_dwordx2 s[12:13], s[0:1], 120      ; ws
    s_load_dwordx4 s[4:7], s[0:1], 96
    """)
    if stamps and not coarse: p.stamps_on = False
    gen_gemm(p, lab + "g", exp, merged=True)
    if stamps:
        p.stamps_on = True
        p.stamp_flush(STAMP_OFF + 0x4000)
    p(f"s_branch {E}")
    p(f"L_{lab}_spare:")
    so = p.stamps_on; p.stamps_on = stamps and "spst" in exp
    p.early_wd = "noearlywd" not in exp
    p("s_load_dwordx4 s[52:55], s[0:1], 96")
    gen_spare_stats(p, lab)
    p.stamp(5)
    gen_spare_cs(p, lab, sc1="sc1")
    p.stamp(6)
    if p.stamps_on:
        p.nstamp = 7
        p.stamp_flush(STAMP_OFF, ws="s[26:27]", tag="sp")
        p("s_mov_b64 exec, -1\nv_and_b32 v1, 63, v0")
    p.stamps_on = False
    p(f"""
    s_load_dwordx2 s[12:13], s[0:1], 120      ; ws
    s_load_dwordx4 s[4:7], s[0:1], 96
    s_barrier
    s_cmp_lg_u32 s33, 0
    s_cbranch_scc1 L_{lab}_sp2w
    v_mov_b32 v12, 0
    s_mov_b32 s58, 0
    L_{lab}_sp1p:
    global_load_dword v13, v12, s[24:25] offset:{128 if "s1tree" in exp else 0} sc1
    s_waitcnt vmcnt(0)
    v_readfirstlane_b32 s40, v13
    s_add_u32 s58, s58, 1
    s_cmp_ge_u32 s40, {1 if "s1tree" in exp else 32}
    s_cbranch_scc1 L_{lab}_sp1d
    s_cmp_ge_u32 s58, 0x40000
    s_cbranch_scc1 L_{lab}_sp1d
    s_sleep 8
    s_branch L_{lab}_sp1p
    L_{lab}_sp1d:
    s_waitcnt lgkmcnt(0)

        s_and_b32 s40, s2, 7
        s_lshl_b32 s40, s40, 7
        s_add_u32 s41, s40, {S2T_OFF}
        v_mov_b32 v12, s41
        s_mov_b32 s58, 0
        L_{lab}_sp2p:
        global_load_dword v13, v12, s[12:13] sc1
        s_waitcnt vmcnt(0)
        v_readfirstlane_b32 s41, v13
        s_add_u32 s58, s58, 1
        s_cmp_ge_u32 s41, 8
        s_cbranch_scc1 L_{lab}_sp2w
        s_cmp_ge_u32 s58, 0x40000
        s_cbranch_scc1 L_{lab}_sp2w
        s_sleep 8
        s_branch L_{lab}_sp2p
    L_{lab}_sp2w:
    s_waitcnt lgkmcnt(0)
    s_barrier
    """)
    gen_k2_stats(p, lab, tail=("" if "nowarm_" in exp + "_" else "warm"), sc="sc1")
    p.stamps_on = so
    p(f"""
    {E}:
    s_endpgm
    """)
    return kernel_text(name, p, vgpr=256, sgpr=100)

KALL_LAUNCH = "grid=(256,1,1) block=(512,1,1) lds=163840"
```
